```python
import torch

def _softmax(x, axis=-1):
    return torch.softmax(x, dim=axis)
def _gelu(x):
    return torch.nn.functional.gelu(x, approximate="tanh")
def _silu(x):
    return torch.nn.functional.silu(x)
def _sigmoid(x):
    return torch.sigmoid(x)
def _layernorm(x, axis=-1, eps=1e-5):
    m = x.mean(dim=axis, keepdim=True)
    v = x.var(dim=axis, keepdim=True, unbiased=False)
    return (x - m) / torch.sqrt(v + eps)
def _scatter_add(tgt, idx, src, axis=0):
    return tgt.clone().index_add_(axis, idx, src)
def _segment_sum(src, seg, n):
    out = torch.zeros((n,) + src.shape[1:], dtype=src.dtype)
    return out.index_add_(0, seg, src)
def _pad(x, pw):
    flat = tuple(v for pair in reversed(pw) for v in pair)
    return torch.nn.functional.pad(x, flat)

kernel_name = 'sequential_preLN__linear_kernel_hedgehog__dense_activation_gelu__prompt'

def setup_inputs():

    _w = (lambda a: (lambda t: t.to(torch.bfloat16) if t.is_floating_point() else t)(torch.as_tensor(a)))
    def _A_setup():
        B, S, D, H = 1, 2048, 512, 32
        Dh = D // H
        return {
            "x": _w((lambda *s: torch.randn(*s, dtype=torch.bfloat16) * 0.05)(B, S, D)),
            "wqkv": _w((lambda *s: torch.randn(*s, dtype=torch.bfloat16) * 0.2)(D, 3 * D)),
            "w_phi": _w((lambda *s: torch.randn(*s, dtype=torch.bfloat16) * 0.2)(H, Dh, Dh) * (Dh ** -0.5)),
            "wo": _w((lambda *s: torch.randn(*s, dtype=torch.bfloat16) * 0.05)(D, D)),
        }
    _A_in = _A_setup()

    def _B_setup():
        B, S, D, F = 1, 2048, 512, 1376
        return {
            "x": _w((lambda *s: torch.randn(*s, dtype=torch.bfloat16) * 0.05)(B, S, D)),
            "w1": _w((lambda *s: torch.randn(*s, dtype=torch.bfloat16) * 1.6)(D, F) * (D ** -0.5)),
            "b1": _w((lambda *s: torch.randn(*s, dtype=torch.bfloat16) * 0.1)(F) * 0.01),
            "w2": _w((lambda *s: torch.randn(*s, dtype=torch.bfloat16) * 0.1)(F, D) * (F ** -0.5)),
            "b2": _w((lambda *s: torch.randn(*s, dtype=torch.bfloat16) * 0.1)(D) * 0.01),
        }
    _B_in = _B_setup()

    return {
        "A_x": _A_in["x"],
        "A_wqkv": _A_in["wqkv"],
        "A_w_phi": _A_in["w_phi"],
        "A_wo": _A_in["wo"],
        "B_x": _B_in["x"],
        "B_w1": _B_in["w1"],
        "B_b1": _B_in["b1"],
        "B_w2": _B_in["w2"],
        "B_b2": _B_in["b2"],
    }

def reference(A_x, A_wqkv, A_w_phi, A_wo, B_x, B_w1, B_b1, B_w2, B_b2):
    def _A_ref(x, wqkv, w_phi, wo):
        B, S, D = x.shape
        H = 32; Dh = D // H
        qkv = (lambda x, *d: x.permute(*d))((x @ wqkv).reshape(B, S, 3, H, Dh), 2, 0, 3, 1, 4)
        q, k, v = qkv[0], qkv[1], qkv[2]
        pq = torch.einsum("bhsd,hdf->bhsf", q, w_phi)
        pk = torch.einsum("bhsd,hdf->bhsf", k, w_phi)
        phi_q = torch.concatenate([_softmax(pq, axis=-1), _softmax(-pq, axis=-1)], axis=-1)
        phi_k = torch.concatenate([_softmax(pk, axis=-1), _softmax(-pk, axis=-1)], axis=-1)
        kv = torch.einsum("bhsf,bhsd->bhfd", phi_k, v)
        z  = torch.einsum("bhsf->bhf", phi_k)
        num = torch.einsum("bhqf,bhfd->bhqd", phi_q, kv)
        den = torch.einsum("bhqf,bhf->bhq", phi_q, z)[..., None] + 1e-6
        o = num / den
        return (lambda x, *d: x.permute(*d))(o, 0, 2, 1, 3).reshape(B, S, D) @ wo

    def _B_ref(x, w1, b1, w2, b2):
        h = torch.einsum("bsd,df->bsf", x, w1) + b1
        h = _gelu(h)
        return torch.einsum("bsf,fd->bsd", h, w2) + b2

    x = A_x
    h = x + _A_ref(_layernorm(x, axis=-1), A_wqkv, A_w_phi, A_wo)
    h2 = h + _B_ref(_layernorm(h, axis=-1), B_w1, B_b1, B_w2, B_b2)
    return h2
```

```python
import re

TRANS = ("v_exp_f32", "v_log_f32", "v_rcp_f32", "v_rsq_f32", "v_sqrt_f32", "v_sin_f32", "v_cos_f32")

def v(i, n=1):
    return f"v{i}" if n == 1 else f"v[{i}:{i+n-1}]"
def a(i, n=1):
    return f"a{i}" if n == 1 else f"a[{i}:{i+n-1}]"
def s(i, n=1):
    return f"s{i}" if n == 1 else f"s[{i}:{i+n-1}]"

_reg_re = re.compile(r"^(-|\|)?(abs\()?([vas])(\d+|\[(\d+):(\d+)\])\)?\|?$")

def regs_of(op):
    op = op.strip()
    if op in ("vcc", "exec", "m0", "scc"):
        return {op}
    if op in ("vcc_lo", "vcc_hi"):
        return {"vcc"}
    if op in ("exec_lo", "exec_hi"):
        return {"exec"}
    m = _reg_re.match(op)
    if not m:
        return set()
    k = m.group(3)
    if m.group(5) is not None:
        return {f"{k}{i}" for i in range(int(m.group(5)), int(m.group(6)) + 1)}
    return {f"{k}{m.group(4)}"}

class Ins:
    def __init__(self, text):
        self.text = text
        t = text.split(";")[0].strip()
        parts = t.split(None, 1)
        self.mn = parts[0]
        rest = parts[1] if len(parts) > 1 else ""
        ops, depth, cur = [], 0, ""
        for ch in rest:
            if ch in "[(":
                depth += 1
            if ch in "])":
                depth -= 1
            if ch == "," and depth == 0:
                ops.append(cur.strip()); cur = ""
            else:
                cur += ch
        if cur.strip():
            ops.append(cur.strip())
        self.mods = ""
        if ops:
            last = ops[-1].split(None, 1)
            ops[-1] = last[0]
            if len(last) > 1:
                self.mods = last[1]
        self.ops = ops
        self.classify()

    def classify(self):
        mn = self.mn
        base = re.sub(r"_(e32|e64|dpp|sdwa)$", "", mn)
        self.base = base
        self.kind = "other"
        R = [regs_of(o) for o in self.ops]
        self.w, self.r = set(), set()
        self.srcc = set(); self.srcab = set(); self.passes = 0
        self.states = 1
        allr = lambda lst: set().union(*lst) if lst else set()
        if base.startswith("v_mfma"):
            self.kind = "mfma"
            self.w = R[0]; self.srcab = R[1] | R[2]; self.srcc = R[3] if len(R) > 3 else set()
            self.r = self.srcab | self.srcc
            if "32x32x16" in base: self.passes = 8
            elif "16x16x32" in base: self.passes = 4
            elif "4x4x4" in base: self.passes = 2
            else: raise ValueError("unknown mfma " + base)
        elif base.startswith("v_cmp"):
            self.kind = "valu"
            self.w = R[0]; self.r = allr(R[1:])
            if base.startswith("v_cmpx"): self.w = self.w | {"exec"}
        elif base in ("v_readfirstlane_b32", "v_readlane_b32"):
            self.kind = "valu"; self.w = R[0]; self.r = allr(R[1:])
        elif base.startswith("v_permlane"):
            self.kind = "valu"; self.w = R[0] | R[1]; self.r = R[0] | R[1]
        elif base.startswith("v_"):
            self.kind = "valu"
            self.w = R[0]; self.r = allr(R[1:])
            if base in ("v_fmac_f32", "v_dot2c_f32_bf16", "v_writelane_b32", "v_pk_fmac_f16"):
                self.r = self.r | R[0]
            if base in ("v_add_co_u32", "v_sub_co_u32", "v_addc_co_u32", "v_subb_co_u32", "v_div_scale_f32"):
                self.w = R[0] | R[1]; self.r = allr(R[2:])
            if base == "v_cndmask_b32" and len(R) == 3:
                self.r = self.r | {"vcc"}
            if base == "v_nop":
                self.w = set(); self.r = set()
        elif base.startswith("buffer_") or base.startswith("global_"):
            self.kind = "vmem"
            islds = " lds" in (" " + self.mods) or "load_lds" in base
            if base in ("buffer_wbl2", "buffer_inv"):
                pass
            elif "load" in base and not islds:
                self.w = R[0]; self.r = allr(R[1:])
            elif "atomic" in base and "sc0" in self.mods:
                self.w = R[0]; self.r = allr(R)
            else:
                self.r = allr(R)
            if islds: self.r = self.r | {"m0"}
            self.islds = islds
            self.widestore = ("store" in base and ("x3" in base or "x4" in base))
            if self.widestore:
                self.sdata = R[0] if base.startswith("buffer_") else R[1]
        elif base.startswith("ds_"):
            self.kind = "ds"
            if "read" in base or "bpermute" in base or "permute" in base or "swizzle" in base:
                self.w = R[0]; self.r = allr(R[1:])
            else:
                self.r = allr(R)
        elif base == "s_nop":
            self.kind = "nop"; self.states = int(self.ops[0], 0) + 1
        elif base.startswith("s_"):
            self.kind = "salu"
            if base.startswith("s_cmp") or base.startswith("s_cbranch") or base in (
                "s_branch", "s_waitcnt", "s_barrier", "s_endpgm", "s_setprio", "s_sleep", "s_bitcmp1_b32", "s_bitcmp0_b32"):
                self.r = allr(R)
            else:
                self.w = R[0] if R else set(); self.r = allr(R[1:])
                if "saveexec" in base: self.w = self.w | {"exec"}
        self.trans = base in TRANS
        self.dot = base.startswith("v_dot")
        self.dpp = ("dpp" in mn) or ("row_" in self.mods) or ("quad_perm" in self.mods)
        self.permlane = base.startswith("v_permlane")
        self.rdlane = base in ("v_readfirstlane_b32", "v_readlane_b32")

def isv(r): return r[0] in "va" and r not in ("vcc",)
def iss(r): return (r[0] == "s" and r != "scc") or r == "vcc"

def need(p, c):
    n = 0
    if p.kind == "valu":
        pw_v = {r for r in p.w if isv(r)}
        pw_s = {r for r in p.w if iss(r)}
        if c.kind == "mfma" and (pw_v & c.r):
            n = max(n, 3 if p.dot else 2)
        if c.kind == "mfma" and "exec" in p.w: n = max(n, 4)
        if c.kind == "valu":
            if c.permlane and (pw_v & c.r): n = max(n, 2)
            if c.dpp and (pw_v & c.r): n = max(n, 2)
            if c.dpp and "exec" in p.w: n = max(n, 5)
            if c.rdlane and (pw_v & c.r): n = max(n, 1)
            if p.trans and not c.trans and (pw_v & c.r): n = max(n, 1)
            if pw_s & c.r: n = max(n, 4 if c.base in ("v_readlane_b32", "v_writelane_b32") else 2)
            if "exec" in p.w and (c.rdlane or c.permlane): n = max(n, 4)
            if "op_sel" in p.mods and not p.base.startswith("v_pk_") and (pw_v & (c.r | c.w)): n = max(n, 1)
            if "sdwa" in p.mn and (pw_v & (c.r | c.w)): n = max(n, 1)
        if p.dot and (pw_v & (c.r | c.w)):
            if c.base == p.base:
                ab = set().union(*[regs_of(o) for o in c.ops[1:3]])
                if pw_v & ab: n = max(n, 3)
            else:
                n = max(n, 3)
        if c.kind == "vmem" and (pw_s & c.r): n = max(n, 5)
        if c.kind == "salu" and (pw_s & c.r) : n = max(n, 1)
    if p.kind == "salu":
        if "m0" in p.w and c.kind == "vmem" and "m0" in c.r: n = max(n, 1)
    if p.kind == "vmem" and getattr(p, "widestore", False):
        if p.sdata & c.w:
            n = max(n, 2 if c.kind in ("valu", "mfma") else 1)
    if p.kind == "mfma":
        D = p.w
        t_ab = {2: 5, 4: 8, 8: 12, 16: 20}[p.passes]
        t_c = {2: 4, 4: 6, 8: 10, 16: 18}[p.passes]
        if c.kind == "mfma":
            if D & c.srcab: n = max(n, t_ab)
            if D & c.srcc:
                if c.srcc == D and c.passes == p.passes:
                    n = max(n, 2 if p.passes == 2 else 0)
                else:
                    n = max(n, t_c)
            elif D & c.w:
                n = max(n, t_c)
        elif c.kind in ("valu", "vmem", "ds"):
            if D & (c.r | c.w): n = max(n, t_ab)
        if c.kind == "valu" and (p.srcc & c.w):
            n = max(n, {2: 1, 4: 3, 8: 7, 16: 15}[p.passes])
    return n

class Asm:
    def __init__(self):
        self.L = []
    def __call__(self, s_):
        for line in s_.strip().split("\n"):
            line = line.strip()
            if not line: continue
            if line.startswith(";"):
                self.L.append(("r", "    " + line))
            else:
                self.L.append(("i", Ins(line)))
    def label(self, n): self.L.append(("l", n))
    def raw(self, t): self.L.append(("r", t))

    def pad(self):
        out = []
        win = []
        for it in self.L:
            if it[0] == "i":
                c = it[1]
                req = 0
                for p, dist in win:
                    req = max(req, need(p, c) - dist)
                while req > 0:
                    k = min(req, 16)
                    nop = Ins(f"s_nop {k-1}")
                    out.append(("i", nop))
                    for e in win: e[1] += k
                    req -= k
                out.append(it)
                for e in win: e[1] += c.states
                win.append([c, 0])
                win = [e for e in win if e[1] < 24]
                if c.base in ("s_endpgm", "s_branch"):
                    win = []
            else:
                out.append(it)
        self.L = out
        self.check_branches()

    def check_branches(self):
        idx = {it[1]: i for i, it in enumerate(self.L) if it[0] == "l"}
        for i, it in enumerate(self.L):
            if it[0] != "i": continue
            c = it[1]
            if c.base.startswith("s_cbranch") or c.base == "s_branch":
                tgt = idx[c.ops[0]]
                win = []; d = 0; j = i
                while j >= 0 and d < 24:
                    if self.L[j][0] == "i":
                        win.append([self.L[j][1], d]); d += self.L[j][1].states
                    j -= 1
                acc = 0; fixed = []
                for p, _ in win:
                    fixed.append([p, acc]); acc += p.states
                k = tgt; d2 = 0
                while k < len(self.L) and d2 < 24:
                    if self.L[k][0] == "i":
                        cc = self.L[k][1]
                        for p, dist in fixed:
                            if need(p, cc) > dist + d2:
                                raise RuntimeError(f"hazard across branch '{c.text}': {p.text} -> {cc.text} needs {need(p,cc)} has {dist+d2}")
                        d2 += cc.states
                        if cc.base in ("s_endpgm", "s_branch"): break
                    k += 1

    def text(self):
        o = []
        for it in self.L:
            if it[0] == "i": o.append("    " + it[1].text)
            elif it[0] == "l": o.append(it[1] + ":")
            else: o.append(it[1])
        return "\n".join(o) + "\n"

def kernel_head(A, name):
    A.raw(".text")
    A.raw(f".globl {name}")
    A.raw(".p2align 8")
    A.raw(f".type {name},@function")
    A.label(name)

def kernel_desc(A, name, vgpr, sgpr=96, agpr=0):
    accum = (vgpr + 3) // 4 * 4
    nfv = accum + agpr if agpr else vgpr
    A.raw('.section .rodata,"a"')
    A.raw(".p2align 6")
    A.raw(f".amdhsa_kernel {name}")
    A.raw(f"  .amdhsa_next_free_vgpr {nfv}")
    A.raw(f"  .amdhsa_next_free_sgpr {sgpr}")
    A.raw(f"  .amdhsa_accum_offset {accum}")
    A.raw("  .amdhsa_group_segment_fixed_size 0")
    A.raw("  .amdhsa_kernarg_size 96")
    A.raw("  .amdhsa_user_sgpr_count 2")
    A.raw("  .amdhsa_user_sgpr_kernarg_segment_ptr 1")
    A.raw("  .amdhsa_system_sgpr_workgroup_id_x 1")
    A.raw(".end_amdhsa_kernel")

def srd(A, d, b, nbytes, add=0):
    if add:
        A(f"s_add_u32 s{d}, s{b}, {add}")
        A(f"s_addc_u32 s{d+1}, s{b+1}, 0")
    else:
        A(f"s_mov_b32 s{d}, s{b}")
        A(f"s_mov_b32 s{d+1}, s{b+1}")
    A(f"s_mov_b32 s{d+2}, {nbytes}")
    A(f"s_mov_b32 s{d+3}, 0x20000")
```

```python
import sys
from asmlib import *

NAME = "sequential_preLN__linear_kernel_hedgehog__dense_activation_gelu__prompt"
WS_PHIQ = 0
WS_KVS = 4 << 20
WS_H = 5 << 20
WS_H1 = 8 << 20
H1_BYTES = 64 * 86 * 1024
WS_STAMP = 16 << 20
LOG2E = 1.4426950408889634
import struct
def fbits(x): return "0x%08x" % struct.unpack("<I", struct.pack("<f", x))[0]

STAMP = False

def stamp_init(A, kidx):
    if STAMP:
        A("s_memrealtime s[76:77]")
        A("s_memtime s[78:79]")
def stamp(A, i):
    if STAMP:
        A(f"s_memtime s[{80+2*i}:{81+2*i}]")
def stamp_out(A, kidx, n, wsrd, wave_s):
    if not STAMP: return
    A("s_waitcnt vmcnt(0)")
    A("s_memrealtime s[74:75]")
    A("s_memtime s[94:95]")
    A("s_getreg_b32 s73, hwreg(HW_REG_XCC_ID)")
    A("s_waitcnt lgkmcnt(0)")
    A("v_mov_b32 v0, s76\nv_mov_b32 v1, s74\nv_mov_b32 v2, s73")
    A("s_sub_u32 s94, s94, s78\nv_mov_b32 v3, s94")
    for i in range(8):
        if i < n:
            A(f"s_sub_u32 s{80+2*i}, s{80+2*i}, s78\nv_mov_b32 v{4+i}, s{80+2*i}")
        else:
            A(f"v_mov_b32 v{4+i}, 0")
    A(f"s_lshl_b32 s72, s2, 2\ns_add_u32 s72, s72, s{wave_s}\ns_lshl_b32 s72, s72, 6\ns_add_u32 s72, s72, {WS_STAMP + kidx*65536}")
    A("v_mov_b32 v12, 0")
    A("s_mov_b64 exec, 1")
    A(f"buffer_store_dwordx4 v[0:3], v12, s[{wsrd}:{wsrd+3}], s72 offen")
    A(f"buffer_store_dwordx4 v[4:7], v12, s[{wsrd}:{wsrd+3}], s72 offen offset:16")
    A(f"buffer_store_dwordx4 v[8:11], v12, s[{wsrd}:{wsrd+3}], s72 offen offset:32")

WS_SIZE = 32 << 20

def swap_reduce(A, x, y, t, op):
    A(f"v_permlane32_swap_b32 v{x}, v{y}")
    A(f"{op} v{x}, v{x}, v{y}")
    A(f"v_mov_b32 v{y}, v{x}")
    A(f"v_permlane32_swap_b32 v{x}, v{y}")

def softmax_tile(A, P, out, tm):
    M = tm
    A(f"v_max3_f32 v{M}, v{P}, v{P+1}, v{P+2}")
    A(f"v_max3_f32 v{M+1}, v{P+8}, v{P+9}, v{P+10}")
    A(f"v_max3_f32 v{M}, v{M}, v{P+3}, v{P+4}")
    A(f"v_max3_f32 v{M+1}, v{M+1}, v{P+11}, v{P+12}")
    A(f"v_max3_f32 v{M}, v{M}, v{P+5}, v{P+6}")
    A(f"v_max3_f32 v{M+1}, v{M+1}, v{P+13}, v{P+14}")
    A(f"v_max_f32 v{M}, v{M}, v{P+7}")
    A(f"v_max_f32 v{M+1}, v{M+1}, v{P+15}")
    swap_reduce(A, M, M+1, None, "v_max_f32")
    for i in range(0, 8, 2):
        A(f"v_pk_add_f32 {v(P+i,2)}, {v(P+i,2)}, {v(M,2)} op_sel_hi:[1,0] neg_lo:[0,1] neg_hi:[0,1]")
    for i in range(8, 16, 2):
        A(f"v_pk_add_f32 {v(P+i,2)}, {v(P+i,2)}, {v(M,2)} op_sel:[0,1] op_sel_hi:[1,1] neg_lo:[0,1] neg_hi:[0,1]")
    for i in range(16):
        A(f"v_exp_f32 v{P+i}, v{P+i}")
    T = tm + 2
    for g in range(2):
        b = P + 8*g
        A(f"v_pk_add_f32 {v(T,2)}, {v(b,2)}, {v(b+2,2)}")
        A(f"v_pk_add_f32 {v(T+2,2)}, {v(b+4,2)}, {v(b+6,2)}")
        A(f"v_pk_add_f32 {v(T,2)}, {v(T,2)}, {v(T+2,2)}")
        A(f"v_add_f32 v{M+g}, v{T}, v{T+1}")
    swap_reduce(A, M, M+1, None, "v_add_f32")
    A(f"v_rcp_f32 v{M}, v{M}")
    A(f"v_rcp_f32 v{M+1}, v{M+1}")
    for i in range(0, 8, 2):
        A(f"v_pk_mul_f32 {v(P+i,2)}, {v(P+i,2)}, {v(M,2)} op_sel_hi:[1,0]")
    for i in range(8, 16, 2):
        A(f"v_pk_mul_f32 {v(P+i,2)}, {v(P+i,2)}, {v(M,2)} op_sel:[0,1] op_sel_hi:[1,1]")
    for i in range(8):
        A(f"v_cvt_pk_bf16_f32 v{out+i}, v{P+2*i}, v{P+2*i+1}")

def mfma(A, d, x, y, c=None):
    cc = "0" if c is None else v(c, 16)
    A(f"v_mfma_f32_32x32x16_bf16 {v(d,16)}, {v(x,4)}, {v(y,4)}, {cc}")

def row_stats(A, sx, sxx, mean, rstd, t):
    swap_reduce(A, sx, sxx, None, "v_add_f32")
    A(f"v_mul_f32 v{mean}, s70, v{sx}")
    A(f"v_mul_f32 v{t}, v{mean}, v{mean}")
    A(f"v_fma_f32 v{t}, v{sxx}, s70, -v{t}")
    A(f"v_max_f32 v{t}, 0, v{t}")
    A(f"v_add_f32 v{t}, s71, v{t}")
    A(f"v_rsq_f32 v{rstd}, v{t}")
    A(f"v_sub_f32 v{mean}, 0, v{mean}")

def gen_k1(A):
    name = "k1_kernel"
    kernel_head(A, name)
    A("s_cmp_ge_u32 s2, 256\ns_cbranch_scc1 K1_END")
    stamp_init(A, 0)
    A("s_load_dwordx4 s[4:7], s[0:1], 0")
    A("s_load_dwordx2 s[28:29], s[0:1], 16")
    A("s_load_dwordx4 s[32:35], s[0:1], 80")
    A("s_and_b32 s43, s2, 7\ns_lshr_b32 s44, s2, 3\ns_lshl_b32 s40, s43, 2\ns_lshr_b32 s42, s44, 3\ns_add_u32 s40, s40, s42\ns_and_b32 s41, s44, 7")
    A("v_lshrrev_b32 v1, 6, v0\nv_and_b32 v0, 63, v0\nv_readfirstlane_b32 s36, v1")
    A("s_and_b32 s37, s36, 1\ns_lshr_b32 s38, s36, 1")
    VX0, VX1, VW, VL16 = 4, 5, 6, 7
    XA, WA, WB = 8, 12, 13
    SX, SXX, CS, ONES = 14, 15, 16, 19
    FX = [20, 24]; FW = [28, 40]
    AQ, AK, AV = 64, 80, 96
    XL, WL, PHL, SCR = 0, 32768, 131072, 135168
    A(f"v_lshrrev_b32 v1, 3, v0\nv_and_b32 v2, 7, v0\nv_lshrrev_b32 v3, 4, v0")
    A(f"v_xor_b32 v{VX0}, v2, v3\nv_lshlrev_b32 v{VX0}, 4, v{VX0}\nv_lshl_add_u32 v{VX0}, v1, 10, v{VX0}")
    A(f"v_xor_b32 v{VX1}, 64, v{VX0}\nv_add_u32 v{VX1}, {8192-1024}, v{VX1}")
    A(f"v_and_b32 v3, 1, v3\nv_lshlrev_b32 v3, 2, v3\nv_xor_b32 v{VW}, v2, v3\nv_lshlrev_b32 v{VW}, 4, v{VW}")
    A(f"v_mul_u32_u24 v1, 3072, v1\nv_add_u32 v{VW}, v{VW}, v1")
    A(f"v_lshlrev_b32 v{VL16}, 4, v0")
    A("s_lshl_b32 s46, s40, 16\ns_lshl_b32 s47, s36, 14\ns_add_u32 s46, s46, s47")
    A(f"s_lshl_b32 s48, s41, 7\ns_mul_i32 s47, s36, {16*3072}\ns_add_u32 s48, s48, s47")
    A(f"s_lshl_b32 s50, s36, 11\ns_mul_i32 s51, s36, 6144\ns_add_u32 s51, s51, {WL}")
    A("s_waitcnt lgkmcnt(0)")
    srd(A, 8, 4, 2097152)
    srd(A, 12, 6, 1572864)
    srd(A, 16, 28, 16384)
    srd(A, 20, 34, WS_SIZE)
    srd(A, 24, 32, 256)
    A("s_cmp_lg_u32 s40, 0\ns_cbranch_scc1 K1_NOZERO")
    A("v_mov_b32 v20, 0\nv_mov_b32 v21, 0\nv_mov_b32 v22, 0\nv_mov_b32 v23, 0")
    A(f"s_mul_i32 s52, s41, 8704\ns_mul_i32 s53, s36, 2176\ns_add_u32 s52, s52, s53\ns_add_u32 s52, s52, {WS_KVS}")
    A(f"buffer_store_dwordx4 v[20:23], v{VL16}, s[20:23], s52 offen sc0 sc1")
    A(f"buffer_store_dwordx4 v[20:23], v{VL16}, s[20:23], s52 offen offset:1024 sc0 sc1")
    A("s_mov_b64 exec, 0xff")
    A(f"buffer_store_dwordx4 v[20:23], v{VL16}, s[20:23], s52 offen offset:2048 sc0 sc1")
    A("s_mov_b64 exec, -1")
    A.label("K1_NOZERO")
    A(f"s_lshl_b32 s52, s41, 11\ns_lshl_b32 s53, s38, 10\ns_add_u32 s52, s52, s53\ns_lshl_b32 s53, s36, 10\ns_add_u32 m0, s53, {PHL}")
    A(f"buffer_load_dwordx4 v{VL16}, s[16:19], s52 offen lds")
    def dma_ops(c):
        sl = c & 3
        ops = []
        ops.append(f"s_add_u32 m0, s50, {XL + sl*8192}\ns_add_u32 s54, s46, {c*128}\nbuffer_load_dwordx4 v{VX0}, s[8:11], s54 offen lds")
        ops.append(f"buffer_load_dwordx4 v{VX1}, s[8:11], s54 offen offset:1024 lds")
        for e in range(2):
            for sg in range(3):
                pre = ""
                if sg == 0:
                    pre = f"s_add_u32 m0, s51, {sl*24576 + e*3072}\ns_add_u32 s55, s48, {(c*64 + 8*e)*3072}\n"
                off = f" offset:{sg*1024}" if sg else ""
                ops.append(pre + f"buffer_load_dwordx4 v{VW}, s[12:15], s55 offen{off} lds")
        return ops
    for c in range(3):
        for o in dma_ops(c): A(o)
    stamp(A, 0)
    A(f"v_and_b32 v1, 31, v0\nv_lshrrev_b32 v2, 5, v0")
    A(f"v_lshrrev_b32 v3, 1, v1\nv_and_b32 v3, 7, v3\nv_xor_b32 v3, v3, v2\nv_lshlrev_b32 v3, 4, v3")
    A(f"v_lshl_add_u32 v{XA}, v1, 7, v3\ns_lshl_b32 s52, s37, 12\nv_add_u32 v{XA}, s52, v{XA}")
    for k in range(1, 4):
        A(f"v_xor_b32 v{XA+k}, {32*k}, v{XA}")
    A(f"v_bfe_u32 v3, v0, 2, 2\nv_lshlrev_b32 v{WA}, 7, v3\nv_lshrrev_b32 v3, 1, v3\nv_xor_b32 v3, s38, v3\nv_lshl_add_u32 v{WA}, v3, 6, v{WA}")
    A(f"v_bfe_u32 v3, v0, 4, 1\nv_lshl_add_u32 v{WA}, v3, 5, v{WA}\nv_and_b32 v3, 3, v0\nv_lshl_add_u32 v{WA}, v3, 3, v{WA}")
    A(f"v_mul_u32_u24 v3, 3072, v2\nv_add_u32 v{WA}, v{WA}, v3\nv_add_u32 v{WA}, {WL}, v{WA}\nv_add_u32 v{WB}, {2*24576}, v{WA}")
    for r in (SX, SXX, CS, CS+1, CS+2):
        A(f"v_mov_b32 v{r}, 0")
    A(f"v_mov_b32 v{ONES}, 0x3f803f80")
    A(f"s_mov_b32 s70, {fbits(1/512)}\ns_mov_b32 s71, {fbits(1e-5)}\ns_mov_b32 s69, {fbits(LOG2E)}")
    ID = 112
    A("v_and_b32 v52, 1, v0\nv_cmp_eq_u32 vcc, 1, v52\nv_mov_b32 v53, 0x3f80\nv_mov_b32 v54, 0x3f800000\nv_cndmask_b32 v53, v53, v54, vcc")
    A("v_bfe_u32 v52, v0, 2, 1\nv_cmp_eq_u32 vcc, v52, v2\nv_cndmask_b32 v53, 0, v53, vcc")
    A("v_bfe_u32 v52, v0, 3, 2\nv_lshlrev_b32 v52, 1, v52\nv_bfe_u32 v54, v0, 1, 1\nv_or_b32 v52, v52, v54")
    for r in range(8):
        A(f"v_cmp_eq_u32 vcc, {r}, v52\nv_cndmask_b32 v{ID+r}, 0, v53, vcc")

    def reads(c, ks, b):
        sl = c & 3
        A(f"ds_read_b128 {v(FX[b],4)}, v{XA+ks} offset:{XL + sl*8192}")
        base = WA if sl < 2 else WB
        for sg in range(3):
            for t in range(2):
                A(f"ds_read_b64_tr_b16 {v(FW[b]+4*sg+2*t,2)}, v{base} offset:{(sl&1)*24576 + ks*6144 + sg*1024 + t*512}")
    for c in range(8):
        n_out = {5: 16, 6: 8, 7: 0}.get(c, 16)
        A(f"s_waitcnt vmcnt({n_out})")
        A("s_barrier")
        if c == 0:
            stamp(A, 1)
            A("s_or_b32 s52, s40, s36\ns_cmp_lg_u32 s52, 0\ns_cbranch_scc1 K1_NOFLAG")
            A("v_mov_b32 v52, 1\ns_lshl_b32 s52, s41, 2\nv_mov_b32 v53, 0\ns_mov_b64 exec, 1")
            A("buffer_store_dword v52, v53, s[24:27], s52 offen sc0 sc1")
            A("s_mov_b64 exec, -1")
            A.label("K1_NOFLAG")
        reads(c, 0, 0)
        dm = dma_ops(c + 3) if c + 3 < 8 else []
        if c == 7:
            A("s_lshl_b32 s52, s41, 2\nv_mov_b32 v53, 0")
            A("buffer_load_dword v60, v53, s[24:27], s52 offen sc0 sc1")
        for ks in range(4):
            b = ks & 1
            if ks < 3: reads(c, ks + 1, b ^ 1)
            for o in dm[2*ks:2*ks+2]: A(o)
            A(f"s_waitcnt lgkmcnt({7 if ks < 3 else 0})")
            first = (c == 0 and ks == 0)
            X = FX[b]; W = FW[b]
            dots = []
            for i in range(4):
                dots.append(f"v_dot2c_f32_bf16 v{SX}, v{X+i}, v{ONES}")
                dots.append(f"v_dot2c_f32_bf16 v{SXX}, v{X+i}, v{X+i}")
            mfma(A, AQ, W, X, None if first else AQ)
            for d in dots[:4]: A(d)
            mfma(A, AK, W+4, X, None if first else AK)
            for d in dots[4:]: A(d)
            mfma(A, AV, X, W+8, None if first else AV)
            A(f"s_cmp_lg_u32 s37, {ks & 1}\ns_cbranch_scc1 K1_SK{c}_{ks}")
            for i in range(4):
                for sg in range(3):
                    A(f"v_dot2c_f32_bf16 v{CS+sg}, v{W+4*sg+i}, v{ONES}")
            A.label(f"K1_SK{c}_{ks}")
    stamp(A, 2)
    A(f"s_mul_i32 s52, s36, 768\ns_add_u32 s52, s52, {SCR}\nv_lshl_add_u32 v52, v0, 2, s52")
    A(f"s_xor_b32 s53, s36, 1\ns_mul_i32 s53, s53, 768\ns_add_u32 s53, s53, {SCR}\nv_lshl_add_u32 v53, v0, 2, s53")
    for sg in range(3):
        A(f"ds_write_b32 v52, v{CS+sg} offset:{sg*256}")
    PW = 120
    A(f"v_bfe_u32 v54, v0, 2, 2\nv_lshl_add_u32 v54, v2, 2, v54\nv_lshlrev_b32 v54, 5, v54\nv_and_b32 v55, 3, v0\nv_lshl_add_u32 v54, v55, 3, v54")
    A(f"s_lshl_b32 s52, s36, 10\ns_add_u32 s52, s52, {PHL}\nv_add_u32 v54, s52, v54")
    for e in range(2):
        for t in range(2):
            A(f"ds_read_b64_tr_b16 {v(PW+4*e+2*t,2)}, v54 offset:{e*512+t*256}")
    NM, RSTD = 56, 57
    row_stats(A, SX, SXX, NM, RSTD, 58)
    A(f"s_lshl_b32 s52, s36, 7\ns_add_u32 s52, s52, {SCR+3072}\nv_lshl_add_u32 v58, v1, 2, s52\nds_write_b32 v58, v{RSTD}")
    A(f"v_lshl_add_u32 v59, v2, 4, s52")
    NF = 20
    A(f"v_cvt_pk_bf16_f32 v{NF+1}, v{NM}, 0\nv_lshlrev_b32 v58, 16, v{NF+1}\nv_sub_f32 v58, v{NM}, v58\nv_cvt_pk_bf16_f32 v{NF}, v{NM}, v58")
    A(f"v_mov_b32 v{NF+2}, 0\nv_mov_b32 v{NF+3}, 0")
    A("s_waitcnt lgkmcnt(0)\ns_barrier")
    for sg in range(3):
        A(f"ds_read_b32 v{24+sg}, v53 offset:{sg*256}")
    RS = 128
    for q in range(4):
        A(f"ds_read_b128 {v(RS+4*q,4)}, v59 offset:{q*32}")
    A("v_bfe_u32 v58, v0, 4, 1\nv_mul_u32_u24 v58, 0x8000, v58\nv_lshl_or_b32 v58, v58, 16, v58")
    for i in range(8):
        A(f"v_xor_b32 v{PW+i}, v{PW+i}, v58")
    A("s_waitcnt lgkmcnt(4)")
    CF = 28
    for sg in range(3):
        A(f"v_add_f32 v{CS+sg}, v{CS+sg}, v{24+sg}")
        A(f"v_cvt_pk_bf16_f32 v{CF+4*sg}, v{CS+sg}, v{CS+sg}\nv_lshlrev_b32 v58, 16, v{CF+4*sg}\nv_sub_f32 v58, v{CS+sg}, v58")
        A(f"v_cvt_pk_bf16_f32 v{CF+4*sg+1}, v58, 0\nv_mov_b32 v{CF+4*sg+2}, 0\nv_mov_b32 v{CF+4*sg+3}, 0")
    mfma(A, AK, CF+4, NF, AK)
    mfma(A, AQ, CF, NF, AQ)
    mfma(A, AV, NF, CF+8, AV)
    CK = 58
    A(f"v_mul_f32 v{CK}, s69, v{RSTD}")
    KB, QB = 40, 48
    def scale_pack(acc, outb):
        for i in range(0, 16, 2):
            A(f"v_pk_mul_f32 {v(acc+i,2)}, {v(acc+i,2)}, {v(CK,2)} op_sel_hi:[1,0]")
        for i in range(8):
            A(f"v_cvt_pk_bf16_f32 v{outb+i}, v{acc+2*i}, v{acc+2*i+1}")
    P = [144, 160, 176, 192]
    scale_pack(AK, KB)
    mfma(A, P[0], PW, KB)
    mfma(A, P[1], PW+4, KB+4)
    scale_pack(AQ, QB)
    mfma(A, P[2], PW, QB)
    mfma(A, P[3], PW+4, QB+4)
    A("s_waitcnt lgkmcnt(0)")
    VB = 20; V0 = 28; V1 = 208
    for i in range(0, 16, 2):
        A(f"v_pk_mul_f32 {v(AV+i,2)}, {v(AV+i,2)}, {v(RS+i,2)}")
    for i in range(8):
        A(f"v_cvt_pk_bf16_f32 v{VB+i}, v{AV+2*i}, v{AV+2*i+1}")
    A("v_and_b32 v36, 16, v0\nv_cmp_eq_u32 vcc, 0, v36")
    for i in range(8):
        A(f"v_cndmask_b32 v{V0+i}, v{ONES}, v{VB+i}, vcc")
    for i in range(8):
        A(f"v_cndmask_b32 v{V1+i}, v{VB+i}, v{ONES}, vcc")
    TM = 216
    PK = [224, 232]
    T = [64, 80]
    TB = [40, 48]
    KV = [96, 128]
    softmax_tile(A, P[0], PK[0], TM)
    mfma(A, T[0], PK[0], ID); mfma(A, T[0], PK[0]+4, ID+4, T[0])
    softmax_tile(A, P[1], PK[1], TM)
    mfma(A, T[1], PK[1], ID); mfma(A, T[1], PK[1]+4, ID+4, T[1])
    for e in range(2):
        for i in range(8):
            A(f"v_cvt_pk_bf16_f32 v{TB[e]+i}, v{T[e]+2*i}, v{T[e]+2*i+1}")
        Ve = V0 if e == 0 else V1
        mfma(A, KV[e], TB[e], Ve); mfma(A, KV[e], TB[e]+4, Ve+4, KV[e])
    PQ = 224
    softmax_tile(A, P[2], PQ, TM)
    A(f"s_lshl_b32 s52, s36, 13\nv_add_u32 v36, s52, v{VL16}")
    for e in range(2):
        for q in range(4):
            A(f"ds_write_b128 v36, {v(KV[e]+4*q,4)} offset:{e*4096+q*1024}")
    A(f"s_lshl_b32 s52, s40, 1\ns_add_u32 s52, s52, s37\ns_lshl_b32 s52, s52, 5\ns_lshl_b32 s53, s41, 2\ns_add_u32 s52, s52, s53\ns_lshl_b32 s53, s38, 1\ns_add_u32 s52, s52, s53\ns_lshl_b32 s56, s52, 11")
    A(f"buffer_store_dwordx4 {v(PQ,4)}, v{VL16}, s[20:23], s56 offen")
    A(f"buffer_store_dwordx4 {v(PQ+4,4)}, v{VL16}, s[20:23], s56 offen offset:1024")
    A(f"s_lshl_b32 s52, s38, 14\ns_mul_i32 s53, s37, {4096+256}\ns_add_u32 s52, s52, s53\nv_lshl_add_u32 v37, v0, 2, s52")
    A(f"v_bfe_u32 v38, v0, 2, 3\nv_lshlrev_b32 v38, 9, v38\nv_and_b32 v39, 3, v0\nv_lshl_add_u32 v38, v39, 2, v38")
    A(f"s_lshl_b32 s52, s38, 14\ns_mul_i32 s53, s37, {4096-256}\ns_add_u32 s52, s52, s53\ns_add_u32 s52, s52, 256\nv_add_u32 v38, s52, v38")
    A("s_waitcnt lgkmcnt(0)\ns_barrier")
    G = 64
    for i in range(8):
        A(f"ds_read2st64_b32 {v(G+2*i,2)}, v37 offset0:{2*i} offset1:{2*i+32}")
    A(f"ds_read2st64_b32 {v(G+16,2)}, v38 offset0:0 offset1:32")
    A.label("K1_POLL")
    A("s_waitcnt vmcnt(2)")
    A("v_readfirstlane_b32 s52, v60\ns_cmp_eq_u32 s52, 1\ns_cbranch_scc1 K1_FLAGOK")
    A("s_sleep 4\ns_lshl_b32 s52, s41, 2\nv_mov_b32 v39, 0")
    A("buffer_load_dword v60, v39, s[24:27], s52 offen sc0 sc1\ns_waitcnt vmcnt(0)\ns_branch K1_POLL")
    A.label("K1_FLAGOK")
    A(f"s_lshl_b32 s52, s41, 2\ns_add_u32 s52, s52, s36\ns_mul_i32 s52, s52, 2176\ns_add_u32 s52, s52, {WS_KVS}")
    A("v_lshlrev_b32 v39, 2, v0")
    A("s_waitcnt lgkmcnt(0)")
    for i in range(9):
        A(f"v_add_f32 v{G+2*i}, v{G+2*i}, v{G+2*i+1}")
    for i in range(8):
        A(f"buffer_atomic_add_f32 v{G+2*i}, v39, s[20:23], s52 offen offset:{i*256}")
    A("s_mov_b64 exec, 0xffffffff")
    A(f"buffer_atomic_add_f32 v{G+16}, v39, s[20:23], s52 offen offset:2048")
    A("s_mov_b64 exec, -1")
    stamp(A, 3)
    softmax_tile(A, P[3], 232, TM)
    A(f"buffer_store_dwordx4 {v(232,4)}, v{VL16}, s[20:23], s56 offen offset:2048")
    A(f"buffer_store_dwordx4 {v(236,4)}, v{VL16}, s[20:23], s56 offen offset:3072")
    stamp(A, 4)
    stamp_out(A, 0, 5, 20, 36)
    A.label("K1_END")
    A("s_endpgm")
    return name, 256, 139264

def gen_k2(A):
    name = "k2_kernel"
    kernel_head(A, name)
    A("s_cmp_ge_u32 s2, 256\ns_cbranch_scc1 K2_END")
    stamp_init(A, 1)
    A("s_load_dwordx2 s[4:5], s[0:1], 0")
    A("s_load_dwordx2 s[6:7], s[0:1], 24")
    A("s_load_dwordx2 s[34:35], s[0:1], 88")
    A("s_and_b32 s43, s2, 7\ns_lshr_b32 s44, s2, 3\ns_lshl_b32 s40, s43, 2\ns_lshr_b32 s42, s44, 3\ns_add_u32 s40, s40, s42\ns_and_b32 s41, s44, 7")
    A("v_lshrrev_b32 v1, 6, v0\nv_and_b32 v0, 63, v0\nv_readfirstlane_b32 s36, v1")
    A("s_and_b32 s37, s36, 1\ns_lshr_b32 s38, s36, 1")
    VL16, VW0, VW1, VKV, TA0, TA1, VXR = 4, 5, 6, 8, 12, 13, 14
    A(f"v_lshlrev_b32 v{VL16}, 4, v0")
    A(f"v_lshrrev_b32 v1, 3, v0\nv_and_b32 v2, 7, v0\nv_bfe_u32 v3, v0, 4, 1\nv_lshlrev_b32 v3, 2, v3\nv_xor_b32 v2, v2, v3\nv_lshlrev_b32 v2, 4, v2")
    A(f"v_lshl_add_u32 v{VW0}, v1, 10, v2\nv_add_u32 v{VW1}, {8192-1024}, v{VW0}")
    A(f"v_and_b32 v1, 31, v0\nv_lshrrev_b32 v2, 5, v0")
    A(f"v_lshlrev_b32 v3, 4, v1\nv_lshl_add_u32 v3, v2, 8, v3\nv_lshlrev_b32 v15, 4, v2\nv_add_u32 v15, 2048, v15")
    A("v_cmp_gt_u32 vcc, 16, v1")
    for q in range(4):
        A(f"v_add_u32 v16, {q*512}, v3\nv_add_u32 v17, {q*32}, v15\nv_cndmask_b32 v{VKV+q}, v17, v16, vcc")
    A(f"s_lshl_b32 s46, s40, 17\ns_lshl_b32 s52, s36, 14\ns_add_u32 s46, s46, s52\ns_add_u32 s47, s46, 65536")
    A(f"s_mul_i32 s48, s36, {8*2176}\ns_add_u32 s48, s48, {WS_KVS}")
    A(f"s_lshl_b32 s49, s36, 17\ns_lshl_b32 s52, s41, 7\ns_add_u32 s49, s49, s52\ns_lshl_b32 s50, s36, 14")
    A("s_waitcnt lgkmcnt(0)")
    srd(A, 8, 4, 2097152)
    srd(A, 12, 6, 524288)
    srd(A, 20, 34, WS_SIZE)
    NB = 3
    PH = lambda i: 96 + (i % NB) * 32
    KVR = lambda i: 96 + (i % NB) * 32 + 16
    def loads(i):
        ops = []
        for q in range(4):
            pre = f"s_add_u32 s54, s48, {i*2176}\n" if q == 0 else ""
            ops.append(pre + f"buffer_load_dwordx4 {v(KVR(i)+4*q,4)}, v{VKV+q}, s[20:23], s54 offen")
        for rt in range(2):
            for t in range(2):
                pre = f"s_add_u32 s55, s{46+rt}, {i*2048}\n" if t == 0 else ""
                ops.append(pre + f"buffer_load_dwordx4 {v(PH(i)+8*rt+4*t,4)}, v{VL16}, s[20:23], s55 offen offset:{t*1024}")
        ops.append(f"s_add_u32 m0, s50, {i*2048}\ns_add_u32 s56, s49, {i*16384}\nbuffer_load_dwordx4 v{VW0}, s[12:15], s56 offen lds")
        ops.append(f"buffer_load_dwordx4 v{VW1}, s[12:15], s56 offen offset:1024 lds")
        return ops
    D = 2
    for i in range(D):
        for o in loads(i): A(o)
    stamp(A, 0)
    A(f"v_bfe_u32 v3, v0, 2, 2\nv_lshl_add_u32 v15, v2, 2, v3\nv_lshlrev_b32 v{TA0}, 7, v15\nv_lshrrev_b32 v3, 1, v3\nv_lshl_add_u32 v{TA0}, v3, 6, v{TA0}")
    A(f"v_bfe_u32 v3, v0, 4, 1\nv_lshl_add_u32 v{TA0}, v3, 5, v{TA0}\nv_and_b32 v3, 3, v0\nv_lshl_add_u32 v{TA0}, v3, 3, v{TA0}")
    A(f"v_add_u32 v{TA0}, s50, v{TA0}\nv_xor_b32 v{TA1}, 64, v{TA0}")
    A(f"v_lshlrev_b32 v{VXR}, 10, v1\nv_lshl_add_u32 v{VXR}, v2, 3, v{VXR}")
    A(f"s_lshl_b32 s57, s40, 16\ns_lshl_b32 s52, s37, 15\ns_add_u32 s57, s57, s52\ns_lshl_b32 s52, s41, 7\ns_add_u32 s57, s57, s52\ns_lshl_b32 s52, s38, 6\ns_add_u32 s57, s57, s52")
    A(f"s_mov_b32 s69, {fbits(1e-6)}")
    ACC = lambda nt, rt: 192 + (2*nt + rt) * 16
    KA = 16; O = [24, 40]; OB = [56, 60]; WOF = 64; XR = 72; RC = 80
    for i in range(8):
        nxt = loads(i + D) if i + D < 8 else []
        if i == 6:
            nxt = [f"buffer_load_dwordx2 {v(XR+2*q,2)}, v{VXR}, s[8:11], s57 offen offset:{q*16}" for q in range(4)]
        n_out = 10 if i < 7 else 4
        A(f"s_waitcnt vmcnt({n_out})")
        if i == 0: stamp(A, 1)
        for nt in range(2):
            for t in range(2):
                A(f"ds_read_b64_tr_b16 {v(WOF+4*nt+2*t,2)}, v{TA0+nt} offset:{i*2048+t*1024}")
        for r in range(8):
            A(f"v_cvt_pk_bf16_f32 v{KA+r}, v{KVR(i)+2*r}, v{KVR(i)+2*r+1}")
        for rt in range(2):
            mfma(A, O[rt], KA, PH(i)+8*rt)
            mfma(A, O[rt], KA+4, PH(i)+8*rt+4, O[rt])
        for o in nxt[:5]: A(o)
        for rt in range(2):
            A(f"v_add_f32 v{RC}, s69, v{O[rt]+8}")
            A(f"v_rcp_f32 v{RC}, v{RC}")
            for r in range(0, 8, 2):
                A(f"v_pk_mul_f32 {v(O[rt]+r,2)}, {v(O[rt]+r,2)}, {v(RC,2)} op_sel_hi:[1,0]")
            for r in range(4):
                A(f"v_cvt_pk_bf16_f32 v{OB[rt]+r}, v{O[rt]+2*r}, v{O[rt]+2*r+1}")
            if rt == 0: A("s_waitcnt lgkmcnt(0)")
            for nt in range(2):
                mfma(A, ACC(nt, rt), WOF+4*nt, OB[rt], None if i == 0 else ACC(nt, rt))
            if rt == 0:
                for o in nxt[5:]: A(o)
    stamp(A, 2)
    R = reduce4(A, "K2", 192, 65536, 36, VL16, 96)
    A("s_waitcnt vmcnt(0)")
    for r in range(8):
        A(f"v_lshlrev_b32 v{16}, 16, v{XR+r}\nv_and_b32 v17, 0xffff0000, v{XR+r}")
        A(f"v_pk_add_f32 {v(R+2*r,2)}, {v(R+2*r,2)}, v[16:17]")
        A(f"v_cvt_pk_bf16_f32 v{24+r}, v{R+2*r}, v{R+2*r+1}")
    A(f"s_lshl_b32 s52, s40, 1\ns_add_u32 s52, s52, s37\ns_lshl_b32 s52, s52, 5\ns_lshl_b32 s53, s41, 2\ns_add_u32 s52, s52, s53\ns_lshl_b32 s53, s38, 1\ns_add_u32 s52, s52, s53\ns_lshl_b32 s52, s52, 10\ns_add_u32 s52, s52, {WS_H}")
    A(f"buffer_store_dwordx4 v[24:27], v{VL16}, s[20:23], s52 offen")
    A(f"buffer_store_dwordx4 v[28:31], v{VL16}, s[20:23], s52 offen offset:1024")
    stamp(A, 3)
    stamp_out(A, 1, 4, 20, 36)
    A.label("K2_END")
    A("s_endpgm")
    return name, 256, 131072

def reduce4(A, pfx, ACCB, XB, wave_s, vl16, tmp):
    aw, ar = tmp + 64, tmp + 65
    A("s_nop 7")
    A(f"s_lshl_b32 s52, s{wave_s}, 12\ns_add_u32 s52, s52, {XB}\nv_add_u32 v{aw}, s52, v{vl16}")
    A(f"s_lshl_b32 s52, s{wave_s}, 14\ns_add_u32 s52, s52, {XB}\nv_add_u32 v{ar}, s52, v{vl16}")
    for j in range(4):
        A(f"s_cmp_eq_u32 s{wave_s}, {j}\ns_cbranch_scc1 {pfx}_OWN{j}")
        for q in range(4):
            A(f"ds_write_b128 v{aw}, {v(ACCB+16*j+4*q,4)} offset:{j*16384+q*1024}")
        A(f"s_branch {pfx}_NXT{j}")
        A.label(f"{pfx}_OWN{j}")
        for r in range(0, 16, 2):
            A(f"v_pk_mov_b32 {v(tmp+r,2)}, {v(ACCB+16*j+r,2)}, {v(ACCB+16*j+r,2)} op_sel:[0,1]")
        A.label(f"{pfx}_NXT{j}")
    A("s_waitcnt lgkmcnt(0)\ns_barrier")
    for k in range(1, 4):
        A(f"s_xor_b32 s52, s{wave_s}, {k}\ns_lshl_b32 s52, s52, 12\nv_add_u32 v{aw}, s52, v{ar}")
        for q in range(4):
            A(f"ds_read_b128 {v(tmp+16*k+4*q,4)}, v{aw} offset:{q*1024}")
    for k in range(1, 4):
        A(f"s_waitcnt lgkmcnt({4*(3-k)})")
        for r in range(0, 16, 2):
            A(f"v_pk_add_f32 {v(tmp+r,2)}, {v(tmp+r,2)}, {v(tmp+16*k+r,2)}")
    return tmp

def gen_k3(A):
    name = "k3_kernel"
    kernel_head(A, name)
    A("s_cmp_ge_u32 s2, 256\ns_cbranch_scc1 K3_END")
    A("s_and_b32 s43, s2, 7\ns_lshr_b32 s44, s2, 3\ns_lshl_b32 s40, s43, 1\ns_lshr_b32 s42, s44, 4\ns_add_u32 s40, s40, s42\ns_and_b32 s41, s44, 15")
    A("s_cmp_eq_u32 s41, 15\ns_cbranch_scc1 K3_END")
    stamp_init(A, 2)
    A("s_load_dwordx4 s[4:7], s[0:1], 40")
    A("s_load_dwordx2 s[34:35], s[0:1], 88")
    A("v_lshrrev_b32 v1, 6, v0\nv_and_b32 v0, 63, v0\nv_readfirstlane_b32 s36, v1")
    VL16, VB, TA, TB_ = 4, 5, 8, 9
    SX, SXX, CS, ONES = 10, 11, 12, 15
    A(f"v_lshlrev_b32 v{VL16}, 4, v0")
    for i in range(3):
        A(f"v_add_u32 v1, {64*i}, v0\nv_mul_u32_u24 v2, 43691, v1\nv_lshrrev_b32 v2, 19, v2\nv_mul_u32_u24 v3, 12, v2\nv_sub_u32 v1, v1, v3")
        A(f"v_mul_u32_u24 v2, 2752, v2\nv_lshl_add_u32 v{VB+i}, v1, 4, v2")
        if i: A(f"v_subrev_u32 v{VB+i}, {1024*i}, v{VB+i}")
    A(f"s_lshl_b32 s46, s40, 2\ns_add_u32 s46, s46, s36\ns_lshl_b32 s47, s46, 15\ns_add_u32 s47, s47, {WS_H}")
    A(f"s_mul_i32 s48, s36, {16*2752}\ns_mul_i32 s52, s41, 192\ns_add_u32 s48, s48, s52\ns_mul_i32 s50, s36, 3072")
    A("s_waitcnt lgkmcnt(0)")
    srd(A, 12, 4, 512*2752)
    srd(A, 16, 6, 2752)
    srd(A, 20, 34, WS_SIZE)
    AF = 128
    def loads(c):
        ops = []
        for i in range(3):
            pre = f"s_add_u32 m0, s50, {c*12288}\ns_add_u32 s55, s48, {c*64*2752}\n" if i == 0 else ""
            off = f" offset:{i*1024}" if i else ""
            ops.append(pre + f"buffer_load_dwordx4 v{VB+i}, s[12:15], s55 offen{off} lds")
        for ks in range(4):
            pre = f"s_add_u32 s54, s47, {c*4096}\n" if ks == 0 else ""
            ops.append(pre + f"buffer_load_dwordx4 {v(AF+16*c+4*ks,4)}, v{VL16}, s[20:23], s54 offen offset:{ks*1024}")
        return ops
    D = 2
    for c in range(D):
        for o in loads(c): A(o)
    stamp(A, 0)
    A(f"v_and_b32 v1, 31, v0\nv_lshrrev_b32 v2, 5, v0")
    A(f"v_bfe_u32 v3, v0, 2, 2\nv_lshl_add_u32 v3, v2, 2, v3\nv_mul_u32_u24 v{TA}, 192, v3")
    A(f"v_bfe_u32 v3, v0, 4, 1\nv_lshl_add_u32 v{TA}, v3, 5, v{TA}\nv_and_b32 v3, 3, v0\nv_lshl_add_u32 v{TA}, v3, 3, v{TA}\nv_add_u32 v{TB_}, {16*3072}, v{TA}")
    for r in (SX, SXX, CS, CS+1, CS+2):
        A(f"v_mov_b32 v{r}, 0")
    A(f"v_mov_b32 v{ONES}, 0x3f803f80")
    A(f"s_mov_b32 s70, {fbits(1/512)}\ns_mov_b32 s71, {fbits(1e-5)}")
    FW = [16, 28]
    ACC = [64, 80, 96]
    B1 = 40
    def reads(kg, b):
        base = TA if kg < 16 else TB_
        for nt in range(3):
            for t in range(2):
                A(f"ds_read_b64_tr_b16 {v(FW[b]+4*nt+2*t,2)}, v{base} offset:{(kg&15)*3072 + t*1536 + nt*64}")
    for c in range(8):
        nxt = loads(c + D) if c + D < 8 else []
        if c == 6:
            A(f"v_lshlrev_b32 v3, 1, v1\ns_mul_i32 s56, s41, 192")
            nxt = [f"buffer_load_ushort v{B1+nt}, v3, s[16:19], s56 offen offset:{nt*64}" for nt in range(3)]
        n_out = 7 if c < 7 else 3
        A(f"s_waitcnt vmcnt({n_out})\ns_barrier")
        if c == 0: stamp(A, 1)
        reads(4*c, 0)
        for ks in range(4):
            b = ks & 1
            if ks < 3: reads(4*c + ks + 1, b ^ 1)
            for o in nxt[2*ks:2*ks+2]: A(o)
            A(f"s_waitcnt lgkmcnt({6 if ks < 3 else 0})")
            X = AF + 16*c + 4*ks; W = FW[b]
            first = (c == 0 and ks == 0)
            dots = []
            for i in range(4):
                dots.append(f"v_dot2c_f32_bf16 v{SX}, v{X+i}, v{ONES}")
                dots.append(f"v_dot2c_f32_bf16 v{SXX}, v{X+i}, v{X+i}")
            mfma(A, ACC[0], W, X, None if first else ACC[0])
            for d in dots[:4]: A(d)
            mfma(A, ACC[1], W+4, X, None if first else ACC[1])
            for d in dots[4:]: A(d)
            mfma(A, ACC[2], W+8, X, None if first else ACC[2])
            A(f"s_cmp_lg_u32 s36, {ks}\ns_cbranch_scc1 K3_SK{c}_{ks}")
            for i in range(4):
                for nt in range(3):
                    A(f"v_dot2c_f32_bf16 v{CS+nt}, v{W+4*nt+i}, v{ONES}")
            A.label(f"K3_SK{c}_{ks}")
    stamp(A, 2)
    SCR = 98304
    A(f"s_mul_i32 s52, s36, 768\ns_add_u32 s52, s52, {SCR}\nv_lshl_add_u32 v44, v0, 2, s52")
    for nt in range(3):
        A(f"ds_write_b32 v44, v{CS+nt} offset:{nt*256}")
    NM, RSTD, SD = 46, 48, 47
    row_stats(A, SX, SXX, NM, RSTD, SD)
    A(f"v_mul_f32 v{SD}, v{SD}, v{RSTD}")
    NF = 16
    A(f"v_cvt_pk_bf16_f32 v{NF+1}, v{NM}, v{SD}")
    A(f"v_lshlrev_b32 v50, 16, v{NF+1}\nv_sub_f32 v50, v{NM}, v50\nv_cvt_pk_bf16_f32 v{NF}, v{NM}, v50")
    A(f"v_and_b32 v50, 0xffff0000, v{NF+1}\nv_sub_f32 v50, v{SD}, v50\nv_cvt_pk_bf16_f32 v{NF+2}, v50, 0\nv_mov_b32 v{NF+3}, 0")
    A(f"v_lshlrev_b32 v44, 2, v0\nv_add_u32 v44, {SCR}, v44")
    A("s_waitcnt lgkmcnt(0)\ns_barrier")
    for w in range(4):
        for nt in range(3):
            A(f"ds_read_b32 v{52+3*w+nt}, v44 offset:{w*768+nt*256}")
    A("s_waitcnt vmcnt(0)")
    A("v_cmp_gt_u32 vcc, 32, v0")
    for nt in range(3):
        A(f"v_cndmask_b32 v{B1+nt}, 0, v{B1+nt}, vcc")
    A("s_waitcnt lgkmcnt(0)")
    CF = 20
    for nt in range(3):
        A(f"v_add_f32 v50, v{52+nt}, v{55+nt}\nv_add_f32 v51, v{58+nt}, v{61+nt}\nv_add_f32 v50, v50, v51")
        A(f"v_cvt_pk_bf16_f32 v{CF+4*nt}, v50, v50\nv_lshlrev_b32 v51, 16, v{CF+4*nt}\nv_sub_f32 v51, v50, v51")
        A(f"v_cvt_pk_bf16_f32 v51, v51, 0\nv_lshl_or_b32 v{CF+4*nt+1}, v{B1+nt}, 16, v51\nv_mov_b32 v{CF+4*nt+2}, v{B1+nt}\nv_mov_b32 v{CF+4*nt+3}, 0")
        mfma(A, ACC[nt], CF+4*nt, NF, ACC[nt])
    c0 = -2 * 0.7978845608028654 * LOG2E
    c1 = c0 * 0.044715
    CC = 32; ONE2 = 34
    A(f"v_mov_b32 v{CC}, {fbits(c1)}\nv_mov_b32 v{CC+1}, {fbits(c0)}\nv_mov_b32 v{ONE2}, 1.0\nv_mov_b32 v{ONE2+1}, 1.0")
    A(f"s_mul_i32 s52, s46, 86\ns_mul_i32 s53, s41, 6\ns_add_u32 s52, s52, s53\ns_lshl_b32 s52, s52, 10\ns_add_u32 s52, s52, {WS_H1}")
    T = 128
    for nt in range(3):
        if nt == 1:
            A("s_cmp_eq_u32 s41, 14\ns_cbranch_scc1 K3_DONE")
        X = ACC[nt]
        for r in range(0, 16, 2):
            A(f"v_pk_mul_f32 {v(X+r,2)}, {v(X+r,2)}, {v(RSTD,2)} op_sel_hi:[1,0]")
        for r in range(0, 16, 2):
            A(f"v_pk_mul_f32 {v(T+r,2)}, {v(X+r,2)}, {v(X+r,2)}")
        for r in range(0, 16, 2):
            A(f"v_pk_fma_f32 {v(T+r,2)}, {v(T+r,2)}, {v(CC,2)}, {v(CC,2)} op_sel:[0,0,1] op_sel_hi:[1,0,1]")
        for r in range(0, 16, 2):
            A(f"v_pk_mul_f32 {v(T+r,2)}, {v(T+r,2)}, {v(X+r,2)}")
        for r in range(16):
            A(f"v_exp_f32 v{T+r}, v{T+r}")
        for r in range(0, 16, 2):
            A(f"v_pk_add_f32 {v(T+r,2)}, {v(T+r,2)}, {v(ONE2,2)}")
        for r in range(16):
            A(f"v_rcp_f32 v{T+r}, v{T+r}")
        for r in range(0, 16, 2):
            A(f"v_pk_mul_f32 {v(X+r,2)}, {v(X+r,2)}, {v(T+r,2)}")
        OUT = 144 + 8*nt
        for r in range(8):
            A(f"v_cvt_pk_bf16_f32 v{OUT+r}, v{X+2*r}, v{X+2*r+1}")
        if nt == 2: A("s_add_u32 s52, s52, 4096")
        o = (nt & 1) * 2048
        A(f"buffer_store_dwordx4 {v(OUT,4)}, v{VL16}, s[20:23], s52 offen offset:{o}")
        A(f"buffer_store_dwordx4 {v(OUT+4,4)}, v{VL16}, s[20:23], s52 offen offset:{o+1024}")
    A.label("K3_DONE")
    stamp(A, 3)
    stamp_out(A, 2, 4, 20, 36)
    A.label("K3_END")
    A("s_endpgm")
    return name, 256, 102400

def gen_k4(A):
    name = "k4_kernel"
    kernel_head(A, name)
    A("s_cmp_ge_u32 s2, 256\ns_cbranch_scc1 K4_END")
    stamp_init(A, 3)
    A("s_load_dwordx4 s[4:7], s[0:1], 56")
    A("s_load_dwordx2 s[28:29], s[0:1], 72")
    A("s_load_dwordx2 s[34:35], s[0:1], 88")
    A("s_and_b32 s43, s2, 7\ns_lshr_b32 s44, s2, 3\ns_lshl_b32 s40, s43, 2\ns_lshr_b32 s42, s44, 3\ns_add_u32 s40, s40, s42\ns_and_b32 s41, s44, 7")
    A("v_lshrrev_b32 v1, 6, v0\nv_and_b32 v0, 63, v0\nv_readfirstlane_b32 s36, v1")
    A("s_and_b32 s37, s36, 1\ns_lshr_b32 s38, s36, 1")
    VL16, VW0, VW1, TA0, TA1, VO, VB2 = 4, 5, 6, 8, 9, 10, 11
    A(f"v_lshlrev_b32 v{VL16}, 4, v0")
    A(f"v_lshrrev_b32 v1, 3, v0\nv_and_b32 v2, 7, v0\nv_bfe_u32 v3, v0, 4, 1\nv_lshlrev_b32 v3, 2, v3\nv_xor_b32 v2, v2, v3\nv_lshlrev_b32 v2, 4, v2")
    A(f"v_lshl_add_u32 v{VW0}, v1, 10, v2\nv_add_u32 v{VW1}, {8192-1024}, v{VW0}")
    A(f"s_mul_i32 s46, s40, {2*86*1024}\ns_mul_i32 s52, s36, {22*1024}\ns_add_u32 s46, s46, s52\ns_add_u32 s47, s46, {86*1024}")
    A(f"s_mul_i32 s49, s36, {22*16*1024}\ns_lshl_b32 s52, s41, 7\ns_add_u32 s49, s49, s52\ns_lshl_b32 s50, s36, 14")
    A("s_waitcnt lgkmcnt(0)")
    srd(A, 8, 34, H1_BYTES, add=WS_H1)
    srd(A, 12, 4, 1376*1024)
    srd(A, 16, 6, 1024)
    srd(A, 20, 34, WS_SIZE)
    srd(A, 24, 28, 2097152)
    NR = 8
    D = 5
    AFR = lambda k: 64 + (k % NR) * 8
    def loads(k):
        return [
            f"s_add_u32 m0, s50, {(k % NR)*2048}\ns_add_u32 s56, s49, {k*16384}\nbuffer_load_dwordx4 v{VW0}, s[12:15], s56 offen lds",
            f"buffer_load_dwordx4 v{VW1}, s[12:15], s56 offen offset:1024 lds",
            f"s_add_u32 s54, s46, {k*1024}\nbuffer_load_dwordx4 {v(AFR(k),4)}, v{VL16}, s[8:11], s54 offen",
            f"s_add_u32 s55, s47, {k*1024}\nbuffer_load_dwordx4 {v(AFR(k)+4,4)}, v{VL16}, s[8:11], s55 offen",
        ]
    for k in range(D):
        for o in loads(k): A(o)
    stamp(A, 0)
    A(f"v_and_b32 v1, 31, v0\nv_lshrrev_b32 v2, 5, v0")
    A(f"v_bfe_u32 v3, v0, 2, 2\nv_lshl_add_u32 v15, v2, 2, v3\nv_lshlrev_b32 v{TA0}, 7, v15\nv_lshrrev_b32 v3, 1, v3\nv_lshl_add_u32 v{TA0}, v3, 6, v{TA0}")
    A(f"v_bfe_u32 v3, v0, 4, 1\nv_lshl_add_u32 v{TA0}, v3, 5, v{TA0}\nv_and_b32 v3, 3, v0\nv_lshl_add_u32 v{TA0}, v3, 3, v{TA0}")
    A(f"v_add_u32 v{TA0}, s50, v{TA0}\nv_xor_b32 v{TA1}, 64, v{TA0}")
    A(f"v_lshlrev_b32 v{VO}, 10, v1\nv_lshl_add_u32 v{VO}, v2, 4, v{VO}\nv_lshlrev_b32 v{VB2}, 3, v2")
    A(f"s_lshl_b32 s58, s41, 7\ns_lshl_b32 s52, s38, 6\ns_add_u32 s58, s58, s52")
    A(f"s_lshl_b32 s57, s40, 16\ns_lshl_b32 s52, s37, 15\ns_add_u32 s57, s57, s52\ns_add_u32 s57, s57, s58")
    A(f"s_lshl_b32 s52, s40, 1\ns_add_u32 s52, s52, s37\ns_lshl_b32 s52, s52, 5\ns_lshl_b32 s53, s41, 2\ns_add_u32 s52, s52, s53\ns_lshl_b32 s53, s38, 1\ns_add_u32 s52, s52, s53\ns_lshl_b32 s59, s52, 10\ns_add_u32 s59, s59, {WS_H}")
    ACC = lambda nt, rt: 192 + (2*nt + rt) * 16
    WF = [16, 24]; HR = 32; B2R = 40
    def reads(k):
        for nt in range(2):
            for t in range(2):
                A(f"ds_read_b64_tr_b16 {v(WF[k&1]+4*nt+2*t,2)}, v{TA0+nt} offset:{(k % NR)*2048+t*1024}")
    NK = 22
    extra = [f"buffer_load_dwordx4 {v(HR+4*t,4)}, v{VL16}, s[20:23], s59 offen offset:{t*1024}" for t in range(2)] + \
            [f"buffer_load_dwordx2 {v(B2R+2*q,2)}, v{VB2}, s[16:19], s58 offen offset:{q*16}" for q in range(4)]
    issued = D
    nextra = 0
    def younger(k):
        return 4 * (issued - 1 - k) + nextra
    A(f"s_waitcnt vmcnt({younger(0)})")
    stamp(A, 1)
    reads(0)
    for k in range(NK):
        if k + 1 < NK:
            A(f"s_waitcnt vmcnt({younger(k+1)})")
            reads(k + 1)
        nxt = []
        if issued < NK:
            nxt = loads(issued); issued += 1
        elif nextra == 0:
            nxt = extra; nextra = 6
        A(f"s_waitcnt lgkmcnt({4 if k + 1 < NK else 0})")
        W = WF[k & 1]
        j = 0
        for rt in range(2):
            for nt in range(2):
                mfma(A, ACC(nt, rt), W+4*nt, AFR(k)+4*rt, None if k == 0 else ACC(nt, rt))
                per = (len(nxt) + 3) // 4
                for o in nxt[j*per:(j+1)*per]: A(o)
                j += 1
    stamp(A, 2)
    R = reduce4(A, "K4", 192, 65536, 36, VL16, 96)
    A("s_waitcnt vmcnt(0)")
    for r in range(8):
        A(f"v_lshlrev_b32 v16, 16, v{HR+r}\nv_and_b32 v17, 0xffff0000, v{HR+r}\nv_lshlrev_b32 v18, 16, v{B2R+r}\nv_and_b32 v19, 0xffff0000, v{B2R+r}")
        A(f"v_pk_add_f32 {v(R+2*r,2)}, {v(R+2*r,2)}, v[18:19]")
        A(f"v_pk_add_f32 {v(R+2*r,2)}, {v(R+2*r,2)}, v[16:17]")
        A(f"v_cvt_pk_bf16_f32 v{48+r}, v{R+2*r}, v{R+2*r+1}")
    for p in range(2):
        A(f"v_permlane32_swap_b32 v{48+4*p}, v{50+4*p}\nv_permlane32_swap_b32 v{49+4*p}, v{51+4*p}")
        A(f"buffer_store_dwordx4 {v(48+4*p,4)}, v{VO}, s[24:27], s57 offen offset:{p*32}")
    stamp(A, 3)
    stamp_out(A, 3, 4, 20, 36)
    A.label("K4_END")
    A("s_endpgm")
    return name, 256, 131072

def main(out, stamp_on=False):
    global STAMP
    STAMP = stamp_on
    A = Asm()
    info = []
    for g in (gen_k1, gen_k2, gen_k3, gen_k4):
        info.append(g(A))
    A.pad()
    for n, vg, lds in info:
        kernel_desc(A, n, vg)
    head = open("cdna_kernels/" + NAME + ".s.ref").read().split("; Override")[0]
    for n, vg, lds in info:
        head += f"; @launch kernel={n} grid=(256,1,1) block=(256,1,1) lds={lds}\n"
    head += '.amdgcn_target "amdgcn-amd-amdhsa--gfx950"\n'
    open(out, "w").write(head + A.text())

if __name__ == "__main__":
    main(sys.argv[1], len(sys.argv) > 2 and sys.argv[2] == "stamp")
```

```python
import re, sys
from asmlib import *
def make(src, a, b, fixed_us=None, nk=4):
    out = src
    for k in range(nk):
        lab = f"k{k+1}_kernel:\n"
        i = out.index(lab) + len(lab)
        out = out[:i] + "    s_memrealtime s[62:63]\n" + out[i:]
        j = out.index("s_mov_b32 s23, 0x20000\n", i) + len("s_mov_b32 s23, 0x20000\n")
        code = f"""    s_or_b32 s64, s2, s36
    s_cmp_lg_u32 s64, 0
    s_cbranch_scc1 DG_SK{k}
    s_mov_b32 s64, {(24<<20) + k*128}
    v_mov_b32 v250, s62
    v_mov_b32 v251, 0
    s_mov_b64 exec, 1
    buffer_store_dword v250, v251, s[20:23], s64 offen
    s_mov_b64 exec, -1
DG_SK{k}:
"""
        out = out[:j] + code + out[j:]
    A = Asm()
    kernel_head(A, "spin_kernel")
    A("s_memrealtime s[10:11]")
    A("s_cmp_lg_u32 s2, 0\ns_cbranch_scc1 SP_END")
    A("s_load_dwordx2 s[4:5], s[0:1], 88\ns_waitcnt lgkmcnt(0)")
    A(f"s_add_u32 s4, s4, {24<<20}\ns_addc_u32 s5, s5, 0")
    for k in range(nk):
        A(f"s_load_dword s{20+k}, s[4:5], {k*128}")
    A("s_waitcnt lgkmcnt(0)")
    A(f"s_mov_b32 s{20+nk}, s10")
    if fixed_us is not None:
        A(f"s_add_u32 s12, s20, {fixed_us*100}")
    else:
        A(f"s_sub_u32 s12, s{20+b}, s{20+a}\ns_add_u32 s12, s12, s10")
    A.label("SP_LOOP")
    A("s_memrealtime s[14:15]\ns_waitcnt lgkmcnt(0)\ns_sub_u32 s16, s12, s14\ns_cmp_gt_i32 s16, 0\ns_cbranch_scc0 SP_END")
    A("s_cmp_lt_i32 s16, 20000\ns_cbranch_scc1 SP_LOOP")
    A.label("SP_END")
    A("s_endpgm")
    kernel_desc(A, "spin_kernel", 8, 32)
    L = [l for l in out.split("\n") if l.startswith("; @launch")]
    out = out.replace(L[-1], L[-1] + "\n; @launch kernel=spin_kernel grid=(1,1,1) block=(64,1,1) lds=0")
    return out + A.text()
if __name__ == "__main__":
    src = open(sys.argv[1]).read()
    nk = len([l for l in src.split("\n") if l.startswith("; @launch")])
    open("d_fix.s", "w").write(make(src, 0, 0, 80, nk))
    open("d_0.s", "w").write(make(src, 0, 0, None, nk))
    for i in range(nk):
        open(f"d_{i+1}.s", "w").write(make(src, i, i+1, None, nk))
```

```python
import sys, struct
from asmlib import *

NAME = "sequential_preLN__linear_kernel_hedgehog__dense_activation_gelu__prompt"
KN = NAME + "_kernel"
WS_O = 0
WS_PA = 6 << 20
GST = 640
PSTR = 6*1024
WS_PB = 14 << 20
WS_PC = 4 << 20
WS_REG = (4 << 20) + (528 << 10)
WS_F1 = (4 << 20) + (512 << 10)
WS_FW = WS_F1 + 4096
WS_F2 = WS_FW + 4096
WS_F3 = WS_F2 + 4096
WS_ST = (4 << 20) + (640 << 10)
WS_H = 17 << 20
WS_H1 = 20 << 20
H1_BYTES = 64 * 86 * 1024
WS_STAMP = 16 << 20
WS_SIZE = 32 << 20
LOG2E = 1.4426950408889634
def fbits(x): return "0x%08x" % struct.unpack("<I", struct.pack("<f", x))[0]

class Cfg:
    stamp = 0
    rot = 1
    fast = 1
    pd = 3
    p4D = 12
    p4x = 0
    ost = 32768
    hst = 32768
    h1st = 88064
    diag = 0
    pa_sc1 = 0
    pc_sc1 = 0
    o_sc1 = 1
    h_sc1 = 1
    h1_sc1 = 1
    prepoll1 = 0
    prepoll2 = 1
    prepoll3 = 0
    tl = "wq,wo,fl,pc,pa,pb1,w1"
    pace = "0,0,1,1,1,1,1,1,1"
    tthr = 2
    t2 = ""
    pa_full = 0
    psleep = 0
    wrot = 1
    dthr = 0
CFG = Cfg()

SX_, SW_, SWS, SDBG, ST0, ST1 = 8, 12, 16, 20, 24, 28
PTR = lambda i: 36 + 2*i
sXCD, sJ, sRB, sC8, sRBK, sC16, sW, sRH, sHH, sNONCE = 60, 61, 62, 63, 64, 65, 66, 67, 68, 69
sFAST, sSPIN, sROT = 4, 5, 6
T0, T1, T2, T3, T4, T5, T6, T7 = 70, 71, 72, 73, 74, 75, 76, 77
sMASK = 78
sK1, sK2, sK3 = 32, 33, 34

nstamp = [0]
SREG = lambda i: 82 + 2*i if i < 10 else 44
STAMPSETS = {
 1: ["start","B0","loop","atom","arrv","syncA","hop1","P2end","hop2","P3lp","hop3"],
 2: ["start","B0","B2","B4","loop","E1","smdone","E2","atom","qgemm","arrv"],
 3: ["start","syncA","kvld","ostore","hop1","P2lp","P2red","P2st","P2fl","P2end","hop2"],
 4: ["start","hop2","P3lp","gelu0","gelu1","gelu2","P3fl","hop3","P4lp","P4red","qgemm"],
}
def stamp(A, name):
    if CFG.stamp and name in STAMPSETS[CFG.stamp]:
        i = STAMPSETS[CFG.stamp].index(name); nstamp[0] = 11
        assert i < 11
        b = SREG(i)
        A(f"s_memtime s[{b}:{b+1}]")

def mfma(A, d, x, y, c=None):
    cc = "0" if c is None else v(c, 16)
    A(f"v_mfma_f32_32x32x16_bf16 {v(d,16)}, {v(x,4)}, {v(y,4)}, {cc}")
def m16(A, d, x, y, c=None):
    cc = "0" if c is None else v(c, 4)
    A(f"v_mfma_f32_16x16x32_bf16 {v(d,4)}, {v(x,4)}, {v(y,4)}, {cc}")

def swap_reduce(A, x, y, op):
    A(f"v_permlane32_swap_b32 v{x}, v{y}")
    A(f"{op} v{x}, v{x}, v{y}")
    A(f"v_mov_b32 v{y}, v{x}")
    A(f"v_permlane32_swap_b32 v{x}, v{y}")

def softmax_tile(A, P, out, tm):
    M = tm
    A(f"v_max3_f32 v{M}, v{P}, v{P+1}, v{P+2}")
    A(f"v_max3_f32 v{M+1}, v{P+8}, v{P+9}, v{P+10}")
    A(f"v_max3_f32 v{M}, v{M}, v{P+3}, v{P+4}")
    A(f"v_max3_f32 v{M+1}, v{M+1}, v{P+11}, v{P+12}")
    A(f"v_max3_f32 v{M}, v{M}, v{P+5}, v{P+6}")
    A(f"v_max3_f32 v{M+1}, v{M+1}, v{P+13}, v{P+14}")
    A(f"v_max_f32 v{M}, v{M}, v{P+7}")
    A(f"v_max_f32 v{M+1}, v{M+1}, v{P+15}")
    swap_reduce(A, M, M+1, "v_max_f32")
    for i in range(0, 8, 2):
        A(f"v_pk_add_f32 {v(P+i,2)}, {v(P+i,2)}, {v(M,2)} op_sel_hi:[1,0] neg_lo:[0,1] neg_hi:[0,1]")
    for i in range(8, 16, 2):
        A(f"v_pk_add_f32 {v(P+i,2)}, {v(P+i,2)}, {v(M,2)} op_sel:[0,1] op_sel_hi:[1,1] neg_lo:[0,1] neg_hi:[0,1]")
    for i in range(16):
        A(f"v_exp_f32 v{P+i}, v{P+i}")
    T = tm + 2
    for g in range(2):
        b = P + 8*g
        A(f"v_pk_add_f32 {v(T,2)}, {v(b,2)}, {v(b+2,2)}")
        A(f"v_pk_add_f32 {v(T+2,2)}, {v(b+4,2)}, {v(b+6,2)}")
        A(f"v_pk_add_f32 {v(T,2)}, {v(T,2)}, {v(T+2,2)}")
        A(f"v_add_f32 v{M+g}, v{T}, v{T+1}")
    swap_reduce(A, M, M+1, "v_add_f32")
    A(f"v_rcp_f32 v{M}, v{M}")
    A(f"v_rcp_f32 v{M+1}, v{M+1}")
    for i in range(0, 8, 2):
        A(f"v_pk_mul_f32 {v(P+i,2)}, {v(P+i,2)}, {v(M,2)} op_sel_hi:[1,0]")
    for i in range(8, 16, 2):
        A(f"v_pk_mul_f32 {v(P+i,2)}, {v(P+i,2)}, {v(M,2)} op_sel:[0,1] op_sel_hi:[1,1]")
    for i in range(8):
        A(f"v_cvt_pk_bf16_f32 v{out+i}, v{P+2*i}, v{P+2*i+1}")

_uid = [0]
def uid(p):
    _uid[0] += 1
    return f"{p}{_uid[0]}"

def hstore(A, ins, force=0):
    if not CFG.fast or force:
        for s_ in ins: A(s_ + " sc1")
        return
    l1, l2 = uid("HS"), uid("HE")
    A(f"s_cmp_eq_u32 s{sFAST}, 1\ns_cbranch_scc1 {l1}")
    for s_ in ins: A(s_ + " sc1")
    A(f"s_branch {l2}")
    A.label(l1)
    for s_ in ins: A(s_)
    A.label(l2)

def flag_store(A, vtmp, soff):
    A(f"v_mov_b32 v{vtmp}, s{sNONCE}\nv_mov_b32 v{vtmp+1}, 0\ns_mov_b64 exec, 1")
    hstore(A, [f"buffer_store_dword v{vtmp}, v{vtmp+1}, {s(SWS,4)}, s{soff} offen"])
    A("s_mov_b64 exec, -1")

def poll(A, vdst, vaddr, soff, want, mask):
    l, le = uid("PL"), uid("PE")
    A.label(l)
    A(f"buffer_load_dword v{vdst}, v{vaddr}, {s(SWS,4)}, {soff} offen sc1")
    A(f"s_sub_u32 s{sSPIN}, s{sSPIN}, 1\ns_cmp_lt_i32 s{sSPIN}, 0\ns_cbranch_scc1 {le}")
    A("s_waitcnt vmcnt(0)")
    A(f"v_cmp_ne_u32 vcc, {want}, v{vdst}")
    A(f"s_and_b64 vcc, vcc, {mask}")
    A(f"s_cbranch_scc1 {l}")
    A.label(le)

XL, RING, RL = 0, 65536, 131072

def stamp_out(A, wadd):
    if not CFG.stamp: return
    A("s_mov_b64 exec, -1\ns_waitcnt vmcnt(0)")
    A(f"s_memtime s[{T0}:{T1}]\ns_memrealtime s[{T2}:{T3}]\ns_waitcnt lgkmcnt(0)")
    A(f"v_mov_b32 v0, s80\nv_mov_b32 v1, s{T2}\nv_mov_b32 v2, s{sFAST}\ns_sub_u32 s{T0}, s{T0}, s82\nv_mov_b32 v3, s{T0}")
    for i in range(1, 11):
        A(f"s_sub_u32 s{T0}, s{SREG(i)}, s82\nv_mov_b32 v{3+i}, s{T0}")
    A(f"s_getreg_b32 s{T0}, hwreg(HW_REG_XCC_ID)\nv_mov_b32 v14, s{T0}\nv_mov_b32 v15, s{sSPIN}")
    A(f"s_lshl_b32 s{T0}, s2, 3\ns_add_u32 s{T0}, s{T0}, s{sW}\ns_add_u32 s{T0}, s{T0}, {wadd}\ns_lshl_b32 s{T0}, s{T0}, 6\ns_add_u32 s{T0}, s{T0}, {WS_STAMP}")
    A("v_mov_b32 v16, 0\ns_mov_b64 exec, 1")
    for i in range(4):
        A(f"buffer_store_dwordx4 {v(4*i,4)}, v16, {s(SWS,4)}, s{T0} offen offset:{16*i}")

HSET = ["start", "h1", "h2", "h3", "h4", "h5", "h6", "h7", "h8", "h9", "h10"]
def hstamp(A, i):
    if CFG.stamp:
        b = SREG(i)
        A(f"s_memtime s[{b}:{b+1}]")

def gen(A):
    kernel_head(A, KN)
    A("s_cmp_ge_u32 s2, 256\ns_cbranch_scc1 L_END")
    if CFG.stamp:
        A("s_memrealtime s[80:81]")
    stamp(A, "start")
    A("s_load_dwordx16 s[36:51], s[0:1], 0")
    A("s_load_dwordx8 s[52:59], s[0:1], 64")
    A(f"s_and_b32 s{sXCD}, s2, 7\ns_lshr_b32 s{sJ}, s2, 3")
    A(f"s_lshl_b32 s{sRB}, s{sXCD}, 2\ns_lshr_b32 s{T0}, s{sJ}, 3\ns_add_u32 s{sRB}, s{sRB}, s{T0}\ns_and_b32 s{sC8}, s{sJ}, 7")
    A(f"s_lshr_b32 s{sRBK}, s{sRB}, 1\ns_and_b32 s{sC16}, s{sJ}, 15")
    if CFG.rot:
        A(f"s_lshl_b32 s{T0}, s{T0}, 1\ns_add_u32 s{sROT}, s{T0}, s{sC8}\ns_add_u32 s{sROT}, s{sROT}, s{sXCD}\ns_and_b32 s{sROT}, s{sROT}, 7")
    else:
        A(f"s_mov_b32 s{sROT}, 0")
    A(f"v_lshrrev_b32 v1, 6, v0\nv_and_b32 v0, 63, v0\nv_readfirstlane_b32 s{sW}, v1")
    A(f"s_mov_b32 s{sSPIN}, 0x80000")
    A(f"v_lshlrev_b32 v4, 4, v0")
    A(f"s_cmp_ge_u32 s{sW}, 4\ns_cbranch_scc1 L_HELPER")
    compute(A)
    A.label("L_HELPER")
    helper(A)
    A.label("L_END")
    A("s_endpgm")

VL16 = 4

def common_srds(A):
    A("s_waitcnt lgkmcnt(0)")
    srd(A, SX_, PTR(0), 2097152)
    srd(A, SWS, PTR(11), WS_SIZE)
    srd(A, SDBG, PTR(10), 256)

def wide_pattern(A, dst, stride, t1=1, t2=2, t3=3):
    A(f"v_lshrrev_b32 v{t1}, 3, v0\nv_and_b32 v{t2}, 7, v0\nv_bfe_u32 v{t3}, v0, 4, 1\nv_lshlrev_b32 v{t3}, 2, v{t3}\nv_xor_b32 v{t2}, v{t2}, v{t3}\nv_lshlrev_b32 v{t2}, 4, v{t2}")
    A(f"v_mul_u32_u24 v{t1}, {stride}, v{t1}\nv_add_u32 v{dst}, v{t1}, v{t2}")


GMASK = "0x1ffff"
QW = [156672 + 320, 162816 + 64]
VERD = 3072

C_QW, C_E1, C_QT, C_E2, C_NON, C_WQ = 0, 4, 8, 12, 16, 24
def ctl_setup(A, vadr, vone, t):
    A(f"v_mov_b32 v{vone}, 1\nv_mov_b32 v{vadr}, {QW[0]}\nv_mov_b32 v{t}, {QW[1]}\nv_cmp_eq_u32 vcc, 0, v0\nv_cndmask_b32 v{vadr}, v{t}, v{vadr}, vcc")
def ctl_add(A, vadr, vone, off, restore="-1"):
    A(f"s_mov_b64 exec, 3\nds_add_u32 v{vadr}, v{vone} offset:{off}\ns_mov_b64 exec, {restore}")
def ctl_wait(A, vadr, vt, off, thr, sleep=0):
    l, le = uid("CW"), uid("CE")
    A.label(l)
    A(f"ds_read_b32 v{vt}, v{vadr} offset:{off}\ns_sub_u32 s{sSPIN}, s{sSPIN}, 1\ns_cmp_lt_i32 s{sSPIN}, 0\ns_cbranch_scc1 {le}")
    A(f"s_waitcnt lgkmcnt(0)\nv_readfirstlane_b32 s{T0}, v{vt}\ns_cmp_lt_u32 s{T0}, {thr}")
    if sleep:
        A(f"s_cbranch_scc0 {le}\ns_sleep {sleep}\ns_branch {l}")
    else:
        A(f"s_cbranch_scc1 {l}")
    A.label(le)

def set_gexec(A):
    A(f"s_mov_b32 exec_lo, {GMASK}\ns_mov_b32 exec_hi, {GMASK}")

def slot_addr(A, dst, t):
    A(f"v_and_b32 v{t}, 31, v0\nv_min_u32 v{t}, 16, v{t}\nv_lshrrev_b32 v{dst}, 5, v0\nv_mul_u32_u24 v{dst}, 17, v{dst}\nv_add_lshl_u32 v{dst}, v{dst}, v{t}, 4")

def gval(G, r):
    return G + 4*(r // 3) + (r % 3)

def pair_gather(A, G, tmp, vaddr, shl):
    A(f"v_and_b32 v{vaddr}, 31, v0\nv_min_u32 v{vaddr}, 16, v{vaddr}\ns_and_b32 s{T0}, s{shl}, 1\ns_lshl_b32 s{T1}, s{T0}, 4")
    A(f"v_add_u32 v{vaddr}, s{T1}, v{vaddr}\nv_and_b32 v{vaddr}, 31, v{vaddr}\nv_and_b32 v{tmp}, 32, v0\nv_or_b32 v{vaddr}, v{vaddr}, v{tmp}")
    A(f"s_lshr_b32 s{T1}, s{shl}, 1\ns_lshl_b32 s{T1}, s{T1}, 14\ns_lshl_b32 s{T0}, s{T0}, 12\ns_add_u32 s{T1}, s{T1}, s{T0}\ns_add_u32 s{T1}, s{T1}, {RL}")
    A(f"v_lshl_add_u32 v{vaddr}, v{vaddr}, 4, s{T1}")

def pair_gather2(A, G, tmp, vaddr):
    for q in range(4):
        A(f"ds_read_b128 {v(tmp+4*q,4)}, v{vaddr} offset:{q*1024}")
        A(f"ds_read_b128 {v(tmp+16+4*q,4)}, v{vaddr} offset:{8192+q*1024}")
    for q in range(4):
        A(f"s_waitcnt lgkmcnt({6-2*q})")
        for e in range(4):
            A(f"v_add_f32 v{gval(G,4*q+e)}, v{tmp+4*q+e}, v{tmp+16+4*q+e}")

def set_tags(A, G, n):
    for g in range(n):
        A(f"v_mov_b32 v{G+4*g+3}, s{sNONCE}")

def tagged_poll(A, loads, regs, sleep=0):
    l, le = uid("TP"), uid("TE")
    A.label(l)
    for o in loads: A(o)
    A(f"s_sub_u32 s{sSPIN}, s{sSPIN}, 1\ns_cmp_lt_i32 s{sSPIN}, 0\ns_cbranch_scc1 {le}")
    n = len(regs)
    acc = regs[0]
    A(f"s_waitcnt vmcnt(0)")
    t = TPT
    A(f"v_xor_b32 v{t}, s{sNONCE}, v{regs[0]}")
    for i in range(1, n):
        A(f"v_xor_b32 v{t+1}, s{sNONCE}, v{regs[i]}\nv_or_b32 v{t}, v{t}, v{t+1}")
    A(f"v_cmp_ne_u32 vcc, 0, v{t}")
    if sleep:
        A(f"s_cbranch_vccz {le}\ns_sleep {sleep}\ns_branch {l}")
    else:
        A(f"s_cbranch_vccnz {l}")
    A.label(le)
    A("s_waitcnt vmcnt(0)")
TPT = 62

def helper(A):
    sI = sW
    A(f"s_sub_u32 s{sI}, s{sW}, 4")
    A(f"s_cmp_eq_u32 s{sI}, 2\ns_cbranch_scc1 L_TOUCH\ns_cmp_eq_u32 s{sI}, 3\ns_cbranch_scc1 L_REG")
    VX0, VX1, VW, VW1, VW2 = 5, 6, 7, 8, 9
    A(f"v_lshrrev_b32 v1, 3, v0\nv_and_b32 v2, 7, v0\nv_lshrrev_b32 v3, 4, v0")
    A(f"v_xor_b32 v{VX0}, v2, v3\nv_lshlrev_b32 v{VX0}, 4, v{VX0}\nv_lshl_add_u32 v{VX0}, v1, 10, v{VX0}")
    A(f"v_xor_b32 v{VX1}, 64, v{VX0}\nv_add_u32 v{VX1}, {8192-1024}, v{VX1}")
    wide_pattern(A, VW, 3072)
    A(f"v_add_u32 v{VW1}, {24576-2048}, v{VW}\nv_add_u32 v{VW2}, {24576-1024}, v{VW}")
    sXO, sWO, sXL, sRL = T4, T5, T6, T7
    A(f"s_lshl_b32 s{sXO}, s{sRB}, 16\ns_lshl_b32 s{T0}, s{sI}, 15\ns_add_u32 s{sXO}, s{sXO}, s{T0}")
    A(f"s_lshl_b32 s{sWO}, s{sC8}, 7\ns_mul_i32 s{T0}, s{sI}, {32*3072}\ns_add_u32 s{sWO}, s{sWO}, s{T0}")
    A(f"s_lshl_b32 s{sXL}, s{sI}, 12\ns_lshl_b32 s{sRL}, s{sI}, 13\ns_add_u32 s{sRL}, s{sRL}, {RING}")
    A("s_waitcnt lgkmcnt(0)")
    hstamp(A, 1)
    srd(A, SX_, PTR(0), 2097152)
    srd(A, SW_, PTR(1), 1572864)
    def issue(sq):
        if sq < 8:
            A(f"s_add_u32 s{T0}, s{sROT}, {sq}\ns_and_b32 s{T0}, s{T0}, 7")
            A(f"s_lshl_b32 s{T1}, s{T0}, 7\ns_add_u32 s{T1}, s{T1}, s{sXO}")
            A(f"s_mul_i32 s{T2}, s{T0}, {64*3072}\ns_add_u32 s{T2}, s{T2}, s{sWO}\ns_add_u32 s{T2}, s{T2}, 1024")
            for g in range(2):
                A(f"s_add_u32 m0, s{sXL}, {XL + sq*8192 + g*2048}")
                if g: A(f"s_add_u32 s{T1}, s{T1}, 16384")
                A(f"buffer_load_dwordx4 v{VX0}, {s(SX_,4)}, s{T1} offen lds")
                A(f"buffer_load_dwordx4 v{VX1}, {s(SX_,4)}, s{T1} offen offset:1024 lds")
                A(f"s_add_u32 m0, s{sRL}, {(sq & 3)*16384 + g*4096}")
                if g: A(f"s_add_u32 s{T2}, s{T2}, {16*3072}")
                A(f"buffer_load_dwordx4 v{VW}, {s(SW_,4)}, s{T2} offen lds")
                A(f"buffer_load_dwordx4 v{VW}, {s(SW_,4)}, s{T2} offen offset:1024 lds")
                A(f"buffer_load_dwordx4 v{VW1}, {s(SW_,4)}, s{T2} offen offset:2048 lds")
                A(f"buffer_load_dwordx4 v{VW1}, {s(SW_,4)}, s{T2} offen offset:3072 lds")
        else:
            p = sq - 8
            for sh in range(2):
                A(f"s_add_u32 s{T0}, s{sROT}, {2*p+sh}\ns_and_b32 s{T0}, s{T0}, 7")
                A(f"s_mul_i32 s{T2}, s{T0}, {64*3072}\ns_add_u32 s{T2}, s{T2}, s{sWO}")
                for g in range(2):
                    A(f"s_add_u32 m0, s{sXL}, {RING + p*16384 + sh*8192 + g*2048}")
                    if g: A(f"s_add_u32 s{T2}, s{T2}, {16*3072}")
                    A(f"buffer_load_dwordx4 v{VW}, {s(SW_,4)}, s{T2} offen lds")
                    A(f"buffer_load_dwordx4 v{VW2}, {s(SW_,4)}, s{T2} offen offset:1024 lds")
    issue(0)
    hstamp(A, 2)
    srd(A, ST0, PTR(2), 16384)
    A(f"s_lshl_b32 s{T0}, s{sC8}, 11\ns_lshl_b32 s{T1}, s{sI}, 10\ns_add_u32 s{T0}, s{T0}, s{T1}")
    A(f"s_lshl_b32 s{T1}, s{sI}, 14\ns_add_u32 m0, s{T1}, {RL}")
    A(f"buffer_load_dwordx4 v{VL16}, {s(ST0,4)}, s{T0} offen lds")
    A(f"s_add_u32 m0, s{T1}, {RL+8192}")
    A(f"buffer_load_dwordx4 v{VL16}, {s(ST0,4)}, s{T0} offen lds")
    A(f"v_mov_b32 v20, 1\nv_mov_b32 v21, {RL+4096}\ns_mov_b64 exec, 1\nds_add_u32 v21, v20\ns_mov_b64 exec, -1") if False else None
    issue(1)
    hstamp(A, 3)
    size = lambda sq: 12 if sq < 8 else 8
    PD = CFG.pd
    for sq in range(2, PD): issue(sq)
    for c in range(8):
        A(f"s_waitcnt vmcnt({sum(size(c+i) for i in range(1, PD))})")
        if c == 0: hstamp(A, 4)
        A("s_barrier")
        issue(c + PD)
    if PD == 2: issue(10)
    A(f"s_mov_b32 s{T0}, {QW[0]}\ns_cmp_eq_u32 s{sI}, 1\ns_cselect_b32 s{T0}, {QW[1]}, s{T0}\nv_mov_b32 v25, s{T0}\nv_mov_b32 v21, 0")
    ctl_setup(A, 11, 10, 12)
    ctl_wait(A, 25, 26, C_E1, 5, 1)
    issue(11)
    VO0, VO1, VB = 16, 17, 18
    wide_pattern(A, VO0, 1024)
    A(f"v_add_u32 v{VO1}, {8192-1024}, v{VO0}")
    for i in range(3):
        A(f"v_add_u32 v1, {64*i}, v0\nv_mul_u32_u24 v2, 43691, v1\nv_lshrrev_b32 v2, 19, v2\nv_mul_u32_u24 v3, 12, v2\nv_sub_u32 v1, v1, v3")
        A(f"v_mul_u32_u24 v2, 2752, v2\nv_lshl_add_u32 v{VB+i}, v1, 4, v2")
        if i: A(f"v_subrev_u32 v{VB+i}, {1024*i}, v{VB+i}")
    srd(A, SWS, PTR(11), WS_SIZE)
    srd(A, ST0, PTR(3), 524288)
    srd(A, ST1, PTR(5), 512*2752)
    A(f"ds_read_b32 v14, v25 offset:{C_NON}")
    A("s_waitcnt vmcnt(0)")
    ctl_add(A, 11, 10, C_WQ)
    hstamp(A, 5)
    ctl_wait(A, 25, 26, C_QW, 6, 2)
    A(f"v_readfirstlane_b32 s{sNONCE}, v14")
    hstamp(A, 9)
    thr = CFG.dthr
    def throttle():
        if thr: A(f"s_waitcnt vmcnt({thr})")
    A(f"s_lshl_b32 s{T4}, s{sI}, 18\ns_lshl_b32 s{T0}, s{sC8}, 7\ns_add_u32 s{T4}, s{T4}, s{T0}\ns_lshl_b32 s{T5}, s{sI}, 15")
    A(f"s_and_b32 s{T6}, s{sRB}, 3\ns_lshl_b32 s{T6}, s{T6}, 2" if CFG.wrot else f"s_mov_b32 s{T6}, 0")
    for k in range(16):
        A(f"s_lshl_b32 s{T1}, s{T6}, 11\ns_add_u32 m0, s{T5}, s{T1}\ns_lshl_b32 s{T1}, s{T6}, 14\ns_add_u32 s{T0}, s{T4}, s{T1}")
        A(f"buffer_load_dwordx4 v{VO0}, {s(ST0,4)}, s{T0} offen lds")
        A(f"buffer_load_dwordx4 v{VO1}, {s(ST0,4)}, s{T0} offen offset:1024 lds")
        A(f"s_add_u32 s{T6}, s{T6}, 1\ns_and_b32 s{T6}, s{T6}, 15")
        throttle()
    A(f"s_mul_i32 s{T4}, s{sI}, {32*2752}\ns_mul_i32 s{T0}, s{sC16}, 192\ns_add_u32 s{T4}, s{T4}, s{T0}\ns_mul_i32 s{T5}, s{sI}, 6144\ns_add_u32 s{T5}, s{T5}, 65536")
    A(f"s_lshr_b32 s{T6}, s{sJ}, 4\ns_mul_i32 s{T6}, s{T6}, 3" if CFG.wrot else f"s_mov_b32 s{T6}, 0")
    def w1(last=False):
        if last: A(f"s_mov_b32 s{T6}, 7")
        A(f"s_mul_i32 s{T1}, s{T6}, 12288\ns_add_u32 s{T1}, s{T1}, s{T5}\ns_mul_i32 s{T0}, s{T6}, {64*2752}\ns_add_u32 s{T0}, s{T0}, s{T4}")
        for g in range(2):
            A(f"s_add_u32 m0, s{T1}, {g*3072}")
            if g: A(f"s_add_u32 s{T0}, s{T0}, {16*2752}")
            for i in range(3):
                off = f" offset:{i*1024}" if i else ""
                A(f"buffer_load_dwordx4 v{VB+i}, {s(ST1,4)}, s{T0} offen{off} lds")
            throttle()
        A(f"s_add_u32 s{T6}, s{T6}, 1\ns_cmp_eq_u32 s{T6}, 7\ns_cselect_b32 s{T6}, 0, s{T6}")
    w1(); w1()
    A(f"s_waitcnt vmcnt(12)")
    A(f"s_lshl_b32 s{T1}, s2, 4\ns_lshl_b32 s{T2}, s{sI}, 3\ns_add_u32 s{T1}, s{T1}, s{T2}\ns_add_u32 s{T1}, s{T1}, {WS_FW}")
    A(f"v_mov_b32 v22, s{sNONCE}\nv_mov_b32 v23, s{sNONCE}\ns_mov_b64 exec, 1")
    A(f"buffer_store_dwordx2 v[22:23], v21, {s(SWS,4)}, s{T1} offen")
    A("s_mov_b64 exec, -1")
    hstamp(A, 10)
    for c in range(2, 7): w1()
    w1(True)
    A("s_waitcnt vmcnt(0)")
    A("s_branch L_HEND")

    A.label("L_TOUCH")
    VT, VA = 5, 6
    A(f"v_lshlrev_b32 v{VT}, 7, v0")
    A("s_waitcnt lgkmcnt(0)")
    srd(A, SWS, PTR(11), WS_SIZE)
    class Rec:
        def __init__(s_): s_.groups = [[]]
        def __call__(s_, t): s_.groups[-1].append(t)
    Aout = A
    A = Rec()
    def touch(sr, soff, nlines, va=VT, step=8192):
        k = 0
        while nlines > 0:
            n = min(64, nlines)
            if n < 64: A(f"s_mov_b64 exec, {hex((1 << n) - 1) if n <= 32 else -1}")
            if 32 < n < 64: A(f"s_mov_b32 exec_hi, {hex((1 << (n-32)) - 1)}")
            A(f"s_add_u32 s{T3}, s{soff}, {k*step}")
            A(f"buffer_load_dword v250, v{va}, {s(sr,4)}, s{T3} offen")
            if n < 64: A("s_mov_b64 exec, -1")
            if n > 16: A.groups.append([])
            nlines -= n; k += 1
    def do(what):
        if what == "p1":
            srd(A, ST0, PTR(0), 2097152); srd(A, ST1, PTR(1), 1572864)
            A(f"v_lshrrev_b32 v1, 5, v0\nv_mul_u32_u24 v1, {64*3072}, v1\nv_bfe_u32 v2, v0, 4, 1\nv_mul_u32_u24 v2, 3072, v2\nv_and_b32 v3, 15, v0\nv_lshlrev_b32 v3, 7, v3\nv_add3_u32 v{VA}, v1, v2, v3")
            A(f"s_mul_i32 s{T0}, s{sJ}, 6144\ns_add_u32 s{T0}, s{T0}, {128*3072 + 1024}")
            touch(ST1, T0, 64, VA)
            A(f"v_mul_u32_u24 v1, 43, v0\nv_lshrrev_b32 v1, 8, v1\nv_mul_u32_u24 v2, 6, v1\nv_sub_u32 v2, v0, v2\nv_lshlrev_b32 v2, 7, v2\nv_lshl_add_u32 v7, v1, 10, v2")
            A(f"s_lshl_b32 s{T1}, s{sXCD}, 18\ns_lshl_b32 s{T2}, s{sJ}, 13\ns_add_u32 s{T1}, s{T1}, s{T2}\ns_add_u32 s{T1}, s{T1}, 256")
            touch(ST0, T1, 48, 7)
            A(f"s_add_u32 s{T0}, s{T0}, {128*3072}")
            touch(ST1, T0, 128, VA, 128*3072)
        elif what == "wq":
            srd(A, ST1, PTR(1), 1572864)
            A(f"v_lshrrev_b32 v1, 3, v0\nv_mul_u32_u24 v1, 3072, v1\nv_and_b32 v2, 7, v0\nv_lshl_add_u32 v{VA}, v2, 7, v1")
            A(f"s_mul_i32 s{T0}, s{sJ}, {16*3072}")
            touch(ST1, T0, 128, VA, 8*3072)
        elif what == "wo":
            srd(A, ST0, PTR(3), 524288)
            A(f"s_lshl_b32 s{T0}, s{sJ}, 14"); touch(ST0, T0, 128)
        elif what in ("w1", "w1a", "w1b"):
            srd(A, ST1, PTR(5), 512*2752)
            A(f"s_mul_i32 s{T0}, s{sJ}, 44032")
            if what == "w1b": A(f"s_add_u32 s{T0}, s{T0}, {192*128}")
            touch(ST1, T0, {"w1": 344, "w1a": 192, "w1b": 152}[what])
        elif what == "w2":
            srd(A, ST1, PTR(7), 1376*1024)
            A(f"s_mul_i32 s{T0}, s{sJ}, 44032"); touch(ST1, T0, 344)
        elif what == "fl":
            A(f"s_lshl_b32 s{T0}, s{sRBK}, 8\ns_add_u32 s{T0}, s{T0}, {WS_F1}\nv_and_b32 v1, 1, v0\nv_lshlrev_b32 v1, 7, v1\nv_lshrrev_b32 v2, 1, v0\nv_lshl_add_u32 v{VA}, v2, 12, v1")
            touch(SWS, T0, 8, VA)
            A(f"s_lshl_b32 s{T0}, s2, 4\ns_add_u32 s{T0}, s{T0}, {WS_FW}"); touch(SWS, T0, 1)
        elif what in ("pa", "pal", "pa1"):
            A(f"s_lshl_b32 s{T0}, s{sXCD}, 3\ns_add_u32 s{T0}, s{T0}, s{sC8}\ns_lshl_b32 s{T0}, s{T0}, 2\ns_and_b32 s{T2}, s{sRB}, 3\ns_add_u32 s{T0}, s{T0}, s{T2}\ns_mul_i32 s{T0}, s{T0}, {4*PSTR}\ns_add_u32 s{T0}, s{T0}, {WS_PA}")
            if what == "pa":
                A(f"v_lshrrev_b32 v1, 5, v0\nv_mul_u32_u24 v1, {PSTR}, v1\nv_and_b32 v2, 31, v0\nv_min_u32 v2, 29, v2\nv_lshl_add_u32 v{VA}, v2, 7, v1")
                touch(SWS, T0, 128, VA, 2*PSTR)
            elif what == "pa1":
                A(f"v_mul_u32_u24 v{VA}, {PSTR}, v0\ns_add_u32 s{T0}, s{T0}, {5*1024}")
                touch(SWS, T0, 4, VA)
            else:
                A(f"v_lshrrev_b32 v1, 3, v0\nv_mul_u32_u24 v1, {PSTR}, v1\nv_and_b32 v2, 7, v0\nv_min_u32 v2, 4, v2\nv_lshl_add_u32 v{VA}, v2, 7, v1\ns_add_u32 s{T0}, s{T0}, {5*GST}")
                touch(SWS, T0, 32, VA)
        elif what == "pc":
            A(f"s_lshl_b32 s{T0}, s{sXCD}, 5\ns_lshl_b32 s{T1}, s{sC8}, 2\ns_add_u32 s{T0}, s{T0}, s{T1}\ns_and_b32 s{T2}, s{sRB}, 3\ns_add_u32 s{T0}, s{T0}, s{T2}\ns_lshl_b32 s{T0}, s{T0}, 11\ns_add_u32 s{T0}, s{T0}, {WS_PC}")
            touch(SWS, T0, 15)
        elif what == "pb1":
            A(f"s_lshl_b32 s{T0}, s{sC8}, 2\ns_and_b32 s{T2}, s{sRB}, 3\ns_add_u32 s{T0}, s{T0}, s{T2}\ns_lshl_b32 s{T0}, s{T0}, 3\ns_add_u32 s{T0}, s{T0}, s{sXCD}\ns_mul_i32 s{T0}, s{T0}, {PSTR}\ns_add_u32 s{T0}, s{T0}, {WS_PB + 5*1024}")
            touch(SWS, T0, 1)
        elif what in ("o", "h", "h1"):
            st = {"o": CFG.ost, "h": CFG.hst, "h1": CFG.h1st}[what]
            base = {"o": WS_O, "h": WS_H, "h1": WS_H1}[what]
            A(f"s_mul_i32 s{T0}, s{sXCD}, {8*st}\ns_mul_i32 s{T1}, s{sJ}, {st//4}\ns_add_u32 s{T0}, s{T0}, s{T1}\ns_add_u32 s{T0}, s{T0}, {base}")
            touch(SWS, T0, st // 512)
        elif what == "st":
            A(f"s_lshl_b32 s{T0}, s{sXCD}, 15\ns_lshl_b32 s{T1}, s{sJ}, 10\ns_add_u32 s{T0}, s{T0}, s{T1}\ns_add_u32 s{T0}, s{T0}, {WS_ST}")
            touch(SWS, T0, 8)
        elif what == "wait":
            A("s_waitcnt vmcnt(0)")
        elif what.startswith("nop"):
            for _ in range(int(what[3:])): A("s_nop 15")
        else:
            raise ValueError(what)
    for w_ in CFG.tl.split(","):
        if w_: do(w_)
    g1 = [g for g in A.groups if g]
    A.groups = [[]]
    for w_ in CFG.t2.split(","):
        if w_: do(w_)
    g2 = [g for g in A.groups if g]
    A = Aout
    pace = [int(x) for x in CFG.pace.split(",")]
    def emit(n):
        for _ in range(n):
            if g1:
                for t in g1.pop(0): A(t)
    emit(pace[0])
    ctl_setup(A, 11, 10, 12)
    for c in range(8):
        A("s_barrier")
        emit(pace[c+1])
    while g1:
        if CFG.tthr: A(f"s_waitcnt vmcnt({CFG.tthr})")
        emit(1)
    hstamp(A, 5)
    if g2: ctl_wait(A, 11, 26, C_QT, 3, 2)
    ctl_add(A, 11, 10, C_QW)
    for g in g2:
        if CFG.tthr: A(f"s_waitcnt vmcnt({CFG.tthr})")
        for t in g: A(t)
    A("s_waitcnt vmcnt(0)")
    A("s_branch L_HEND")

    A.label("L_REG")
    ctl_setup(A, 11, 10, 12)
    A("v_mov_b32 v12, 0\nv_mov_b32 v13, 0\nv_mov_b32 v14, 0\nv_mov_b32 v15, 0\ns_mov_b64 exec, 3\nds_write_b128 v11, v[12:15]\nds_write_b128 v11, v[12:15] offset:16\ns_mov_b64 exec, -1")
    A("s_waitcnt lgkmcnt(0)")
    srd(A, SWS, PTR(11), WS_SIZE)
    srd(A, SDBG, PTR(10), 256)
    A("v_mov_b32 v21, 0")
    A(f"s_cmp_lg_u32 s2, 0\ns_cbranch_scc1 S_NONONCE")
    A(f"s_memrealtime s[{T2}:{T3}]\ns_waitcnt lgkmcnt(0)\ns_lshl_b32 s{T2}, s{T2}, 4\ns_or_b32 s{T2}, s{T2}, 8\nv_mov_b32 v22, s{T2}\ns_mov_b64 exec, 1")
    A(f"buffer_store_dword v22, v21, {s(SDBG,4)}, 0 offen sc0 sc1\ns_mov_b64 exec, -1")
    A.label("S_NONONCE")
    sXCC, sRBL = T6, T7
    A(f"s_getreg_b32 s{sXCC}, hwreg(HW_REG_XCC_ID)\ns_and_b32 s{sXCC}, s{sXCC}, 7\ns_and_b32 s{sRBL}, s{sRB}, 3")
    A("s_barrier")
    A(f"buffer_load_dword v24, v21, {s(SDBG,4)}, 0 offen sc1")
    A("s_barrier\ns_barrier")
    A.label("S_NP")
    A(f"s_waitcnt vmcnt(0)\nv_readfirstlane_b32 s{sNONCE}, v24\ns_cmp_lg_u32 s{sNONCE}, 0\ns_cbranch_scc1 S_NOK")
    A(f"buffer_load_dword v24, v21, {s(SDBG,4)}, 0 offen sc1\ns_sub_u32 s{sSPIN}, s{sSPIN}, 1\ns_cmp_lt_i32 s{sSPIN}, 0\ns_cbranch_scc0 S_NP")
    A.label("S_NOK")
    A(f"s_or_b32 s{T5}, s{sNONCE}, s{sXCC}\nv_mov_b32 v22, s{T5}\ns_lshl_b32 s{T4}, s{sXCD}, 7\ns_add_u32 s{T4}, s{T4}, {WS_REG}\ns_lshl_b32 s{T0}, s{sJ}, 2\ns_add_u32 s{T0}, s{T0}, s{T4}\ns_mov_b64 exec, 1")
    A(f"buffer_store_dword v22, v21, {s(SWS,4)}, s{T0} offen sc1\ns_mov_b64 exec, -1")
    A("s_barrier\ns_barrier\ns_barrier")
    A("v_lshlrev_b32 v20, 2, v0\nv_and_b32 v20, 127, v20")
    A(f"buffer_load_dword v24, v20, {s(SWS,4)}, s{T4} offen sc1")
    A("s_barrier\ns_barrier")
    A.label("S_RP")
    A(f"s_waitcnt vmcnt(0)\nv_and_b32 v25, -8, v24\nv_cmp_ne_u32 vcc, s{sNONCE}, v25\ns_cbranch_vccz S_ROK")
    A(f"buffer_load_dword v24, v20, {s(SWS,4)}, s{T4} offen sc1\ns_sub_u32 s{sSPIN}, s{sSPIN}, 1\ns_cmp_lt_i32 s{sSPIN}, 0\ns_cbranch_scc0 S_RP")
    A.label("S_ROK")
    A(f"s_waitcnt vmcnt(0)\nv_cmp_ne_u32 vcc, s{T5}, v24\ns_cmp_eq_u64 vcc, 0\ns_cselect_b32 s{sFAST}, {1 if CFG.fast else 0}, 0")
    A(f"v_mov_b32 v22, s{sNONCE}\nv_mov_b32 v23, s{sFAST}\ns_mov_b64 exec, 3\nds_write_b64 v11, v[22:23] offset:{C_NON}")
    ctl_add(A, 11, 10, C_E1)
    SA = 8
    G, TMP, L = 32, 64, 64
    slot_addr(A, SA, 1)
    pair_gather(A, G, TMP, 9, sRBL)
    sPA = T4
    A(f"s_lshl_b32 s{T0}, s{sXCD}, 3\ns_add_u32 s{T0}, s{T0}, s{sC8}\ns_lshl_b32 s{T0}, s{T0}, 4\ns_add_u32 s{T0}, s{T0}, s{sRBL}\ns_mul_i32 s{sPA}, s{T0}, {PSTR}\ns_add_u32 s{sPA}, s{sPA}, {WS_PA}")
    for k in range(1, 4):
        A(f"s_xor_b32 s{T0}, s{sRBL}, {k}\ns_mul_i32 s{T0}, s{T0}, {4*PSTR}\ns_add_u32 s{sK1+k-1}, s{sPA}, s{T0}")
    sHD = T5
    A(f"s_lshl_b32 s{sHD}, s{sC8}, 2\ns_add_u32 s{sHD}, s{sHD}, s{sRBL}")
    sPB = T4
    A(f"s_mul_i32 s{sPB}, s{sHD}, {8*PSTR}\ns_add_u32 s{sPB}, s{sPB}, {WS_PB}")
    for k in range(0, 8):
        A(f"s_xor_b32 s{T0}, s{sXCD}, {k}\ns_mul_i32 s{T0}, s{T0}, {PSTR}\ns_add_u32 s{8+k}, s{T0}, s{sPB}")
    A(f"s_lshl_b32 s{T0}, s{sXCD}, 5\ns_add_u32 s{T0}, s{T0}, s{sHD}\ns_lshl_b32 s{T0}, s{T0}, 11\ns_add_u32 s7, s{T0}, {WS_PC}")
    A("s_setprio 3")
    ctl_wait(A, 11, 26, C_E2, 4, 1)
    pair_gather2(A, G, TMP, 9)
    ctl_add(A, 11, 10, C_QW)
    ga, gs = (VL16, 1024) if CFG.pa_full else (SA, GST)
    loads = []; tags = []
    for k in range(3):
        for g in range(6):
            loads.append(f"buffer_load_dwordx4 {v(L+24*k+4*g,4)}, v{ga}, {s(SWS,4)}, s{sK1+k} offen offset:{(g*gs) % 4096} sc1".replace(f"v{ga},", f"v{ga if g*gs < 4096 else 7},"))
            tags.append(L+24*k+4*g+3)
    A(f"v_add_u32 v7, 4096, v{VL16}")
    if CFG.prepoll1:
        A("s_mov_b64 exec, 1")
        tagged_poll(A, loads[5::6], tags[5::6], CFG.psleep)
    set_gexec(A)
    tagged_poll(A, loads, tags)
    hstamp(A, 6)
    for k in range(3):
        for r in range(0, 24, 2):
            A(f"v_pk_add_f32 {v(G+r,2)}, {v(G+r,2)}, {v(L+24*k+r,2)}")
    A("s_mov_b64 exec, -1")
    set_tags(A, G, 6)
    for g in range(6):
        A(f"buffer_store_dwordx4 {v(G+4*g,4)}, v{VL16 if g < 4 else 7}, {s(SWS,4)}, s8 offen offset:{(g*1024) % 4096} sc1")
    if CFG.diag:
        A("s_waitcnt vmcnt(0)")
        hstamp(A, 1)
    loads = []; tags = []
    for k in range(1, 8):
        for g in range(6):
            loads.append(f"buffer_load_dwordx4 {v(L+24*(k-1)+4*g,4)}, v{VL16 if g < 4 else 7}, {s(SWS,4)}, s{8+k} offen offset:{(g*1024) % 4096} sc1")
            tags.append(L+24*(k-1)+4*g+3)
    if CFG.prepoll2:
        A("s_mov_b64 exec, 1")
        tagged_poll(A, loads[5::6], tags[5::6], CFG.psleep)
        hstamp(A, 2)
    set_gexec(A)
    tagged_poll(A, loads, tags)
    hstamp(A, 7)
    for k in range(7):
        for r in range(0, 24, 2):
            A(f"v_pk_add_f32 {v(G+r,2)}, {v(G+r,2)}, {v(L+24*k+r,2)}")
    PCR = 16
    for j in range(8):
        A(f"v_cvt_pk_bf16_f32 v{gval(PCR,j)}, v{gval(G,2*j)}, v{gval(G,2*j+1)}")
    set_tags(A, PCR, 3)
    hstore(A, [f"buffer_store_dwordx4 {v(PCR+4*g,4)}, v{SA}, {s(SWS,4)}, s7 offen offset:{g*GST}" for g in range(3)], CFG.pc_sc1)
    hstamp(A, 8)
    A.label("L_HEND")
    stamp_out(A, 4)
    A("s_endpgm")

def reduce4(A, pfx, ACCB, tmp):
    aw = tmp + 64
    A("s_nop 7")
    A(f"s_lshl_b32 s{T0}, s{sW}, 14\nv_add_u32 v{aw}, s{T0}, v{VL16}")
    for j in range(4):
        A(f"s_cmp_eq_u32 s{sW}, {j}\ns_cbranch_scc1 {pfx}_OWN{j}")
        for q in range(4):
            A(f"ds_write_b128 v{aw}, {v(ACCB+16*j+4*q,4)} offset:{j*4096+q*1024}")
        A(f"s_branch {pfx}_NXT{j}")
        A.label(f"{pfx}_OWN{j}")
        for r in range(0, 16, 2):
            A(f"v_pk_mov_b32 {v(tmp+r,2)}, {v(ACCB+16*j+r,2)}, {v(ACCB+16*j+r,2)} op_sel:[0,1]")
        A.label(f"{pfx}_NXT{j}")
    A("s_waitcnt lgkmcnt(0)\ns_barrier")
    for k in range(1, 4):
        A(f"s_xor_b32 s{T0}, s{sW}, {k}\ns_lshl_b32 s{T0}, s{T0}, 14\ns_lshl_b32 s{T1}, s{sW}, 12\ns_add_u32 s{T0}, s{T0}, s{T1}\nv_add_u32 v{aw}, s{T0}, v{VL16}")
        for q in range(4):
            A(f"ds_read_b128 {v(tmp+16*k+4*q,4)}, v{aw} offset:{q*1024}")
    for k in range(1, 4):
        A(f"s_waitcnt lgkmcnt({4*(3-k)})")
        for r in range(0, 16, 2):
            A(f"v_pk_add_f32 {v(tmp+r,2)}, {v(tmp+r,2)}, {v(tmp+16*k+r,2)}")
    return tmp

def finish_stats(A, sx, sxx, nm, rstd, t):
    A(f"v_mul_f32 v{nm}, s{sK1}, v{sx}")
    A(f"v_mul_f32 v{t}, v{nm}, v{nm}")
    A(f"v_fma_f32 v{t}, v{sxx}, s{sK1}, -v{t}")
    A(f"v_max_f32 v{t}, 0, v{t}")
    A(f"v_add_f32 v{t}, s{sK2}, v{t}")
    A(f"v_rsq_f32 v{rstd}, v{t}")
    A(f"v_sub_f32 v{nm}, 0, v{nm}")

def compute(A):
    A(f"s_and_b32 s{sRH}, s{sW}, 1\ns_lshr_b32 s{sHH}, s{sW}, 1")
    ROW, HALF = 1, 2
    XA, WA, QA = 8, 12, 16
    SEL = 20
    ONES, SXX = 5, 6
    RSA, CSK, CSV = 24, 28, 32
    FX = [36, 40]; FW = [44, 52]
    AK, AV = 64, 80
    ID, PW = 112, 120
    A(f"v_and_b32 v{ROW}, 31, v0\nv_lshrrev_b32 v{HALF}, 5, v0")
    A(f"v_lshrrev_b32 v3, 1, v{ROW}\nv_and_b32 v3, 7, v3\nv_xor_b32 v3, v3, v{HALF}\nv_lshlrev_b32 v3, 4, v3")
    A(f"v_lshl_add_u32 v3, v{ROW}, 7, v3\ns_lshl_b32 s{T0}, s{sRH}, 12\nv_add_u32 v3, s{T0}, v3")
    for k in range(4):
        A(f"s_xor_b32 s{T0}, s{sW}, {k}\ns_lshl_b32 s{T0}, s{T0}, 5\nv_xor_b32 v{XA+k}, s{T0}, v3")
    A(f"v_bfe_u32 v3, v0, 2, 2\nv_lshlrev_b32 v7, 7, v3\nv_lshrrev_b32 v3, 1, v3\nv_xor_b32 v3, s{sHH}, v3\nv_lshl_add_u32 v7, v3, 6, v7")
    A(f"v_bfe_u32 v3, v0, 4, 1\nv_lshl_add_u32 v7, v3, 5, v7\nv_and_b32 v3, 3, v0\nv_lshl_add_u32 v7, v3, 3, v7\nv_add_u32 v7, {RING}, v7")
    A(f"v_lshl_add_u32 v60, v{HALF}, 11, v7\nv_lshl_add_u32 v61, v{HALF}, 10, v7")
    for k in range(4):
        A(f"s_xor_b32 s{T0}, s{sW}, {k}\ns_lshl_b32 s{T1}, s{T0}, 12\nv_add_u32 v{WA+k}, s{T1}, v60\ns_lshl_b32 s{T1}, s{T0}, 11\nv_add_u32 v{QA+k}, s{T1}, v61")
    A(f"v_mov_b32 v{ONES}, 0x3f803f80\nv_mov_b32 v{SXX}, 0")
    A(f"v_lshrrev_b32 v3, 2, v0\nv_xor_b32 v3, v3, v0\nv_and_b32 v3, 4, v3\nv_and_b32 v7, 3, v0\nv_or_b32 v3, v3, v7\nv_cmp_eq_u32 vcc, 0, v3")
    for i in range(4):
        A(f"v_cndmask_b32 v{SEL+i}, 0, v{ONES}, vcc")
    A(f"s_mov_b32 s{sK1}, {fbits(1/512)}\ns_mov_b32 s{sK2}, {fbits(1e-5)}\ns_mov_b32 s{sK3}, {fbits(LOG2E)}")
    A(f"v_and_b32 v60, 1, v0\nv_cmp_eq_u32 vcc, 1, v60\nv_mov_b32 v61, 0x3f80\nv_mov_b32 v62, 0x3f800000\nv_cndmask_b32 v61, v61, v62, vcc")
    A(f"v_bfe_u32 v60, v0, 2, 1\nv_cmp_eq_u32 vcc, v60, v{HALF}\nv_cndmask_b32 v61, 0, v61, vcc")
    A("v_bfe_u32 v60, v0, 3, 2\nv_lshlrev_b32 v60, 1, v60\nv_bfe_u32 v62, v0, 1, 1\nv_or_b32 v60, v60, v62")
    for r in range(8):
        A(f"v_cmp_eq_u32 vcc, {r}, v60\nv_cndmask_b32 v{ID+r}, 0, v61, vcc")
    A(f"v_bfe_u32 v60, v0, 2, 2\nv_lshl_add_u32 v60, v{HALF}, 2, v60\nv_lshlrev_b32 v60, 5, v60\nv_and_b32 v61, 3, v0\nv_lshl_add_u32 v60, v61, 3, v60")
    A(f"s_lshl_b32 s{T0}, s{sW}, 13\ns_add_u32 s{T0}, s{T0}, {RL}\nv_add_u32 v60, s{T0}, v60")
    A("v_bfe_u32 v61, v0, 4, 1\nv_mul_u32_u24 v61, 0x8000, v61\nv_lshl_or_b32 v61, v61, 16, v61")
    ctl_setup(A, 110, 111, 62)
    common_srds(A)

    def reads(sq, sg_, b):
        A(f"ds_read_b128 {v(FX[b],4)}, v{XA+sg_} offset:{XL + sq*8192}")
        for sg in range(2):
            for t in range(2):
                A(f"ds_read_b64_tr_b16 {v(FW[b]+4*sg+2*t,2)}, v{WA+sg_} offset:{(sq&3)*16384 + sg*1024 + t*512}")
    DBGV = 63
    for c in range(8):
        A("s_barrier")
        if c in (2, 4): stamp(A, f"B{c}")
        if c == 0:
            stamp(A, "B0")
            for e in range(2):
                for t in range(2):
                    A(f"ds_read_b64_tr_b16 {v(PW+4*e+2*t,2)}, v60 offset:{e*512+t*256}")
        reads(c, 0, 0)
        for k in range(4):
            b = k & 1
            if k < 3: reads(c, k + 1, b ^ 1)
            A(f"s_waitcnt lgkmcnt({5 if k < 3 else 0})")
            if c == 0 and k == 0:
                for i in range(8):
                    A(f"v_xor_b32 v{PW+i}, v{PW+i}, v61")
            first = (c == 0 and k == 0)
            X = FX[b]; W = FW[b]
            mfma(A, AK, W, X, None if first else AK)
            if k in (0, 3):
                m16(A, CSK, SEL, W, None if first else CSK)
            else:
                m16(A, RSA, SEL, X, None if (c == 0 and k == 1) else RSA)
            mfma(A, AV, X, W+4, None if first else AV)
            if k in (0, 3):
                m16(A, CSV, SEL, W+4, None if first else CSV)
            else:
                for i in range(4):
                    A(f"v_dot2c_f32_bf16 v{SXX}, v{X+i}, v{X+i}")
    stamp(A, "loop")
    A(f"s_xor_b32 s{T0}, s{sW}, 1\ns_lshl_b32 s{T0}, s{T0}, 13\ns_add_u32 s{T0}, s{T0}, {RL+4096}\nv_lshl_add_u32 v36, v0, 2, s{T0}")
    A(f"s_xor_b32 s{T0}, s{sW}, 2\ns_lshl_b32 s{T0}, s{T0}, 13\ns_add_u32 s{T0}, s{T0}, {RL+4096}\nv_lshl_add_u32 v37, v0, 2, s{T0}")
    A(f"s_lshl_b32 s{T0}, s{sW}, 13\ns_add_u32 s{T0}, s{T0}, {RL+4096}\nv_lshl_add_u32 v38, v0, 2, s{T0}")
    A(f"ds_write_b32 v37, v{SXX} offset:768")
    A(f"ds_write_b32 v37, v{RSA} offset:512")
    A(f"ds_write_b32 v36, v{CSK}")
    A(f"ds_write_b32 v36, v{CSV} offset:256")
    A(f"s_add_u32 s{T0}, s{T0}, 1024\nv_lshl_add_u32 v39, v{ROW}, 2, s{T0}\nv_lshl_add_u32 v40, v{HALF}, 4, s{T0}")
    ctl_add(A, 110, 111, C_E1)
    ctl_wait(A, 110, 62, C_E1, 5)
    stamp(A, "E1")
    A(f"ds_read_b64 v[102:103], v110 offset:{C_NON}")
    A(f"ds_read2st64_b32 v[44:45], v38 offset0:2 offset1:3")
    A(f"ds_read2st64_b32 v[46:47], v38 offset0:0 offset1:1")
    A("v_cmp_gt_u32 vcc, 32, v0")
    A("s_waitcnt lgkmcnt(1)")
    NM, RSTD = 48, 49
    A(f"v_add_f32 v{RSA}, v{RSA}, v44\nv_add_f32 v{SXX}, v{SXX}, v45\nv_mov_b32 v50, v{SXX}")
    A(f"v_permlane32_swap_b32 v{SXX}, v50\nv_add_f32 v{SXX}, v{SXX}, v50")
    finish_stats(A, RSA, SXX, NM, RSTD, 50)
    A(f"ds_write_b32 v39, v{RSTD}")
    NF = 104
    A(f"v_cvt_pk_bf16_f32 v{NF+1}, v{NM}, 0\nv_lshlrev_b32 v50, 16, v{NF+1}\nv_sub_f32 v50, v{NM}, v50\nv_cvt_pk_bf16_f32 v{NF}, v{NM}, v50")
    A(f"v_mov_b32 v{NF+2}, 0\nv_mov_b32 v{NF+3}, 0")
    RS = 128
    A("s_waitcnt lgkmcnt(0)")
    for q in range(4):
        A(f"ds_read_b128 {v(RS+4*q,4)}, v40 offset:{q*32}")
    def cs_frag(cs, F):
        A(f"v_cndmask_b32 v{cs}, 0, v{cs}, vcc")
        A(f"v_cvt_pk_bf16_f32 v{F}, v{cs}, v{cs}\nv_lshlrev_b32 v50, 16, v{F}\nv_sub_f32 v50, v{cs}, v50")
        A(f"v_cvt_pk_bf16_f32 v{F+1}, v50, 0\nv_mov_b32 v{F+2}, 0\nv_mov_b32 v{F+3}, 0")
    A(f"v_add_f32 v{CSK}, v{CSK}, v46")
    cs_frag(CSK, 52)
    mfma(A, AK, 52, NF, AK)
    A(f"v_add_f32 v{CSV}, v{CSV}, v47")
    cs_frag(CSV, 56)
    mfma(A, AV, NF, 56, AV)
    CK = 108
    A(f"v_mul_f32 v{CK}, s{sK3}, v{RSTD}")
    def scale_pack(acc, outb):
        for i in range(0, 16, 2):
            A(f"v_pk_mul_f32 {v(acc+i,2)}, {v(acc+i,2)}, {v(CK,2)} op_sel_hi:[1,0]")
        for i in range(8):
            A(f"v_cvt_pk_bf16_f32 v{outb+i}, v{acc+2*i}, v{acc+2*i+1}")
    KB = 36
    P = [144, 160]
    scale_pack(AK, KB)
    mfma(A, P[0], PW, KB)
    mfma(A, P[1], PW+4, KB+4)
    A("s_waitcnt lgkmcnt(0)")
    VB, V0, V1 = 44, 52, 176
    for i in range(0, 16, 2):
        A(f"v_pk_mul_f32 {v(AV+i,2)}, {v(AV+i,2)}, {v(RS+i,2)}")
    for i in range(8):
        A(f"v_cvt_pk_bf16_f32 v{VB+i}, v{AV+2*i}, v{AV+2*i+1}")
    A("v_and_b32 v60, 16, v0\nv_cmp_eq_u32 vcc, 0, v60")
    for i in range(8):
        A(f"v_cndmask_b32 v{V0+i}, v{ONES}, v{VB+i}, vcc")
    for i in range(8):
        A(f"v_cndmask_b32 v{V1+i}, v{VB+i}, v{ONES}, vcc")
    TM = 184; PK = [192, 200]; T = [64, 80]; TB = [36, 44]; KV = [208, 224]
    softmax_tile(A, P[0], PK[0], TM)
    mfma(A, T[0], PK[0], ID); mfma(A, T[0], PK[0]+4, ID+4, T[0])
    softmax_tile(A, P[1], PK[1], TM)
    mfma(A, T[1], PK[1], ID); mfma(A, T[1], PK[1]+4, ID+4, T[1])
    A(f"s_lshl_b32 s{T0}, s{sW}, 13\ns_add_u32 s{T0}, s{T0}, {RL}\nv_add_u32 v60, s{T0}, v{VL16}")
    A(f"v_readfirstlane_b32 s{sNONCE}, v102\nv_readfirstlane_b32 s{sFAST}, v103")
    pair_gather(A, None, 62, 61, sW)
    for e in range(2):
        for i in range(8):
            A(f"v_cvt_pk_bf16_f32 v{TB[e]+i}, v{T[e]+2*i}, v{T[e]+2*i+1}")
        Ve = V0 if e == 0 else V1
        mfma(A, KV[e], TB[e], Ve); mfma(A, KV[e], TB[e]+4, Ve+4, KV[e])
    stamp(A, "smdone")
    SA = 63
    slot_addr(A, SA, 3)
    A(f"s_lshl_b32 s{T0}, s{sXCD}, 3\ns_add_u32 s{T0}, s{T0}, s{sC8}\ns_lshl_b32 s{T0}, s{T0}, 2\ns_and_b32 s{T6}, s{sRB}, 3\ns_add_u32 s{T0}, s{T0}, s{T6}\ns_lshl_b32 s{T0}, s{T0}, 2\ns_add_u32 s{T0}, s{T0}, s{sW}\ns_mul_i32 s{T7}, s{T0}, {PSTR}\ns_add_u32 s{T7}, s{T7}, {WS_PA}")
    G = 64
    set_tags(A, G, 6)
    A(f"v_add_u32 v7, 4096, v{VL16}")
    for e in range(2):
        m_ = GMASK if e == 0 else "0xffff0001"
        A(f"s_mov_b32 exec_lo, {m_}\ns_mov_b32 exec_hi, {m_}")
        for q in range(4):
            A(f"ds_write_b128 v60, {v(KV[e]+4*q,4)} offset:{e*4096+q*1024}")
    ctl_add(A, 110, 111, C_E2)
    ctl_wait(A, 110, 62, C_E2, 4)
    stamp(A, "E2")
    A(f"s_cmp_eq_u32 s{T6}, s{sW}\ns_cbranch_scc1 C_NOPA")
    pair_gather2(A, G, 144, 61)
    if CFG.pa_full:
        for g in range(6):
            A(f"buffer_store_dwordx4 {v(G+4*g,4)}, v{VL16 if g < 4 else 7}, {s(SWS,4)}, s{T7} offen offset:{(g*1024) % 4096} sc1")
    else:
        set_gexec(A)
        hstore(A, [f"buffer_store_dwordx4 {v(G+4*g,4)}, v{SA}, {s(SWS,4)}, s{T7} offen offset:{g*GST}" for g in range(6)], CFG.pa_sc1)
    ctl_add(A, 110, 111, C_QT)
    A.label("C_NOPA")
    stamp(A, "atom")
    ctl_wait(A, 110, 62, C_WQ, 2)
    AQ = 128; CSQ = 28
    def qreads(n, b):
        sq, k = n >> 2, n & 3
        A(f"ds_read_b128 {v(FX[b],4)}, v{XA+k} offset:{XL + sq*8192}")
        for t in range(2):
            A(f"ds_read_b64_tr_b16 {v(FW[b]+2*t,2)}, v{QA+k} offset:{sq*8192 + t*512}")
    FW[0], FW[1] = 44, 48
    FX3 = [36, 40, 52]; FW3 = [44, 48, 56]
    def qreads3(n):
        sq, k = n >> 2, n & 3
        b = n % 3
        A(f"ds_read_b128 {v(FX3[b],4)}, v{XA+k} offset:{XL + sq*8192}")
        for t in range(2):
            A(f"ds_read_b64_tr_b16 {v(FW3[b]+2*t,2)}, v{QA+k} offset:{sq*8192 + t*512}")
    qreads3(0); qreads3(1)
    for n in range(32):
        if n + 2 < 32: qreads3(n + 2)
        A(f"s_waitcnt lgkmcnt({3*min(2, 31-n)})")
        mfma(A, AQ, FW3[n % 3], FX3[n % 3], None if n == 0 else AQ)
        m16(A, CSQ, SEL, FW3[n % 3], None if n == 0 else CSQ)
    stamp(A, "qgemm")
    ctl_add(A, 110, 111, C_QW)
    A("v_cmp_gt_u32 vcc, 32, v0")
    cs_frag(CSQ, 52)
    mfma(A, AQ, 52, NF, AQ)
    QB = 36
    scale_pack(AQ, QB)
    mfma(A, P[0], PW, QB)
    mfma(A, P[1], PW+4, QB+4)
    PHQ = 192
    TA0, TA1, VXR = 12, 13, 14
    A(f"v_bfe_u32 v3, v0, 2, 2\nv_lshl_add_u32 v60, v{HALF}, 2, v3\nv_lshlrev_b32 v{TA0}, 7, v60\nv_lshrrev_b32 v3, 1, v3\nv_lshl_add_u32 v{TA0}, v3, 6, v{TA0}")
    A(f"v_bfe_u32 v3, v0, 4, 1\nv_lshl_add_u32 v{TA0}, v3, 5, v{TA0}\nv_and_b32 v3, 3, v0\nv_lshl_add_u32 v{TA0}, v3, 3, v{TA0}")
    A(f"s_lshl_b32 s{T0}, s{sW}, 14\nv_add_u32 v{TA0}, s{T0}, v{TA0}\nv_xor_b32 v{TA1}, 64, v{TA0}")
    A(f"v_lshlrev_b32 v{VXR}, 10, v{ROW}\nv_lshl_add_u32 v{VXR}, v{HALF}, 3, v{VXR}")
    softmax_tile(A, P[0], PHQ, TM)
    XR = 16
    A(f"s_lshl_b32 s{T0}, s{sRB}, 16\ns_lshl_b32 s{T1}, s{sRH}, 15\ns_add_u32 s{T0}, s{T0}, s{T1}\ns_lshl_b32 s{T1}, s{sC8}, 7\ns_add_u32 s{T0}, s{T0}, s{T1}\ns_lshl_b32 s{T1}, s{sHH}, 6\ns_add_u32 s{T0}, s{T0}, s{T1}")
    for q in range(4):
        A(f"buffer_load_dwordx2 {v(XR+2*q,2)}, v{VXR}, {s(SX_,4)}, s{T0} offen offset:{q*16}")
    softmax_tile(A, P[1], PHQ+8, TM)
    stamp(A, "arrv")
    A(f"s_lshl_b32 s{T6}, s{sC8}, 2\ns_lshl_b32 s{T0}, s{sHH}, 1\ns_add_u32 s{T6}, s{T6}, s{T0}")
    A(f"s_lshl_b32 s{T5}, s{sXCD}, 5\ns_add_u32 s{T5}, s{T5}, s{T6}\ns_lshl_b32 s{T5}, s{T5}, 11\ns_add_u32 s{T5}, s{T5}, {WS_PC}")
    KVR = 64
    A("v_mov_b32 v60, v63")
    if CFG.prepoll3:
        A("s_mov_b64 exec, 1")
        tagged_poll(A, [f"buffer_load_dwordx4 {v(KVR+12*e+8,4)}, v60, {s(SWS,4)}, s{T5} offen offset:{e*2048+2*GST} sc1" for e in range(2)], [KVR+12*e+11 for e in range(2)], CFG.psleep)
        A("s_mov_b64 exec, -1")
    tagged_poll(A, [f"buffer_load_dwordx4 {v(KVR+12*e+4*g,4)}, v60, {s(SWS,4)}, s{T5} offen offset:{e*2048+g*GST} sc1" for e in range(2) for g in range(3)],
                [KVR+12*e+4*g+3 for e in range(2) for g in range(3)])
    stamp(A, "syncA")
    A(f"s_mov_b32 s{sK3}, {fbits(1e-6)}")
    A(f"s_lshl_b32 s{T0}, s{sRB}, 1\ns_add_u32 s{T0}, s{T0}, s{sRH}\ns_mul_i32 s{T0}, s{T0}, {CFG.ost}\ns_lshl_b32 s{T4}, s{T6}, 10\ns_add_u32 s{T4}, s{T4}, s{T0}")
    KA = 88; O = [128, 144]; OB = 104; RC = 112
    for e in range(2):
        for r in range(8):
            A(f"v_mov_b32 v{KA+8*e+r}, v{gval(KVR+12*e, r)}")
        mfma(A, O[e], KA+8*e, PHQ+8*e); mfma(A, O[e], KA+8*e+4, PHQ+8*e+4, O[e])
    for e in range(2):
        A(f"v_add_f32 v{RC}, s{sK3}, v{O[e]+8}\nv_rcp_f32 v{RC}, v{RC}")
        for r in range(0, 8, 2):
            A(f"v_pk_mul_f32 {v(O[e]+r,2)}, {v(O[e]+r,2)}, {v(RC,2)} op_sel_hi:[1,0]")
        for r in range(4):
            A(f"v_cvt_pk_bf16_f32 v{OB+4*e+r}, v{O[e]+2*r}, v{O[e]+2*r+1}")
    hstore(A, [f"buffer_store_dwordx4 {v(OB+4*e,4)}, v{VL16}, {s(SWS,4)}, s{T4} offen offset:{e*1024}" for e in range(2)], CFG.o_sc1)
    A(f"s_lshl_b32 s{T3}, s{sRB}, 7\ns_add_u32 s{T3}, s{T3}, {WS_F1}")
    stamp(A, "ostore")
    A(f"s_lshl_b32 s{T0}, s{sC8}, 4\ns_lshl_b32 s{T1}, s{sW}, 2\ns_add_u32 s{T0}, s{T0}, s{T1}\ns_add_u32 s{T2}, s{T3}, s{T0}")
    A(f"s_lshl_b32 s{T0}, s{sW}, 5\ns_add_u32 s{T0}, s{T0}, s{T3}\nv_lshl_add_u32 v60, v0, 2, s{T0}")
    A(f"s_lshl_b32 s{T0}, s2, 4\ns_add_u32 s{T0}, s{T0}, s{T1}\ns_add_u32 s{T0}, s{T0}, {WS_FW}\nv_mov_b32 v61, s{T0}\nv_cmp_gt_u32 vcc, 8, v0\nv_cndmask_b32 v60, v61, v60, vcc")
    A(f"s_mul_i32 s{T4}, s{sRB}, {2*CFG.ost}\ns_lshl_b32 s{T0}, s{sW}, 13\ns_add_u32 s{T4}, s{T4}, s{T0}")
    A("s_waitcnt vmcnt(0)")
    flag_store(A, 62, T2)
    A(f"s_mov_b64 s[{sMASK}:{sMASK+1}], 0x1ff")
    poll(A, 61, 60, "0", f"s{sNONCE}", s(sMASK, 2))
    stamp(A, "hop1")
    AF = 64
    for k in range(8):
        for rt in range(2):
            if k % 4 == 0:
                A(f"s_add_u32 s{T0+rt}, s{T4}, {rt*CFG.ost + k*1024}")
            A(f"buffer_load_dwordx4 {v(AF+8*k+4*rt,4)}, v{VL16}, {s(SWS,4)}, s{T0+rt} offen offset:{(k%4)*1024} sc1")
    WF = [36, 44]
    ACC = lambda nt, rt: 192 + (2*nt + rt) * 16
    def woreads(k):
        for nt in range(2):
            for t in range(2):
                A(f"ds_read_b64_tr_b16 {v(WF[k&1]+4*nt+2*t,2)}, v{TA0+nt} offset:{k*2048+t*1024}")
    woreads(0)
    for k in range(8):
        if k < 7: woreads(k + 1)
        A(f"s_waitcnt vmcnt({2*(7-k)}) lgkmcnt({4 if k < 7 else 0})")
        for rt in range(2):
            for nt in range(2):
                mfma(A, ACC(nt, rt), WF[k&1]+4*nt, AF+8*k+4*rt, None if k == 0 else ACC(nt, rt))
    stamp(A, "P2lp")
    R = reduce4(A, "P2", 192, 96)
    stamp(A, "P2red")
    for r in range(8):
        A(f"v_lshlrev_b32 v36, 16, v{XR+r}\nv_and_b32 v37, 0xffff0000, v{XR+r}")
        A(f"v_pk_add_f32 {v(R+2*r,2)}, {v(R+2*r,2)}, v[36:37]")
        A(f"v_cvt_pk_bf16_f32 v{40+r}, v{R+2*r}, v{R+2*r+1}")
    sHO = 7
    A(f"s_lshl_b32 s{T0}, s{sRB}, 1\ns_add_u32 s{T0}, s{T0}, s{sRH}\ns_lshl_b32 s{T1}, s{sC8}, 1\ns_add_u32 s{T1}, s{T1}, s{sHH}")
    A(f"s_mul_i32 s{sHO}, s{T0}, {CFG.hst}\ns_lshl_b32 s{T2}, s{T1}, 11\ns_add_u32 s{sHO}, s{sHO}, s{T2}\ns_add_u32 s{sHO}, s{sHO}, {WS_H}")
    A(f"v_pk_mul_f32 v[38:39], {v(R,2)}, {v(R,2)}\nv_pk_add_f32 v[36:37], {v(R,2)}, {v(R+2,2)}")
    for r in range(2, 16, 2):
        A(f"v_pk_fma_f32 v[38:39], {v(R+r,2)}, {v(R+r,2)}, v[38:39]")
        if r >= 4: A(f"v_pk_add_f32 v[36:37], v[36:37], {v(R+r,2)}")
    A("v_add_f32 v36, v36, v37\nv_add_f32 v38, v38, v39\nv_permlane32_swap_b32 v36, v38\nv_add_f32 v36, v36, v38")
    A(f"s_lshl_b32 s{T2}, s{T0}, 12\ns_lshr_b32 s{T3}, s{T1}, 2\ns_lshl_b32 s{T3}, s{T3}, 10\ns_add_u32 s{T2}, s{T2}, s{T3}\ns_and_b32 s{T3}, s{T1}, 3\ns_lshl_b32 s{T3}, s{T3}, 2\ns_add_u32 s{T2}, s{T2}, s{T3}\ns_add_u32 s{T2}, s{T2}, {WS_ST}")
    hstore(A, [f"buffer_store_dwordx4 v[40:43], v{VL16}, {s(SWS,4)}, s{sHO} offen",
               f"buffer_store_dwordx4 v[44:47], v{VL16}, {s(SWS,4)}, s{sHO} offen offset:1024",
               f"buffer_store_dword v36, v{VL16}, {s(SWS,4)}, s{T2} offen"], CFG.h_sc1)
    A(f"s_lshl_b32 s{T6}, s{T0}, 6\ns_lshl_b32 s{T3}, s{T1}, 2\ns_add_u32 s{T6}, s{T6}, s{T3}\ns_add_u32 s{T6}, s{T6}, {WS_F2}")
    W1L = 65536
    stamp(A, "P2st")
    TB0, TB1 = 8, 9
    A(f"v_bfe_u32 v3, v0, 2, 2\nv_lshl_add_u32 v3, v{HALF}, 2, v3\nv_mul_u32_u24 v{TB0}, 192, v3")
    A(f"v_bfe_u32 v3, v0, 4, 1\nv_lshl_add_u32 v{TB0}, v3, 5, v{TB0}\nv_and_b32 v3, 3, v0\nv_lshl_add_u32 v{TB0}, v3, 3, v{TB0}\nv_add_u32 v{TB0}, {W1L}, v{TB0}\nv_add_u32 v{TB1}, {16*3072}, v{TB0}")
    A(f"s_mul_i32 s{T3}, s{sW}, {8*3072}\nv_add_u32 v10, s{T3}, v{TB0}")
    A(f"v_lshrrev_b32 v3, 2, v0\nv_xor_b32 v3, v3, v0\nv_and_b32 v3, 4, v3\nv_and_b32 v7, 3, v0\nv_or_b32 v3, v3, v7\nv_cmp_eq_u32 vcc, 0, v3")
    for i in range(4):
        A(f"v_cndmask_b32 v{SEL+i}, 0, v{ONES}, vcc")
    CW = 64
    CS1 = 24
    for k in range(8):
        for nt in range(3):
            for t in range(2):
                A(f"ds_read_b64_tr_b16 {v(CW+12*k+4*nt+2*t,2)}, v10 offset:{k*3072 + t*1536 + nt*64}")
        if k == 1 or k == 3 or k == 5 or k == 7:
            A("s_waitcnt lgkmcnt(0)")
            for kk in (k-1, k):
                for nt in range(3):
                    m16(A, CS1+4*nt, SEL, CW+12*kk+4*nt, None if kk == 0 else CS1+4*nt)
        if k == 3:
            A("s_waitcnt vmcnt(0)")
            flag_store(A, 62, T6)
            stamp(A, "P2fl")
    stamp(A, "P2end")
    srd(A, ST0, PTR(6), 2752)
    srd(A, SW_, PTR(7), 1376*1024)
    B1 = 36
    A(f"v_lshlrev_b32 v3, 1, v{ROW}\ns_mul_i32 s{T0}, s{sC16}, 192")
    for nt in range(3):
        A(f"buffer_load_ushort v{B1+nt}, v3, {s(ST0,4)}, s{T0} offen offset:{nt*64}")
    A(f"s_mul_i32 s{T0}, s{sW}, {16384+4096}\nv_lshl_add_u32 v3, v0, 2, s{T0}")
    for nt in range(3):
        A(f"ds_write_b32 v3, v{CS1+4*nt} offset:{nt*256}")
    sRT = 35
    A(f"s_lshl_b32 s{sRT}, s{sRBK}, 2\ns_add_u32 s{sRT}, s{sRT}, s{sW}")
    A(f"s_lshl_b32 s{T5}, s{sRT}, 6\ns_add_u32 s{T5}, s{T5}, {WS_F2}\nv_lshlrev_b32 v60, 2, v0\nv_and_b32 v60, 63, v60")
    A("s_waitcnt lgkmcnt(0)\ns_barrier")
    A("v_lshlrev_b32 v3, 2, v0")
    for w in range(4):
        for nt in range(3):
            A(f"ds_read_b32 v{40+3*w+nt}, v3 offset:{w*(16384+4096)+nt*256}")
    VO0, VO1 = 10, 11
    wide_pattern(A, VO0, 1024, 60+1, 62, 63)
    A(f"v_add_u32 v{VO1}, {8192-1024}, v{VO0}")
    A("v_cmp_gt_u32 vcc, 32, v0")
    A("s_waitcnt vmcnt(0) lgkmcnt(0)")
    CF = 24
    for nt in range(3):
        A(f"v_add_f32 v52, v{40+nt}, v{43+nt}\nv_add_f32 v53, v{46+nt}, v{49+nt}\nv_add_f32 v52, v52, v53")
        A(f"v_cndmask_b32 v52, 0, v52, vcc\nv_cndmask_b32 v{B1+nt}, 0, v{B1+nt}, vcc")
        A(f"v_cvt_pk_bf16_f32 v{CF+4*nt}, v52, v52\nv_lshlrev_b32 v53, 16, v{CF+4*nt}\nv_sub_f32 v53, v52, v53")
        A(f"v_cvt_pk_bf16_f32 v53, v53, 0\nv_lshl_or_b32 v{CF+4*nt+1}, v{B1+nt}, 16, v53\nv_mov_b32 v{CF+4*nt+2}, v{B1+nt}\nv_mov_b32 v{CF+4*nt+3}, 0")
    A("s_barrier")
    A(f"s_mov_b64 s[{sMASK}:{sMASK+1}], 0xffff")
    poll(A, 61, 60, f"s{T5}", f"s{sNONCE}", s(sMASK, 2))
    stamp(A, "hop2")
    AF = 128; STR = 112
    A(f"s_mul_i32 s{T4}, s{sRT}, {CFG.hst}\ns_add_u32 s{T4}, s{T4}, {WS_H}\ns_lshl_b32 s{T5}, s{sRT}, 12\ns_add_u32 s{T5}, s{T5}, {WS_ST}")
    sW2, sL2 = T6, T7
    A(f"s_mul_i32 s{sW2}, s{sW}, {22*16*1024}\ns_lshl_b32 s{T0}, s{sC8}, 7\ns_add_u32 s{sW2}, s{sW2}, s{T0}")
    def hload(k):
        pre = f"s_add_u32 s{T0}, s{T4}, {k*1024}\n" if k % 4 == 0 else ""
        return pre + f"buffer_load_dwordx4 {v(AF+4*k,4)}, v{VL16}, {s(SWS,4)}, s{T0} offen offset:{(k%4)*1024} sc1"
    def w2slot(k):
        sl = k % 20
        return (f"s_lshl_b32 s{T1}, s{sW}, 14\ns_add_u32 m0, s{T1}, {sl*2048}" if sl < 8 else
                f"s_mul_i32 s{T1}, s{sW}, 24576\ns_add_u32 m0, s{T1}, {65536 + (sl-8)*2048}")
    sRS = sK3
    def w2dyn(lo, n, first):
        pre = ""
        if first:
            pre = (f"s_and_b32 s{sRS}, s{sRB}, 3\ns_mul_i32 s{sRS}, s{sRS}, {n//4}\ns_add_u32 s{sRS}, s{sRS}, {lo}\n" if CFG.wrot else f"s_mov_b32 s{sRS}, {lo}\n")
            pre += (f"s_lshl_b32 s{sL2}, s{sW}, 14\n" if lo == 0 else f"s_mul_i32 s{sL2}, s{sW}, 24576\ns_add_u32 s{sL2}, s{sL2}, {65536 - 8*2048}\n")
        return [pre + f"s_lshl_b32 s{T1}, s{sRS}, 11\ns_add_u32 m0, s{T1}, s{sL2}\ns_lshl_b32 s{T2}, s{sRS}, 14\ns_add_u32 s{T2}, s{T2}, s{sW2}\nbuffer_load_dwordx4 v{VO0}, {s(SW_,4)}, s{T2} offen lds",
                f"buffer_load_dwordx4 v{VO1}, {s(SW_,4)}, s{T2} offen offset:1024 lds\ns_add_u32 s{sRS}, s{sRS}, 1\ns_cmp_eq_u32 s{sRS}, {lo+n}\ns_cselect_b32 s{sRS}, {lo}, s{sRS}"]
    def w2load(k):
        return [w2slot(k) + f"\ns_add_u32 s{T2}, s{sW2}, {k*16384}\nbuffer_load_dwordx4 v{VO0}, {s(SW_,4)}, s{T2} offen lds",
                f"buffer_load_dwordx4 v{VO1}, {s(SW_,4)}, s{T2} offen offset:1024 lds"]
    seq = [hload(k) for k in range(32)]
    stl = [f"buffer_load_dwordx4 {v(STR+4*g,4)}, v{VL16}, {s(SWS,4)}, s{T5} offen offset:{g*1024} sc1" for g in range(4)]
    w2a = sum([w2dyn(0, 8, k == 0) for k in range(8)], [])
    order = seq + stl + w2a
    D = 10
    issued = 0
    for o in order[:D]: A(o)
    issued = D
    FW = [40, 52]
    ACC3 = [64, 80, 96]
    def w1reads(kg):
        base = TB0 if kg < 16 else TB1
        for nt in range(3):
            for t in range(2):
                A(f"ds_read_b64_tr_b16 {v(FW[kg&1]+4*nt+2*t,2)}, v{base} offset:{(kg&15)*3072 + t*1536 + nt*64}")
    w1reads(0)
    for k in range(32):
        if k < 31: w1reads(k + 1)
        A(f"s_waitcnt vmcnt({issued - 1 - k}) lgkmcnt({6 if k < 31 else 0})")
        n_new = 1 if k < 12 else 2
        new = order[issued:issued + n_new]; issued += len(new)
        for nt in range(3):
            mfma(A, ACC3[nt], FW[k&1]+4*nt, AF+4*k, None if k == 0 else ACC3[nt])
            if nt < len(new): A(new[nt])
    for o in order[issued:]: A(o)
    A(f"s_waitcnt vmcnt({len(w2a)})")
    A("s_barrier")
    stamp(A, "P3lp")
    for g in range(3):
        A(f"v_pk_add_f32 {v(STR,2)}, {v(STR,2)}, {v(STR+4*g+4,2)}\nv_pk_add_f32 {v(STR+2,2)}, {v(STR+2,2)}, {v(STR+4*g+6,2)}")
    A(f"v_pk_add_f32 {v(STR,2)}, {v(STR,2)}, {v(STR+2,2)}\nv_add_f32 v{STR}, v{STR}, v{STR+1}\nv_mov_b32 v{STR+1}, v{STR}")
    A(f"v_permlane32_swap_b32 v{STR}, v{STR+1}")
    NM, RSTD, SD = 40, 42, 41
    finish_stats(A, STR, STR+1, NM, RSTD, SD)
    A(f"v_mul_f32 v{SD}, v{SD}, v{RSTD}")
    NF = 44
    A(f"v_cvt_pk_bf16_f32 v{NF+1}, v{NM}, v{SD}")
    A(f"v_lshlrev_b32 v48, 16, v{NF+1}\nv_sub_f32 v48, v{NM}, v48\nv_cvt_pk_bf16_f32 v{NF}, v{NM}, v48")
    A(f"v_and_b32 v48, 0xffff0000, v{NF+1}\nv_sub_f32 v48, v{SD}, v48\nv_cvt_pk_bf16_f32 v{NF+2}, v48, 0\nv_mov_b32 v{NF+3}, 0")
    for nt in range(3):
        mfma(A, ACC3[nt], CF+4*nt, NF, ACC3[nt])
    c0 = -2 * 0.7978845608028654 * LOG2E
    c1 = c0 * 0.044715
    CC, ONE2 = 48, 50
    A(f"v_mov_b32 v{CC}, {fbits(c1)}\nv_mov_b32 v{CC+1}, {fbits(c0)}\nv_mov_b32 v{ONE2}, 1.0\nv_mov_b32 v{ONE2+1}, 1.0")
    A(f"s_mul_i32 s{T4}, s{sRT}, {CFG.h1st}\ns_mul_i32 s{T0}, s{sC16}, 6144\ns_add_u32 s{T4}, s{T4}, s{T0}\ns_add_u32 s{T4}, s{T4}, {WS_H1}")
    w2b = sum([w2dyn(8, 12, k == 8) for k in range(8, 20)], [])
    T = 128
    for nt in range(3):
        X = ACC3[nt]
        body = []
        for r in range(0, 16, 2): body.append(f"v_pk_mul_f32 {v(X+r,2)}, {v(X+r,2)}, {v(RSTD,2)} op_sel_hi:[1,0]")
        for r in range(0, 16, 2): body.append(f"v_pk_mul_f32 {v(T+r,2)}, {v(X+r,2)}, {v(X+r,2)}")
        for r in range(0, 16, 2): body.append(f"v_pk_fma_f32 {v(T+r,2)}, {v(T+r,2)}, {v(CC,2)}, {v(CC,2)} op_sel:[0,0,1] op_sel_hi:[1,0,1]")
        for r in range(0, 16, 2): body.append(f"v_pk_mul_f32 {v(T+r,2)}, {v(T+r,2)}, {v(X+r,2)}")
        for r in range(16): body.append(f"v_exp_f32 v{T+r}, v{T+r}")
        for r in range(0, 16, 2): body.append(f"v_pk_add_f32 {v(T+r,2)}, {v(T+r,2)}, {v(ONE2,2)}")
        for r in range(16): body.append(f"v_rcp_f32 v{T+r}, v{T+r}")
        for r in range(0, 16, 2): body.append(f"v_pk_mul_f32 {v(X+r,2)}, {v(X+r,2)}, {v(T+r,2)}")
        OUT = 144 + 8*nt
        for r in range(8): body.append(f"v_cvt_pk_bf16_f32 v{OUT+r}, v{X+2*r}, v{X+2*r+1}")
        dm = w2b[12*nt:12*nt+12] if nt < 2 else []
        step = len(body) // 12
        for i, b_ in enumerate(body):
            A(b_)
            if dm and i % step == 0 and i // step < 12: A(dm[i // step])
        lab = f"P3_NOST{nt}"
        A(f"s_cmp_ge_u32 s{sC16}, {15 if nt == 0 else 14}\ns_cbranch_scc1 {lab}")
        if nt == 2: A(f"s_add_u32 s{T4}, s{T4}, 4096")
        o = (nt & 1) * 2048
        hstore(A, [f"buffer_store_dwordx4 {v(OUT,4)}, v{VL16}, {s(SWS,4)}, s{T4} offen offset:{o}",
                   f"buffer_store_dwordx4 {v(OUT+4,4)}, v{VL16}, {s(SWS,4)}, s{T4} offen offset:{o+1024}"], CFG.h1_sc1)
        A.label(lab)
        stamp(A, f"gelu{nt}")
    srd(A, SX_, PTR(11), 64*CFG.h1st, add=WS_H1)
    srd(A, ST0, PTR(8), 1024)
    srd(A, ST1, PTR(9), 2097152)
    A(f"s_lshl_b32 s{T3}, s{sRT}, 6\ns_lshl_b32 s{T0}, s{sC16}, 2\ns_add_u32 s{T3}, s{T3}, s{T0}\ns_add_u32 s{T3}, s{T3}, {WS_F3}")
    TA2, TA3, VO, VB2 = 14, 15, 16, 17
    A(f"s_lshl_b32 s{T0}, s{sW}, 13\ns_add_u32 s{T0}, s{T0}, 65536\nv_add_u32 v{TA2}, s{T0}, v{TA0}\nv_add_u32 v{TA3}, s{T0}, v{TA1}")
    A(f"v_lshlrev_b32 v{VO}, 10, v{ROW}\nv_lshl_add_u32 v{VO}, v{HALF}, 4, v{VO}\nv_lshlrev_b32 v{VB2}, 3, v{HALF}")
    lo = [0, 3, 7, 11]; hi = [3, 7, 10, 14]
    msk = [(((1 << (hi[w]+1)) - (1 << lo[w])) * 0x10001) for w in range(4)]
    A(f"s_mov_b32 s{sMASK}, {msk[0]}\ns_cmp_eq_u32 s{sW}, 1\ns_cselect_b32 s{sMASK}, {msk[1]}, s{sMASK}\ns_cmp_eq_u32 s{sW}, 2\ns_cselect_b32 s{sMASK}, {msk[2]}, s{sMASK}")
    A(f"s_cmp_eq_u32 s{sW}, 3\ns_cselect_b32 s{sMASK}, {msk[3]}, s{sMASK}\ns_mov_b32 s{sMASK+1}, 0")
    A(f"s_lshl_b32 s{T5}, s{sRB}, 7\ns_add_u32 s{T5}, s{T5}, {WS_F3}\nv_lshlrev_b32 v60, 2, v0\nv_and_b32 v60, 127, v60")
    A("s_waitcnt vmcnt(0)")
    A(f"s_cmp_eq_u32 s{sC16}, 15\ns_cbranch_scc1 P3_NOFL")
    flag_store(A, 62, T3)
    A.label("P3_NOFL")
    stamp(A, "P3fl")
    HR, B2R = 20, 28
    A(f"s_lshl_b32 s{T3}, s{sC8}, 7\ns_lshl_b32 s{T0}, s{sHH}, 6\ns_add_u32 s{T3}, s{T3}, s{T0}")
    for t in range(2):
        A(f"buffer_load_dwordx4 {v(HR+4*t,4)}, v{VL16}, {s(SWS,4)}, s{sHO} offen offset:{t*1024} sc1")
    for q in range(4):
        A(f"buffer_load_dwordx2 {v(B2R+2*q,2)}, v{VB2}, {s(ST0,4)}, s{T3} offen offset:{q*16}")
    sOUT = sHO
    poll(A, 61, 60, f"s{T5}", f"s{sNONCE}", s(sMASK, 2))
    stamp(A, "hop3")
    A(f"s_lshl_b32 s{sOUT}, s{sRB}, 16\ns_lshl_b32 s{T0}, s{sRH}, 15\ns_add_u32 s{sOUT}, s{sOUT}, s{T0}\ns_add_u32 s{sOUT}, s{sOUT}, s{T3}")
    A(f"s_mul_i32 s{T4}, s{sRB}, {2*CFG.h1st}\ns_mul_i32 s{T0}, s{sW}, {22*1024}\ns_add_u32 s{T4}, s{T4}, s{T0}\ns_add_u32 s{T5}, s{T4}, {CFG.h1st}")
    NR = 16
    assert CFG.p4D <= 30
    AFR = lambda k: 64 + (k % NR) * 8
    A(f"s_cmp_eq_u32 s{sW}, 3\ns_cselect_b32 s{sK1}, 0x40000000, 0")
    def h1load(k):
        if k >= 20:
            return [f"s_add_u32 s{T0}, s{T4}, {k*1024}\ns_or_b32 s{T0}, s{T0}, s{sK1}\nbuffer_load_dwordx4 {v(AFR(k),4)}, v{VL16}, {s(SX_,4)}, s{T0} offen sc1",
                    f"s_add_u32 s{T0}, s{T5}, {k*1024}\ns_or_b32 s{T0}, s{T0}, s{sK1}\nbuffer_load_dwordx4 {v(AFR(k)+4,4)}, v{VL16}, {s(SX_,4)}, s{T0} offen sc1"]
        return [f"s_add_u32 s{T0}, s{T4}, {k*1024}\nbuffer_load_dwordx4 {v(AFR(k),4)}, v{VL16}, {s(SX_,4)}, s{T0} offen sc1",
                f"s_add_u32 s{T0}, s{T5}, {k*1024}\nbuffer_load_dwordx4 {v(AFR(k)+4,4)}, v{VL16}, {s(SX_,4)}, s{T0} offen sc1"]
    order = []
    for k in range(22):
        for o in h1load(k): order.append((("h", k), o))
        if k == 9:
            for kk in (20, 21):
                for o in w2load(kk): order.append((("w", kk), o))
    D = CFG.p4D
    if CFG.p4x & 1: order = [(t, o.replace(' sc1', '')) for t, o in order]
    for _, o in order[:D]: A(o)
    issued = D
    WF = [36, 44]
    def w2reads(k):
        sl = k % 20
        if CFG.p4x & 2: return
        for nt in range(2):
            for t in range(2):
                if sl < 8:
                    A(f"ds_read_b64_tr_b16 {v(WF[k&1]+4*nt+2*t,2)}, v{TA0+nt} offset:{sl*2048+t*1024}")
                else:
                    A(f"ds_read_b64_tr_b16 {v(WF[k&1]+4*nt+2*t,2)}, v{TA2+nt} offset:{(sl-8)*2048+t*1024}")
    def last_idx(tag):
        return max(i for i, (t, _) in enumerate(order) if t == tag)
    w2reads(0)
    for k in range(22):
        if k < 21:
            if k + 1 >= 20:
                A(f"s_waitcnt vmcnt({issued - 1 - last_idx(('w', k+1))})")
            w2reads(k + 1)
        A(f"s_waitcnt vmcnt({issued - 1 - last_idx(('h', k))}) lgkmcnt({4 if k < 21 else 0})")
        new = order[issued:issued + 2]
        issued += len(new)
        j = 0
        for rt in range(2):
            for nt in range(2):
                if not (CFG.p4x & 4) or k == 0: mfma(A, ACC(nt, rt), WF[k&1]+4*nt, AFR(k)+4*rt, None if k == 0 else ACC(nt, rt))
                if j < len(new): A(new[j][1])
                j += 1
    assert issued >= len(order)
    stamp(A, "P4lp")
    R = reduce4(A, "P4", 192, 96)
    stamp(A, "P4red")
    for r in range(8):
        A(f"v_lshlrev_b32 v36, 16, v{HR+r}\nv_and_b32 v37, 0xffff0000, v{HR+r}\nv_lshlrev_b32 v38, 16, v{B2R+r}\nv_and_b32 v39, 0xffff0000, v{B2R+r}")
        A(f"v_pk_add_f32 {v(R+2*r,2)}, {v(R+2*r,2)}, v[38:39]")
        A(f"v_pk_add_f32 {v(R+2*r,2)}, {v(R+2*r,2)}, v[36:37]")
        A(f"v_cvt_pk_bf16_f32 v{48+r}, v{R+2*r}, v{R+2*r+1}")
    for p in range(2):
        A(f"v_permlane32_swap_b32 v{48+4*p}, v{50+4*p}\nv_permlane32_swap_b32 v{49+4*p}, v{51+4*p}")
        A(f"buffer_store_dwordx4 {v(48+4*p,4)}, v{VO}, {s(ST1,4)}, s{sOUT} offen offset:{p*32}")
    stamp_out(A, 0)
    A("s_endpgm")

def main(out, **kw):
    for k_, v_ in kw.items(): setattr(CFG, k_, v_)
    nstamp[0] = 0
    A = Asm()
    gen(A)
    A.pad()
    kernel_desc(A, KN, 256, sgpr=102)
    head = open("cdna_kernels/" + NAME + ".s.ref").read().split("; Override")[0]
    if CFG.stamp: head += "; stamps: " + " ".join(STAMPSETS[CFG.stamp][1:]) + "\n"
    head += f"; @launch grid=(256,1,1) block=(512,1,1) lds=163840\n"
    head += '.amdgcn_target "amdgcn-amd-amdhsa--gfx950"\n'
    open(out, "w").write(head + A.text())

if __name__ == "__main__":
    kw = {}
    for a_ in sys.argv[2:]:
        k_, v_ = a_.split("=", 1)
        kw[k_] = v_ if k_ in ('tl', 'pace', 't2') else int(v_)
    main(sys.argv[1], **kw)
```

```python
import re

TRANS = ("v_exp_f32", "v_log_f32", "v_rcp_f32", "v_rsq_f32", "v_sqrt_f32", "v_sin_f32", "v_cos_f32")

def v(i, n=1):
    return f"v{i}" if n == 1 else f"v[{i}:{i+n-1}]"
def a(i, n=1):
    return f"a{i}" if n == 1 else f"a[{i}:{i+n-1}]"
def s(i, n=1):
    return f"s{i}" if n == 1 else f"s[{i}:{i+n-1}]"

_reg_re = re.compile(r"^(-|\|)?(abs\()?([vas])(\d+|\[(\d+):(\d+)\])\)?\|?$")

def regs_of(op):
    op = op.strip()
    if op in ("vcc", "exec", "m0", "scc"):
        return {op}
    if op in ("vcc_lo", "vcc_hi"):
        return {"vcc"}
    if op in ("exec_lo", "exec_hi"):
        return {"exec"}
    m = _reg_re.match(op)
    if not m:
        return set()
    k = m.group(3)
    if m.group(5) is not None:
        return {f"{k}{i}" for i in range(int(m.group(5)), int(m.group(6)) + 1)}
    return {f"{k}{m.group(4)}"}

class Ins:
    def __init__(self, text):
        self.text = text
        t = text.split(";")[0].strip()
        parts = t.split(None, 1)
        self.mn = parts[0]
        rest = parts[1] if len(parts) > 1 else ""
        ops, depth, cur = [], 0, ""
        for ch in rest:
            if ch in "[(":
                depth += 1
            if ch in "])":
                depth -= 1
            if ch == "," and depth == 0:
                ops.append(cur.strip()); cur = ""
            else:
                cur += ch
        if cur.strip():
            ops.append(cur.strip())
        self.mods = ""
        if ops:
            last = ops[-1].split(None, 1)
            ops[-1] = last[0]
            if len(last) > 1:
                self.mods = last[1]
        self.ops = ops
        self.classify()

    def classify(self):
        mn = self.mn
        base = re.sub(r"_(e32|e64|dpp|sdwa)$", "", mn)
        self.base = base
        self.kind = "other"
        R = [regs_of(o) for o in self.ops]
        self.w, self.r = set(), set()
        self.srcc = set(); self.srcab = set(); self.passes = 0
        self.states = 1
        allr = lambda lst: set().union(*lst) if lst else set()
        if base.startswith("v_mfma"):
            self.kind = "mfma"
            self.w = R[0]; self.srcab = R[1] | R[2]; self.srcc = R[3] if len(R) > 3 else set()
            self.r = self.srcab | self.srcc
            if "32x32x16" in base: self.passes = 8
            elif "16x16x32" in base: self.passes = 4
            elif "4x4x4" in base: self.passes = 2
            else: raise ValueError("unknown mfma " + base)
        elif base.startswith("v_cmp"):
            self.kind = "valu"
            self.w = R[0]; self.r = allr(R[1:])
            if base.startswith("v_cmpx"): self.w = self.w | {"exec"}
        elif base in ("v_readfirstlane_b32", "v_readlane_b32"):
            self.kind = "valu"; self.w = R[0]; self.r = allr(R[1:])
        elif base.startswith("v_permlane"):
            self.kind = "valu"; self.w = R[0] | R[1]; self.r = R[0] | R[1]
        elif base.startswith("v_"):
            self.kind = "valu"
            self.w = R[0]; self.r = allr(R[1:])
            if base in ("v_fmac_f32", "v_dot2c_f32_bf16", "v_writelane_b32", "v_pk_fmac_f16"):
                self.r = self.r | R[0]
            if base in ("v_add_co_u32", "v_sub_co_u32", "v_addc_co_u32", "v_subb_co_u32", "v_div_scale_f32"):
                self.w = R[0] | R[1]; self.r = allr(R[2:])
            if base == "v_cndmask_b32" and len(R) == 3:
                self.r = self.r | {"vcc"}
            if base == "v_nop":
                self.w = set(); self.r = set()
        elif base.startswith("buffer_") or base.startswith("global_"):
            self.kind = "vmem"
            islds = " lds" in (" " + self.mods) or "load_lds" in base
            if base in ("buffer_wbl2", "buffer_inv"):
                pass
            elif "load" in base and not islds:
                self.w = R[0]; self.r = allr(R[1:])
            elif "atomic" in base and "sc0" in self.mods:
                self.w = R[0]; self.r = allr(R)
            else:
                self.r = allr(R)
            if islds: self.r = self.r | {"m0"}
            self.islds = islds
            self.widestore = ("store" in base and ("x3" in base or "x4" in base))
            if self.widestore:
                self.sdata = R[0] if base.startswith("buffer_") else R[1]
        elif base.startswith("ds_"):
            self.kind = "ds"
            if "read" in base or "bpermute" in base or "permute" in base or "swizzle" in base:
                self.w = R[0]; self.r = allr(R[1:])
            else:
                self.r = allr(R)
        elif base == "s_nop":
            self.kind = "nop"; self.states = int(self.ops[0], 0) + 1
        elif base.startswith("s_"):
            self.kind = "salu"
            if base.startswith("s_cmp") or base.startswith("s_cbranch") or base in (
                "s_branch", "s_waitcnt", "s_barrier", "s_endpgm", "s_setprio", "s_sleep", "s_bitcmp1_b32", "s_bitcmp0_b32"):
                self.r = allr(R)
            else:
                self.w = R[0] if R else set(); self.r = allr(R[1:])
                if "saveexec" in base: self.w = self.w | {"exec"}
        self.trans = base in TRANS
        self.dot = base.startswith("v_dot")
        self.dpp = ("dpp" in mn) or ("row_" in self.mods) or ("quad_perm" in self.mods)
        self.permlane = base.startswith("v_permlane")
        self.rdlane = base in ("v_readfirstlane_b32", "v_readlane_b32")

def isv(r): return r[0] in "va" and r not in ("vcc",)
def iss(r): return (r[0] == "s" and r != "scc") or r == "vcc"

def need(p, c):
    n = 0
    if p.kind == "valu":
        pw_v = {r for r in p.w if isv(r)}
        pw_s = {r for r in p.w if iss(r)}
        if c.kind == "mfma" and (pw_v & c.r):
            n = max(n, 3 if p.dot else 2)
        if c.kind == "mfma" and "exec" in p.w: n = max(n, 4)
        if c.kind == "valu":
            if c.permlane and (pw_v & c.r): n = max(n, 2)
            if c.dpp and (pw_v & c.r): n = max(n, 2)
            if c.dpp and "exec" in p.w: n = max(n, 5)
            if c.rdlane and (pw_v & c.r): n = max(n, 1)
            if p.trans and not c.trans and (pw_v & c.r): n = max(n, 1)
            if pw_s & c.r: n = max(n, 4 if c.base in ("v_readlane_b32", "v_writelane_b32") else 2)
            if "exec" in p.w and (c.rdlane or c.permlane): n = max(n, 4)
            if "op_sel" in p.mods and not p.base.startswith("v_pk_") and (pw_v & (c.r | c.w)): n = max(n, 1)
            if "sdwa" in p.mn and (pw_v & (c.r | c.w)): n = max(n, 1)
        if p.dot and (pw_v & (c.r | c.w)):
            if c.base == p.base:
                ab = set().union(*[regs_of(o) for o in c.ops[1:3]])
                if pw_v & ab: n = max(n, 3)
            else:
                n = max(n, 3)
        if c.kind == "vmem" and (pw_s & c.r): n = max(n, 5)
        if c.kind == "salu" and (pw_s & c.r) : n = max(n, 1)
    if p.kind == "salu":
        if "m0" in p.w and c.kind == "vmem" and "m0" in c.r: n = max(n, 1)
    if p.kind == "vmem" and getattr(p, "widestore", False):
        if p.sdata & c.w:
            n = max(n, 2 if c.kind in ("valu", "mfma") else 1)
    if p.kind == "mfma":
        D = p.w
        t_ab = {2: 5, 4: 8, 8: 12, 16: 20}[p.passes]
        t_c = {2: 4, 4: 6, 8: 10, 16: 18}[p.passes]
        if c.kind == "mfma":
            if D & c.srcab: n = max(n, t_ab)
            if D & c.srcc:
                if c.srcc == D and c.passes == p.passes:
                    n = max(n, 2 if p.passes == 2 else 0)
                else:
                    n = max(n, t_c)
            elif D & c.w:
                n = max(n, t_c)
        elif c.kind in ("valu", "vmem", "ds"):
            if D & (c.r | c.w): n = max(n, t_ab)
        if c.kind == "valu" and (p.srcc & c.w):
            n = max(n, {2: 1, 4: 3, 8: 7, 16: 15}[p.passes])
    return n

class Asm:
    def __init__(self):
        self.L = []
    def __call__(self, s_):
        for line in s_.strip().split("\n"):
            line = line.strip()
            if not line: continue
            if line.startswith(";"):
                self.L.append(("r", "    " + line))
            else:
                self.L.append(("i", Ins(line)))
    def label(self, n): self.L.append(("l", n))
    def raw(self, t): self.L.append(("r", t))

    def pad(self):
        out = []
        win = []
        for it in self.L:
            if it[0] == "i":
                c = it[1]
                req = 0
                for p, dist in win:
                    req = max(req, need(p, c) - dist)
                while req > 0:
                    k = min(req, 16)
                    nop = Ins(f"s_nop {k-1}")
                    out.append(("i", nop))
                    for e in win: e[1] += k
                    req -= k
                out.append(it)
                for e in win: e[1] += c.states
                win.append([c, 0])
                win = [e for e in win if e[1] < 24]
                if c.base in ("s_endpgm", "s_branch"):
                    win = []
            else:
                out.append(it)
        self.L = out
        self.check_branches()
        self.check_addr()

    def check_branches(self):
        idx = {it[1]: i for i, it in enumerate(self.L) if it[0] == "l"}
        for i, it in enumerate(self.L):
            if it[0] != "i": continue
            c = it[1]
            if c.base.startswith("s_cbranch") or c.base == "s_branch":
                tgt = idx[c.ops[0]]
                win = []; d = 0; j = i
                while j >= 0 and d < 24:
                    if self.L[j][0] == "i":
                        win.append([self.L[j][1], d]); d += self.L[j][1].states
                    j -= 1
                acc = 0; fixed = []
                for p, _ in win:
                    fixed.append([p, acc]); acc += p.states
                k = tgt; d2 = 0
                while k < len(self.L) and d2 < 24:
                    if self.L[k][0] == "i":
                        cc = self.L[k][1]
                        for p, dist in fixed:
                            if need(p, cc) > dist + d2:
                                raise RuntimeError(f"hazard across branch '{c.text}': {p.text} -> {cc.text} needs {need(p,cc)} has {dist+d2}")
                        d2 += cc.states
                        if cc.base in ("s_endpgm", "s_branch"): break
                    k += 1

    def check_addr(self):
        last = {}
        okp = ("v_mov_b32", "v_add_u32", "v_lshl", "v_lshr", "v_and_b32", "v_or_b32", "v_xor_b32", "v_mul_u32", "v_add_lshl", "v_add3",
               "v_cndmask", "v_sub_u32", "v_subrev_u32", "v_bfe", "v_min_u32")
        for it in self.L:
            if it[0] != "i": continue
            c = it[1]
            adr = None
            if c.kind == "ds":
                adr = c.ops[1] if c.w else c.ops[0]
            elif c.kind == "vmem" and c.base not in ("buffer_wbl2", "buffer_inv"):
                adr = c.ops[0] if getattr(c, "islds", False) else c.ops[1]
            if adr is not None:
                for r in regs_of(adr):
                    p = last.get(r)
                    if r != "v0" and (p is None or not p.base.startswith(okp)):
                        raise RuntimeError(f"suspicious address register {r} in '{c.text}' last written by '{p.text if p else None}'")
            for r in c.w: last[r] = c

    def text(self):
        o = []
        for it in self.L:
            if it[0] == "i": o.append("    " + it[1].text)
            elif it[0] == "l": o.append(it[1] + ":")
            else: o.append(it[1])
        return "\n".join(o) + "\n"

def kernel_head(A, name):
    A.raw(".text")
    A.raw(f".globl {name}")
    A.raw(".p2align 8")
    A.raw(f".type {name},@function")
    A.label(name)

def kernel_desc(A, name, vgpr, sgpr=96, agpr=0):
    accum = (vgpr + 3) // 4 * 4
    nfv = accum + agpr if agpr else vgpr
    A.raw('.section .rodata,"a"')
    A.raw(".p2align 6")
    A.raw(f".amdhsa_kernel {name}")
    A.raw(f"  .amdhsa_next_free_vgpr {nfv}")
    A.raw(f"  .amdhsa_next_free_sgpr {sgpr}")
    A.raw(f"  .amdhsa_accum_offset {accum}")
    A.raw("  .amdhsa_group_segment_fixed_size 0")
    A.raw("  .amdhsa_kernarg_size 96")
    A.raw("  .amdhsa_user_sgpr_count 2")
    A.raw("  .amdhsa_user_sgpr_kernarg_segment_ptr 1")
    A.raw("  .amdhsa_system_sgpr_workgroup_id_x 1")
    A.raw(".end_amdhsa_kernel")

def srd(A, d, b, nbytes, add=0):
    if add:
        A(f"s_add_u32 s{d}, s{b}, {add}")
        A(f"s_addc_u32 s{d+1}, s{b+1}, 0")
    else:
        A(f"s_mov_b32 s{d}, s{b}")
        A(f"s_mov_b32 s{d+1}, s{b+1}")
    A(f"s_mov_b32 s{d+2}, {nbytes}")
    A(f"s_mov_b32 s{d+3}, 0x20000")
```

```python
import sys, struct
from asmlib import *

NAME = "sequential_preLN__linear_kernel_hedgehog__dense_activation_gelu__prompt"
KN = NAME + "_kernel"
WS_O = 0
WS_PA = 6 << 20
GST = 640
PSTR = 3*1024
WS_PB = 14 << 20
WS_PC = 4 << 20
WS_REG = (4 << 20) + (528 << 10)
WS_F1 = (4 << 20) + (512 << 10)
WS_FW = WS_F1 + 4096
WS_F2 = WS_FW + 4096
WS_F3 = WS_F2 + 4096
WS_ST = (4 << 20) + (640 << 10)
WS_H = 17 << 20
WS_H1 = 20 << 20
H1_BYTES = 64 * 86 * 1024
WS_STAMP = 16 << 20
WS_SIZE = 32 << 20
LOG2E = 1.4426950408889634
def fbits(x): return "0x%08x" % struct.unpack("<I", struct.pack("<f", x))[0]

class Cfg:
    stamp = 0
    rot = 1
    fast = 1
    pd = 3
    p4D = 12
    p4x = 0
    ost = 32768
    hst = 32768
    h1st = 88064
    diag = 0
    pa_sc1 = 0
    pc_sc1 = 0
    o_sc1 = 1
    h_sc1 = 1
    h1_sc1 = 1
    prepoll1 = 1
    w1late = 1
    hprio = 0
    regat = 5
    w2t = 1
    ddw = 0
    p3m = 1
    p3a = 8
    p3g = 20
    hw2 = 1
    p3r = 1
    p3bk = 22
    spread = 1
    ddn = 6
    p3o = 1
    gpk = 0
    arot = 1
    pa_fast = 0
    w1in = 0
    w1c = 0
    wqlate = 1
    p3D = 26
    out_sc1 = 0
    prepoll2 = 1
    prepoll3 = 0
    tl = "fl,pa1,pb1,wq,wo,w1"
    pace = "0,0,0,0,99,0,0,0,0"
    tthr = 2
    t2 = ""
    pa_full = 0
    psleep = 6
    wrot = 1
    dthr = 0
CFG = Cfg()

SX_, SW_, SWS, SDBG, ST0, ST1 = 8, 12, 16, 20, 24, 28
PTR = lambda i: 36 + 2*i
sXCD, sJ, sRB, sC8, sRBK, sC16, sW, sRH, sHH, sNONCE = 60, 61, 62, 63, 64, 65, 66, 67, 68, 69
sFAST, sSPIN, sROT = 4, 5, 6
T0, T1, T2, T3, T4, T5, T6, T7 = 70, 71, 72, 73, 74, 75, 76, 77
sMASK = 78
sK1, sK2, sK3 = 32, 33, 34

nstamp = [0]
SREG = lambda i: 82 + 2*i if i < 10 else 44
STAMPSETS = {
 1: ["start","B0","loop","atom","arrv","syncA","hop1","P2end","hop2","P3lp","hop3"],
 2: ["start","B0","B2","B4","loop","E1","smdone","E2","atom","qgemm","arrv"],
 3: ["start","syncA","kvld","ostore","hop1","P2lp","P2red","P2st","P2fl","P2end","hop2"],
 5: ["start","hop2","p3i","p3k0","p3k1","p3k5","p3k8","p3k16","p3k24","P3lp","hop3"],
 6: ["start","hop3","p4i","p4k0","p4k4","p4k8","p4k12","p4k16","p4k20","P4lp","P4red"],
 4: ["start","hop2","P3lp","gelu0","gelu1","gelu2","P3fl","hop3","P4lp","P4red","qgemm"],
}
def stamp(A, name):
    if CFG.stamp and name in STAMPSETS[CFG.stamp]:
        i = STAMPSETS[CFG.stamp].index(name); nstamp[0] = 11
        assert i < 11
        b = SREG(i)
        A(f"s_memtime s[{b}:{b+1}]")

def mfma(A, d, x, y, c=None):
    cc = "0" if c is None else v(c, 16)
    A(f"v_mfma_f32_32x32x16_bf16 {v(d,16)}, {v(x,4)}, {v(y,4)}, {cc}")
def m16(A, d, x, y, c=None):
    cc = "0" if c is None else v(c, 4)
    A(f"v_mfma_f32_16x16x32_bf16 {v(d,4)}, {v(x,4)}, {v(y,4)}, {cc}")

def swap_reduce(A, x, y, op):
    A(f"v_permlane32_swap_b32 v{x}, v{y}")
    A(f"{op} v{x}, v{x}, v{y}")
    A(f"v_mov_b32 v{y}, v{x}")
    A(f"v_permlane32_swap_b32 v{x}, v{y}")

def softmax_tile(A, P, out, tm):
    M = tm
    A(f"v_max3_f32 v{M}, v{P}, v{P+1}, v{P+2}")
    A(f"v_max3_f32 v{M+1}, v{P+8}, v{P+9}, v{P+10}")
    A(f"v_max3_f32 v{M}, v{M}, v{P+3}, v{P+4}")
    A(f"v_max3_f32 v{M+1}, v{M+1}, v{P+11}, v{P+12}")
    A(f"v_max3_f32 v{M}, v{M}, v{P+5}, v{P+6}")
    A(f"v_max3_f32 v{M+1}, v{M+1}, v{P+13}, v{P+14}")
    A(f"v_max_f32 v{M}, v{M}, v{P+7}")
    A(f"v_max_f32 v{M+1}, v{M+1}, v{P+15}")
    swap_reduce(A, M, M+1, "v_max_f32")
    for i in range(0, 8, 2):
        A(f"v_pk_add_f32 {v(P+i,2)}, {v(P+i,2)}, {v(M,2)} op_sel_hi:[1,0] neg_lo:[0,1] neg_hi:[0,1]")
    for i in range(8, 16, 2):
        A(f"v_pk_add_f32 {v(P+i,2)}, {v(P+i,2)}, {v(M,2)} op_sel:[0,1] op_sel_hi:[1,1] neg_lo:[0,1] neg_hi:[0,1]")
    for i in range(16):
        A(f"v_exp_f32 v{P+i}, v{P+i}")
    T = tm + 2
    for g in range(2):
        b = P + 8*g
        A(f"v_pk_add_f32 {v(T,2)}, {v(b,2)}, {v(b+2,2)}")
        A(f"v_pk_add_f32 {v(T+2,2)}, {v(b+4,2)}, {v(b+6,2)}")
        A(f"v_pk_add_f32 {v(T,2)}, {v(T,2)}, {v(T+2,2)}")
        A(f"v_add_f32 v{M+g}, v{T}, v{T+1}")
    swap_reduce(A, M, M+1, "v_add_f32")
    A(f"v_rcp_f32 v{M}, v{M}")
    A(f"v_rcp_f32 v{M+1}, v{M+1}")
    for i in range(0, 8, 2):
        A(f"v_pk_mul_f32 {v(P+i,2)}, {v(P+i,2)}, {v(M,2)} op_sel_hi:[1,0]")
    for i in range(8, 16, 2):
        A(f"v_pk_mul_f32 {v(P+i,2)}, {v(P+i,2)}, {v(M,2)} op_sel:[0,1] op_sel_hi:[1,1]")
    for i in range(8):
        A(f"v_cvt_pk_bf16_f32 v{out+i}, v{P+2*i}, v{P+2*i+1}")

_uid = [0]
def uid(p):
    _uid[0] += 1
    return f"{p}{_uid[0]}"

def hstore(A, ins, force=0):
    if not CFG.fast or force:
        for s_ in ins: A(s_ + " sc1")
        return
    l1, l2 = uid("HS"), uid("HE")
    A(f"s_cmp_eq_u32 s{sFAST}, 1\ns_cbranch_scc1 {l1}")
    for s_ in ins: A(s_ + " sc1")
    A(f"s_branch {l2}")
    A.label(l1)
    for s_ in ins: A(s_)
    A.label(l2)

def flag_store(A, vtmp, soff):
    A(f"v_mov_b32 v{vtmp}, s{sNONCE}\nv_mov_b32 v{vtmp+1}, 0\ns_mov_b64 exec, 1")
    hstore(A, [f"buffer_store_dword v{vtmp}, v{vtmp+1}, {s(SWS,4)}, s{soff} offen"])
    A("s_mov_b64 exec, -1")

def poll(A, vdst, vaddr, soff, want, mask):
    l, le = uid("PL"), uid("PE")
    A.label(l)
    A(f"buffer_load_dword v{vdst}, v{vaddr}, {s(SWS,4)}, {soff} offen sc1")
    A(f"s_sub_u32 s{sSPIN}, s{sSPIN}, 1\ns_cmp_lt_i32 s{sSPIN}, 0\ns_cbranch_scc1 {le}")
    A("s_waitcnt vmcnt(0)")
    A(f"v_cmp_ne_u32 vcc, {want}, v{vdst}")
    A(f"s_and_b64 vcc, vcc, {mask}")
    A(f"s_cbranch_scc1 {l}")
    A.label(le)

XL, RING, RL = 0, 65536, 131072

def stamp_out(A, wadd):
    if not CFG.stamp: return
    A("s_mov_b64 exec, -1\ns_waitcnt vmcnt(0)")
    A(f"s_memtime s[{T0}:{T1}]\ns_memrealtime s[{T2}:{T3}]\ns_waitcnt lgkmcnt(0)")
    A(f"v_mov_b32 v0, s80\nv_mov_b32 v1, s{T2}\nv_mov_b32 v2, s{sFAST}\ns_sub_u32 s{T0}, s{T0}, s82\nv_mov_b32 v3, s{T0}")
    for i in range(1, 11):
        A(f"s_sub_u32 s{T0}, s{SREG(i)}, s82\nv_mov_b32 v{3+i}, s{T0}")
    A(f"s_getreg_b32 s{T0}, hwreg(HW_REG_XCC_ID)\nv_mov_b32 v14, s{T0}\nv_mov_b32 v15, s{sSPIN}")
    A(f"s_lshl_b32 s{T0}, s2, 3\ns_add_u32 s{T0}, s{T0}, s{sW}\ns_add_u32 s{T0}, s{T0}, {wadd}\ns_lshl_b32 s{T0}, s{T0}, 6\ns_add_u32 s{T0}, s{T0}, {WS_STAMP}")
    A("v_mov_b32 v16, 0\ns_mov_b64 exec, 1")
    for i in range(4):
        A(f"buffer_store_dwordx4 {v(4*i,4)}, v16, {s(SWS,4)}, s{T0} offen offset:{16*i}")

HSET = ["start", "h1", "h2", "h3", "h4", "h5", "h6", "h7", "h8", "h9", "h10"]
def hstamp(A, i):
    if CFG.stamp:
        b = SREG(i)
        A(f"s_memtime s[{b}:{b+1}]")

def gen(A):
    kernel_head(A, KN)
    A("s_cmp_ge_u32 s2, 256\ns_cbranch_scc1 L_END")
    if CFG.stamp:
        A("s_memrealtime s[80:81]")
    stamp(A, "start")
    A("s_load_dwordx16 s[36:51], s[0:1], 0")
    A("s_load_dwordx8 s[52:59], s[0:1], 64")
    A(f"s_and_b32 s{sXCD}, s2, 7\ns_lshr_b32 s{sJ}, s2, 3")
    A(f"s_lshl_b32 s{sRB}, s{sXCD}, 2\ns_lshr_b32 s{T0}, s{sJ}, 3\ns_add_u32 s{sRB}, s{sRB}, s{T0}\ns_and_b32 s{sC8}, s{sJ}, 7")
    A(f"s_lshr_b32 s{sRBK}, s{sRB}, 1\ns_and_b32 s{sC16}, s{sJ}, 15")
    if CFG.rot:
        A(f"s_lshl_b32 s{T0}, s{T0}, 1\ns_add_u32 s{sROT}, s{T0}, s{sC8}\ns_add_u32 s{sROT}, s{sROT}, s{sXCD}\ns_and_b32 s{sROT}, s{sROT}, 7")
    else:
        A(f"s_mov_b32 s{sROT}, 0")
    A(f"v_lshrrev_b32 v1, 6, v0\nv_and_b32 v0, 63, v0\nv_readfirstlane_b32 s{sW}, v1")
    A(f"s_mov_b32 s{sSPIN}, 0x80000")
    A(f"v_lshlrev_b32 v4, 4, v0")
    A(f"s_cmp_ge_u32 s{sW}, 4\ns_cbranch_scc1 L_HELPER")
    compute(A)
    A.label("L_HELPER")
    helper(A)
    A.label("L_END")
    A("s_endpgm")

VL16 = 4

def common_srds(A):
    A("s_waitcnt lgkmcnt(0)")
    srd(A, SX_, PTR(0), 2097152)
    srd(A, SWS, PTR(11), WS_SIZE)
    srd(A, SDBG, PTR(10), 256)

def wide_pattern(A, dst, stride, t1=1, t2=2, t3=3):
    A(f"v_lshrrev_b32 v{t1}, 3, v0\nv_and_b32 v{t2}, 7, v0\nv_bfe_u32 v{t3}, v0, 4, 1\nv_lshlrev_b32 v{t3}, 2, v{t3}\nv_xor_b32 v{t2}, v{t2}, v{t3}\nv_lshlrev_b32 v{t2}, 4, v{t2}")
    A(f"v_mul_u32_u24 v{t1}, {stride}, v{t1}\nv_add_u32 v{dst}, v{t1}, v{t2}")


GMASK = "0x1ffff"
QW = [156672 + 320, 162816 + 64]
VERD = 3072

C_QW, C_E1, C_QT, C_E2, C_NON, C_WQ, C_SV = 0, 4, 8, 12, 16, 24, 28
C_FULL, C_KV, C_FREE = 32, 40, 48
def ctl_setup(A, vadr, vone, t):
    A(f"v_mov_b32 v{vone}, 1\nv_mov_b32 v{vadr}, {QW[0]}\nv_mov_b32 v{t}, {QW[1]}\nv_cmp_eq_u32 vcc, 0, v0\nv_cndmask_b32 v{vadr}, v{t}, v{vadr}, vcc")
def ctl_add(A, vadr, vone, off, restore="-1"):
    A(f"s_mov_b64 exec, 3\nds_add_u32 v{vadr}, v{vone} offset:{off}\ns_mov_b64 exec, {restore}")
def ctl_wait(A, vadr, vt, off, thr, sleep=0):
    l, le = uid("CW"), uid("CE")
    A.label(l)
    A(f"ds_read_b32 v{vt}, v{vadr} offset:{off}\ns_sub_u32 s{sSPIN}, s{sSPIN}, 1\ns_cmp_lt_i32 s{sSPIN}, 0\ns_cbranch_scc1 {le}")
    A(f"s_waitcnt lgkmcnt(0)\nv_readfirstlane_b32 s3, v{vt}\ns_cmp_lt_u32 s3, {thr}")
    if sleep:
        A(f"s_cbranch_scc0 {le}\ns_sleep {sleep}\ns_branch {l}")
    else:
        A(f"s_cbranch_scc1 {l}")
    A.label(le)

def free_wait(A, vadr, vt, thr, sleep=1):
    l, le = uid("FW"), uid("FE")
    A.label(l)
    A(f"ds_read_b128 {v(vt,4)}, v{vadr} offset:{C_FREE}\ns_sub_u32 s{sSPIN}, s{sSPIN}, 1\ns_cmp_lt_i32 s{sSPIN}, 0\ns_cbranch_scc1 {le}")
    A(f"s_waitcnt lgkmcnt(0)\nv_min3_u32 v{vt}, v{vt}, v{vt+1}, v{vt+2}\nv_min_u32 v{vt}, v{vt}, v{vt+3}\nv_readfirstlane_b32 s3, v{vt}\ns_cmp_lt_u32 s3, {thr}")
    A(f"s_cbranch_scc0 {le}\ns_sleep {sleep}\ns_branch {l}")
    A.label(le)

def set_gexec(A):
    A(f"s_mov_b32 exec_lo, {GMASK}\ns_mov_b32 exec_hi, {GMASK}")

def slot_addr(A, dst, t):
    A(f"v_and_b32 v{t}, 31, v0\nv_min_u32 v{t}, 16, v{t}\nv_lshrrev_b32 v{dst}, 5, v0\nv_mul_u32_u24 v{dst}, 17, v{dst}\nv_add_lshl_u32 v{dst}, v{dst}, v{t}, 4")

def gval(G, r):
    return G + 4*(r // 3) + (r % 3)

def pair_gather(A, va, vz, shl):
    A(f"s_lshr_b32 s{T0}, s{shl}, 1\ns_lshl_b32 s{T0}, s{T0}, 14\ns_and_b32 s{T1}, s{shl}, 1\ns_mul_i32 s{T2}, s{T1}, {4096+256}\ns_add_u32 s{T2}, s{T2}, s{T0}\ns_add_u32 s{T2}, s{T2}, {RL}")
    A(f"v_lshl_add_u32 v{va}, v0, 2, s{T2}")
    A(f"s_mul_i32 s{T2}, s{T1}, {4096-256}\ns_add_u32 s{T2}, s{T2}, s{T0}\ns_add_u32 s{T2}, s{T2}, {RL+256}")
    A(f"v_bfe_u32 v{vz}, v0, 2, 3\nv_lshlrev_b32 v{vz}, 9, v{vz}\nv_and_b32 v3, 3, v0\nv_lshl_add_u32 v{vz}, v3, 2, v{vz}\nv_add_u32 v{vz}, s{T2}, v{vz}")

def pair_gather2(A, G, tmp, va, vz):
    for i in range(8):
        A(f"ds_read2st64_b32 {v(tmp+2*i,2)}, v{va} offset0:{2*i} offset1:{2*i+32}")
    A(f"ds_read2st64_b32 {v(tmp+16,2)}, v{vz} offset0:0 offset1:32")
    for i in range(9):
        A(f"s_waitcnt lgkmcnt({8-i})\nv_add_f32 v{gval(G,i)}, v{tmp+2*i}, v{tmp+2*i+1}")

def set_tags(A, G, n):
    for g in range(n):
        A(f"v_mov_b32 v{G+4*g+3}, s{sNONCE}")

def tagged_poll(A, loads, regs, sleep=0):
    l, le = uid("TP"), uid("TE")
    A.label(l)
    for o in loads: A(o)
    A(f"s_sub_u32 s{sSPIN}, s{sSPIN}, 1\ns_cmp_lt_i32 s{sSPIN}, 0\ns_cbranch_scc1 {le}")
    n = len(regs)
    acc = regs[0]
    A(f"s_waitcnt vmcnt(0)")
    t = TPT
    A(f"v_xor_b32 v{t}, s{sNONCE}, v{regs[0]}")
    for i in range(1, n):
        A(f"v_xor_b32 v{t+1}, s{sNONCE}, v{regs[i]}\nv_or_b32 v{t}, v{t}, v{t+1}")
    A(f"v_cmp_ne_u32 vcc, 0, v{t}")
    if sleep:
        A(f"s_cbranch_vccz {le}\ns_sleep {sleep}\ns_branch {l}")
    else:
        A(f"s_cbranch_vccnz {l}")
    A.label(le)
    A("s_waitcnt vmcnt(0)")
TPT = 62

def w1pat(A, VB):
    for i in range(3):
        A(f"v_add_u32 v1, {64*i}, v0\nv_mul_u32_u24 v2, 43691, v1\nv_lshrrev_b32 v2, 19, v2\nv_mul_u32_u24 v3, 12, v2\nv_sub_u32 v1, v1, v3")
        A(f"v_mul_u32_u24 v2, 2752, v2\nv_lshl_add_u32 v{VB+i}, v1, 4, v2")
def w1base(A, quarter):
    A(f"s_and_b32 s{T4}, s{sC16}, {3 if CFG.arot else 0}\ns_add_u32 s{T4}, s{T4}, {quarter}\ns_and_b32 s{T4}, s{T4}, 3\ns_mul_i32 s{T4}, s{T4}, {128*2752}\ns_mul_i32 s{T0}, s{sC16}, 192\ns_add_u32 s{T4}, s{T4}, s{T0}")
def w1regs(A, base, ngroups, VB):
    for g in range(ngroups):
        A(f"s_add_u32 s{T0}, s{T4}, {g*16*2752}")
        for i in range(3):
            A(f"buffer_load_dwordx4 {v(base+12*g+4*i,4)}, v{VB+i}, {s(ST1,4)}, s{T0} offen")

def helper(A):
    sI = sW
    A(f"s_sub_u32 s{sI}, s{sW}, 4")
    A(f"s_cmp_eq_u32 s{sI}, 2\ns_cbranch_scc1 L_TOUCH\ns_cmp_eq_u32 s{sI}, 3\ns_cbranch_scc1 L_REG")
    if CFG.hprio: A(f"s_setprio {CFG.hprio}")
    VX0, VX1, VW, VW1, VW2 = 5, 6, 7, 8, 9
    A(f"v_lshrrev_b32 v1, 3, v0\nv_and_b32 v2, 7, v0\nv_lshrrev_b32 v3, 4, v0")
    A(f"v_xor_b32 v{VX0}, v2, v3\nv_lshlrev_b32 v{VX0}, 4, v{VX0}\nv_lshl_add_u32 v{VX0}, v1, 10, v{VX0}")
    A(f"v_xor_b32 v{VX1}, 64, v{VX0}\nv_add_u32 v{VX1}, {8192-1024}, v{VX1}")
    wide_pattern(A, VW, 3072)
    A(f"v_add_u32 v{VW1}, {24576-2048}, v{VW}\nv_add_u32 v{VW2}, {24576-1024}, v{VW}")
    sXO, sWO, sXL, sRL = T4, T5, T6, T7
    A(f"s_lshl_b32 s{sXO}, s{sRB}, 16\ns_lshl_b32 s{T0}, s{sI}, 15\ns_add_u32 s{sXO}, s{sXO}, s{T0}")
    A(f"s_lshl_b32 s{sWO}, s{sC8}, 7\ns_mul_i32 s{T0}, s{sI}, {32*3072}\ns_add_u32 s{sWO}, s{sWO}, s{T0}")
    A(f"s_lshl_b32 s{sXL}, s{sI}, 12\ns_lshl_b32 s{sRL}, s{sI}, 13\ns_add_u32 s{sRL}, s{sRL}, {RING}")
    A("s_waitcnt lgkmcnt(0)")
    hstamp(A, 1)
    srd(A, SX_, PTR(0), 2097152)
    srd(A, SW_, PTR(1), 1572864)
    def issue(sq):
        if sq < 8:
            A(f"s_add_u32 s{T0}, s{sROT}, {sq}\ns_and_b32 s{T0}, s{T0}, 7")
            A(f"s_lshl_b32 s{T1}, s{T0}, 7\ns_add_u32 s{T1}, s{T1}, s{sXO}")
            A(f"s_mul_i32 s{T2}, s{T0}, {64*3072}\ns_add_u32 s{T2}, s{T2}, s{sWO}\ns_add_u32 s{T2}, s{T2}, 1024")
            for g in range(2):
                A(f"s_add_u32 m0, s{sXL}, {XL + sq*8192 + g*2048}")
                if g: A(f"s_add_u32 s{T1}, s{T1}, 16384")
                A(f"buffer_load_dwordx4 v{VX0}, {s(SX_,4)}, s{T1} offen lds")
                A(f"buffer_load_dwordx4 v{VX1}, {s(SX_,4)}, s{T1} offen offset:1024 lds")
                A(f"s_add_u32 m0, s{sRL}, {(sq & 3)*16384 + g*4096}")
                if g: A(f"s_add_u32 s{T2}, s{T2}, {16*3072}")
                A(f"buffer_load_dwordx4 v{VW}, {s(SW_,4)}, s{T2} offen lds")
                A(f"buffer_load_dwordx4 v{VW}, {s(SW_,4)}, s{T2} offen offset:1024 lds")
                A(f"buffer_load_dwordx4 v{VW1}, {s(SW_,4)}, s{T2} offen offset:2048 lds")
                A(f"buffer_load_dwordx4 v{VW1}, {s(SW_,4)}, s{T2} offen offset:3072 lds")
        else:
            p = sq - 8
            for sh in range(2):
                A(f"s_add_u32 s{T0}, s{sROT}, {2*p+sh}\ns_and_b32 s{T0}, s{T0}, 7")
                A(f"s_mul_i32 s{T2}, s{T0}, {64*3072}\ns_add_u32 s{T2}, s{T2}, s{sWO}")
                for g in range(2):
                    A(f"s_add_u32 m0, s{sXL}, {RING + p*16384 + sh*8192 + g*2048}")
                    if g: A(f"s_add_u32 s{T2}, s{T2}, {16*3072}")
                    A(f"buffer_load_dwordx4 v{VW}, {s(SW_,4)}, s{T2} offen lds")
                    A(f"buffer_load_dwordx4 v{VW2}, {s(SW_,4)}, s{T2} offen offset:1024 lds")
    issue(0)
    hstamp(A, 2)
    srd(A, ST0, PTR(2), 16384)
    A(f"s_lshl_b32 s{T0}, s{sC8}, 11\ns_lshl_b32 s{T1}, s{sI}, 10\ns_add_u32 s{T0}, s{T0}, s{T1}")
    A(f"s_lshl_b32 s{T1}, s{sI}, 14\ns_add_u32 m0, s{T1}, {RL}")
    A(f"buffer_load_dwordx4 v{VL16}, {s(ST0,4)}, s{T0} offen lds")
    A(f"s_add_u32 m0, s{T1}, {RL+8192}")
    A(f"buffer_load_dwordx4 v{VL16}, {s(ST0,4)}, s{T0} offen lds")
    issue(1)
    hstamp(A, 3)
    A(f"v_mov_b32 v25, {QW[0]}\ns_cmp_eq_u32 s{sI}, 1\ns_cselect_b32 s{T0}, {QW[1]-QW[0]}, 0\nv_add_u32 v25, s{T0}, v25\nv_mov_b32 v21, 0")
    ctl_setup(A, 11, 10, 12)
    PF = 128
    A(f"v_add_u32 v13, s{sRL}, v{VL16}\nv_add_u32 v14, 24576, v{VW}")
    def issue_reg(sq):
        A(f"s_add_u32 s{T0}, s{sROT}, {sq}\ns_and_b32 s{T0}, s{T0}, 7")
        A(f"s_lshl_b32 s{T1}, s{T0}, 7\ns_add_u32 s{T1}, s{T1}, s{sXO}")
        A(f"s_mul_i32 s{T2}, s{T0}, {64*3072}\ns_add_u32 s{T2}, s{T2}, s{sWO}\ns_add_u32 s{T2}, s{T2}, 1024")
        for g in range(2):
            A(f"s_add_u32 m0, s{sXL}, {XL + sq*8192 + g*2048}")
            if g: A(f"s_add_u32 s{T1}, s{T1}, 16384\ns_add_u32 s{T2}, s{T2}, {16*3072}")
            A(f"buffer_load_dwordx4 v{VX0}, {s(SX_,4)}, s{T1} offen lds")
            A(f"buffer_load_dwordx4 v{VX1}, {s(SX_,4)}, s{T1} offen offset:1024 lds")
            for e in range(2):
                for sg in range(2):
                    r = PF + 32*(sq-4) + 16*g + 8*e + 4*sg
                    A(f"buffer_load_dwordx4 {v(r,4)}, v{14 if e else VW}, {s(SW_,4)}, s{T2} offen offset:{sg*1024}")
    def dump(sq):
        for b_ in range(8):
            A(f"ds_write_b128 v13, {v(PF + 32*(sq-4) + 4*b_,4)} offset:{(sq & 3)*16384 + b_*1024}")
    A("s_waitcnt vmcnt(12)")
    hstamp(A, 4)
    A("s_barrier")
    issue(2); issue(3)
    A("s_waitcnt vmcnt(24)\ns_barrier")
    issue_reg(4); issue_reg(5)
    A("s_waitcnt vmcnt(36)\ns_barrier")
    issue_reg(6); issue_reg(7)
    A("s_waitcnt vmcnt(36)")
    dump(4)
    A("s_barrier")
    nq = 0
    for c in range(4, 8):
        if c + 1 < 8:
            A(f"s_waitcnt vmcnt({12*(6-c) + 8*nq})")
            if c == 5: hstamp(A, 2)
            dump(c + 1)
        if c == 5: hstamp(A, 6)
        A("s_waitcnt lgkmcnt(0)")
        if c == 5: hstamp(A, 7)
        A("s_barrier")
        if c == 5: hstamp(A, 8)
        if c >= 5 and not CFG.wqlate:
            issue(8 + c - 5); nq += 1
    if CFG.wqlate:
        issue(8); issue(9); issue(10)
    ctl_wait(A, 25, 26, C_E1, 5, 1)
    issue(11)
    srd(A, SWS, PTR(11), WS_SIZE)
    srd(A, ST0, PTR(3), 524288)
    VO0, VO1 = 16, 17
    wide_pattern(A, VO0, 1024)
    A(f"v_add_u32 v{VO1}, {8192-1024}, v{VO0}")
    srd(A, ST1, PTR(5), 512*2752)
    w1pat(A, 18)
    A("v_subrev_u32 v19, 1024, v19\nv_subrev_u32 v20, 2048, v20")
    A(f"s_lshl_b32 s{T4}, s{sI}, 18\ns_lshl_b32 s{T0}, s{sC8}, 7\ns_add_u32 s{T4}, s{T4}, s{T0}\ns_lshl_b32 s{T6}, s{sI}, 15")
    A(f"s_and_b32 s{T0}, s{sC8}, {1 if CFG.arot else 0}\ns_lshl_b32 s{T0}, s{T0}, 16\ns_sub_u32 s{T5}, s{T4}, s{T0}\ns_add_u32 s{T4}, s{T4}, s{T0}")
    A("s_waitcnt vmcnt(0)")
    ctl_add(A, 11, 10, C_WQ)
    hstamp(A, 5)
    ctl_wait(A, 25, 26, C_E1, 5, 2)
    A(f"ds_read_b32 v14, v25 offset:{C_NON}")
    ctl_wait(A, 25, 26, C_QW, 5, 2)
    A(f"v_readfirstlane_b32 s{sNONCE}, v14")
    hstamp(A, 9)
    for k in range(16):
        A(f"s_add_u32 m0, s{T6}, {k*2048}\ns_add_u32 s{T0}, s{T5 if k & 4 else T4}, {k*16384}")
        A(f"buffer_load_dwordx4 v{VO0}, {s(ST0,4)}, s{T0} offen lds")
        A(f"buffer_load_dwordx4 v{VO1}, {s(ST0,4)}, s{T0} offen offset:1024 lds")
    A(f"s_lshl_b32 s{T1}, s2, 4\ns_lshl_b32 s{T2}, s{sI}, 3\ns_add_u32 s{T1}, s{T1}, s{T2}\ns_add_u32 s{T1}, s{T1}, {WS_FW}")
    def hw1(c):
        A(f"s_add_u32 s{T0}, s{T6}, {c}\ns_and_b32 s{T0}, s{T0}, 7\ns_mul_i32 s{T0}, s{T0}, {64*2752}\ns_add_u32 s{T0}, s{T0}, s{T4}")
        for g in range(2):
            A(f"s_add_u32 m0, s{T5}, {c*12288 + g*3072}")
            if g: A(f"s_add_u32 s{T0}, s{T0}, {16*2752}")
            for i in range(3):
                off = f" offset:{i*1024}" if i else ""
                A(f"buffer_load_dwordx4 v{18+i}, {s(ST1,4)}, s{T0} offen{off} lds")
    if not CFG.w1c:
        A(f"s_mul_i32 s{T4}, s{sI}, {32*2752}\ns_mul_i32 s{T0}, s{sC16}, 192\ns_add_u32 s{T4}, s{T4}, s{T0}\ns_mul_i32 s{T5}, s{sI}, 6144\ns_add_u32 s{T5}, s{T5}, 65536")
        A(f"s_and_b32 s{T6}, s{sC16}, {3 if CFG.arot else 0}\ns_lshl_b32 s{T6}, s{T6}, 1")
        hw1(0); hw1(1)
    A(f"v_mov_b32 v22, s{sNONCE}\nv_mov_b32 v23, s{sNONCE}\ns_waitcnt vmcnt({0 if CFG.w1c else 12})\ns_mov_b64 exec, 1")
    A(f"buffer_store_dwordx2 v[22:23], v21, {s(SWS,4)}, s{T1} offen")
    A("s_mov_b64 exec, -1")
    hstamp(A, 10)
    if not CFG.w1c:
        for c in range(2, 7): hw1(c)
        A(f"s_waitcnt vmcnt({CFG.ddn})")
        ctl_add(A, 11, 10, C_FULL)
        ctl_wait(A, 25, 26, C_SV, 4, 2)
        hw1(7)
        if CFG.hw2:
            srd(A, ST1, PTR(7), 1376*1024)
            A(f"s_mul_i32 s{T4}, s{sI}, {2*22*16*1024}\ns_lshl_b32 s{T0}, s{sC8}, 7\ns_add_u32 s{T4}, s{T4}, s{T0}")
            A(f"s_mul_i32 s{sROT}, s{sC8}, {3 if CFG.arot else 0}")
        A("s_waitcnt vmcnt(0)")
        if CFG.hw2:
            def hw2batch(lo, n):
                if lo == 0: A(f"s_lshl_b32 s{T5}, s{sI}, 15")
                else: A(f"s_mul_i32 s{T5}, s{sI}, {2*24576}\ns_add_u32 s{T5}, s{T5}, {65536 - 8*2048}")
                A(f"s_and_b32 s{T6}, s{sRB}, 3\ns_mul_i32 s{T6}, s{T6}, {n//4}\ns_add_u32 s{T6}, s{T6}, {lo}")
                for k in range(n):
                    A(f"s_add_u32 s{T2}, s{T6}, s{sROT}\ns_cmp_ge_u32 s{T2}, 22\ns_cselect_b32 s3, 22, 0\ns_sub_u32 s{T2}, s{T2}, s3\ns_lshl_b32 s{T2}, s{T2}, 14\ns_add_u32 s{T2}, s{T2}, s{T4}")
                    A(f"s_lshl_b32 s{T1}, s{T6}, 11\ns_add_u32 s{T1}, s{T1}, s{T5}")
                    for u in range(2):
                        A(f"s_add_u32 m0, s{T1}, {u*(16384 if lo == 0 else 24576)}")
                        if u: A(f"s_add_u32 s{T2}, s{T2}, {22*16*1024}")
                        A(f"buffer_load_dwordx4 v{VO0}, {s(ST1,4)}, s{T2} offen lds")
                        A(f"buffer_load_dwordx4 v{VO1}, {s(ST1,4)}, s{T2} offen offset:1024 lds")
                    A(f"s_add_u32 s{T6}, s{T6}, 1\ns_cmp_eq_u32 s{T6}, {lo+n}\ns_cselect_b32 s{T6}, {lo}, s{T6}")
            A("s_barrier\ns_barrier\ns_barrier")
            A("s_barrier")
            hw2batch(0, 8)
            A("s_barrier")
            hw2batch(8, 12)
            A("s_waitcnt vmcnt(0)\ns_barrier")
    A("s_branch L_HEND")

    A.label("L_TOUCH")
    VT, VA = 5, 6
    A(f"v_lshlrev_b32 v{VT}, 7, v0")
    A("s_waitcnt lgkmcnt(0)")
    srd(A, SWS, PTR(11), WS_SIZE)
    class Rec:
        def __init__(s_): s_.groups = [[]]
        def __call__(s_, t): s_.groups[-1].append(t)
    Aout = A
    A = Rec()
    def touch(sr, soff, nlines, va=VT, step=8192):
        k = 0
        while nlines > 0:
            n = min(64, nlines)
            if n < 64: A(f"s_mov_b64 exec, {hex((1 << n) - 1) if n <= 32 else -1}")
            if 32 < n < 64: A(f"s_mov_b32 exec_hi, {hex((1 << (n-32)) - 1)}")
            A(f"s_add_u32 s{T3}, s{soff}, {k*step}")
            A(f"buffer_load_dword v250, v{va}, {s(sr,4)}, s{T3} offen")
            if n < 64: A("s_mov_b64 exec, -1")
            if n > 16: A.groups.append([])
            nlines -= n; k += 1
    def do(what):
        if what == "p1":
            srd(A, ST0, PTR(0), 2097152); srd(A, ST1, PTR(1), 1572864)
            A(f"v_lshrrev_b32 v1, 5, v0\nv_mul_u32_u24 v1, {64*3072}, v1\nv_bfe_u32 v2, v0, 4, 1\nv_mul_u32_u24 v2, 3072, v2\nv_and_b32 v3, 15, v0\nv_lshlrev_b32 v3, 7, v3\nv_add3_u32 v{VA}, v1, v2, v3")
            A(f"s_mul_i32 s{T0}, s{sJ}, 6144\ns_add_u32 s{T0}, s{T0}, {128*3072 + 1024}")
            touch(ST1, T0, 64, VA)
            A(f"v_mul_u32_u24 v1, 43, v0\nv_lshrrev_b32 v1, 8, v1\nv_mul_u32_u24 v2, 6, v1\nv_sub_u32 v2, v0, v2\nv_lshlrev_b32 v2, 7, v2\nv_lshl_add_u32 v7, v1, 10, v2")
            A(f"s_lshl_b32 s{T1}, s{sXCD}, 18\ns_lshl_b32 s{T2}, s{sJ}, 13\ns_add_u32 s{T1}, s{T1}, s{T2}\ns_add_u32 s{T1}, s{T1}, 256")
            touch(ST0, T1, 48, 7)
            A(f"s_add_u32 s{T0}, s{T0}, {128*3072}")
            touch(ST1, T0, 128, VA, 128*3072)
        elif what == "wq":
            srd(A, ST1, PTR(1), 1572864)
            A(f"v_lshrrev_b32 v1, 3, v0\nv_mul_u32_u24 v1, 3072, v1\nv_and_b32 v2, 7, v0\nv_lshl_add_u32 v{VA}, v2, 7, v1")
            A(f"s_mul_i32 s{T0}, s{sJ}, {16*3072}")
            touch(ST1, T0, 128, VA, 8*3072)
        elif what == "wo":
            srd(A, ST0, PTR(3), 524288)
            A(f"s_lshl_b32 s{T0}, s{sJ}, 14"); touch(ST0, T0, 128)
        elif what in ("w1", "w1a", "w1b"):
            srd(A, ST1, PTR(5), 512*2752)
            A(f"s_mul_i32 s{T0}, s{sJ}, 44032")
            if what == "w1b": A(f"s_add_u32 s{T0}, s{T0}, {192*128}")
            touch(ST1, T0, {"w1": 344, "w1a": 192, "w1b": 152}[what])
        elif what == "w2":
            srd(A, ST1, PTR(7), 1376*1024)
            A(f"s_mul_i32 s{T0}, s{sJ}, 44032"); touch(ST1, T0, 344)
        elif what == "fl":
            A(f"s_lshl_b32 s{T0}, s{sRBK}, 8\ns_add_u32 s{T0}, s{T0}, {WS_F1}\nv_and_b32 v1, 1, v0\nv_lshlrev_b32 v1, 7, v1\nv_lshrrev_b32 v2, 1, v0\nv_lshl_add_u32 v{VA}, v2, 12, v1")
            touch(SWS, T0, 8, VA)
            A(f"s_lshl_b32 s{T0}, s2, 4\ns_add_u32 s{T0}, s{T0}, {WS_FW}"); touch(SWS, T0, 1)
        elif what in ("pa", "pal", "pa1", "pa24"):
            A(f"s_lshl_b32 s{T0}, s{sXCD}, 3\ns_add_u32 s{T0}, s{T0}, s{sC8}\ns_lshl_b32 s{T0}, s{T0}, 2\ns_and_b32 s{T2}, s{sRB}, 3\ns_add_u32 s{T0}, s{T0}, s{T2}\ns_mul_i32 s{T0}, s{T0}, {4*PSTR}\ns_add_u32 s{T0}, s{T0}, {WS_PA}")
            if what == "pa":
                A(f"v_lshrrev_b32 v1, 5, v0\nv_mul_u32_u24 v1, {PSTR}, v1\nv_and_b32 v2, 31, v0\nv_min_u32 v2, 29, v2\nv_lshl_add_u32 v{VA}, v2, 7, v1")
                touch(SWS, T0, 128, VA, 2*PSTR)
            elif what == "pa24":
                touch(SWS, T0, 96)
            elif what == "pa1":
                A(f"v_mul_u32_u24 v{VA}, {PSTR}, v0\ns_add_u32 s{T0}, s{T0}, {2*1024}")
                touch(SWS, T0, 4, VA)
            else:
                A(f"v_lshrrev_b32 v1, 3, v0\nv_mul_u32_u24 v1, {PSTR}, v1\nv_and_b32 v2, 7, v0\nv_min_u32 v2, 4, v2\nv_lshl_add_u32 v{VA}, v2, 7, v1\ns_add_u32 s{T0}, s{T0}, {5*GST}")
                touch(SWS, T0, 32, VA)
        elif what == "pc":
            A(f"s_lshl_b32 s{T0}, s{sXCD}, 5\ns_lshl_b32 s{T1}, s{sC8}, 2\ns_add_u32 s{T0}, s{T0}, s{T1}\ns_and_b32 s{T2}, s{sRB}, 3\ns_add_u32 s{T0}, s{T0}, s{T2}\ns_lshl_b32 s{T0}, s{T0}, 11\ns_add_u32 s{T0}, s{T0}, {WS_PC}")
            touch(SWS, T0, 15)
        elif what == "pb1":
            A(f"s_lshl_b32 s{T0}, s{sC8}, 2\ns_and_b32 s{T2}, s{sRB}, 3\ns_add_u32 s{T0}, s{T0}, s{T2}\ns_lshl_b32 s{T0}, s{T0}, 3\ns_add_u32 s{T0}, s{T0}, s{sXCD}\ns_mul_i32 s{T0}, s{T0}, {PSTR}\ns_add_u32 s{T0}, s{T0}, {WS_PB + 2*1024}")
            touch(SWS, T0, 1)
        elif what in ("o", "h", "h1"):
            st = {"o": CFG.ost, "h": CFG.hst, "h1": CFG.h1st}[what]
            base = {"o": WS_O, "h": WS_H, "h1": WS_H1}[what]
            A(f"s_mul_i32 s{T0}, s{sXCD}, {8*st}\ns_mul_i32 s{T1}, s{sJ}, {st//4}\ns_add_u32 s{T0}, s{T0}, s{T1}\ns_add_u32 s{T0}, s{T0}, {base}")
            touch(SWS, T0, st // 512)
        elif what == "st":
            A(f"s_lshl_b32 s{T0}, s{sXCD}, 15\ns_lshl_b32 s{T1}, s{sJ}, 10\ns_add_u32 s{T0}, s{T0}, s{T1}\ns_add_u32 s{T0}, s{T0}, {WS_ST}")
            touch(SWS, T0, 8)
        elif what == "wait":
            A("s_waitcnt vmcnt(0)")
        elif what.startswith("nop"):
            for _ in range(int(what[3:])): A("s_nop 15")
        else:
            raise ValueError(what)
    for w_ in CFG.tl.split(","):
        if w_: do(w_)
    g1 = [g for g in A.groups if g]
    A.groups = [[]]
    for w_ in CFG.t2.split(","):
        if w_: do(w_)
    g2 = [g for g in A.groups if g]
    A = Aout
    pace = [int(x) for x in CFG.pace.split(",")]
    def emit(n):
        for _ in range(n):
            if g1:
                for t in g1.pop(0): A(t)
    emit(pace[0])
    for c in range(8):
        A("s_barrier")
        emit(pace[c+1])
    emit(99)
    hstamp(A, 5)
    A("s_branch L_HEND")

    A.label("L_REG")
    ctl_setup(A, 11, 10, 12)
    A("v_mov_b32 v12, 0\nv_mov_b32 v13, 0\nv_mov_b32 v14, 0\nv_mov_b32 v15, 0\ns_mov_b64 exec, 3")
    for i in range(4):
        A(f"ds_write_b128 v11, v[12:15] offset:{16*i}")
    A(f"s_mov_b64 exec, -1\nv_mov_b32 v6, {QW[0]}")
    A("s_waitcnt lgkmcnt(0)")
    srd(A, SWS, PTR(11), WS_SIZE)
    srd(A, SDBG, PTR(10), 256)
    A("v_mov_b32 v21, 0")
    A(f"s_cmp_lg_u32 s2, 0\ns_cbranch_scc1 S_NONONCE")
    A(f"s_memrealtime s[{T2}:{T3}]\ns_waitcnt lgkmcnt(0)\ns_lshl_b32 s{T2}, s{T2}, 4\ns_or_b32 s{T2}, s{T2}, 8\nv_mov_b32 v22, s{T2}\ns_mov_b64 exec, 1")
    A(f"buffer_store_dword v22, v21, {s(SDBG,4)}, 0 offen sc0 sc1\ns_mov_b64 exec, -1")
    A.label("S_NONONCE")
    sXCC, sRBL = T6, T7
    A(f"s_getreg_b32 s{sXCC}, hwreg(HW_REG_XCC_ID)\ns_and_b32 s{sXCC}, s{sXCC}, 7\ns_and_b32 s{sRBL}, s{sRB}, 3")
    A("s_barrier")
    A(f"buffer_load_dword v24, v21, {s(SDBG,4)}, 0 offen sc1")
    A("s_barrier\ns_barrier")
    A.label("S_NP")
    A(f"s_waitcnt vmcnt(0)\nv_readfirstlane_b32 s{sNONCE}, v24\ns_cmp_lg_u32 s{sNONCE}, 0\ns_cbranch_scc1 S_NOK")
    A(f"buffer_load_dword v24, v21, {s(SDBG,4)}, 0 offen sc1\ns_sub_u32 s{sSPIN}, s{sSPIN}, 1\ns_cmp_lt_i32 s{sSPIN}, 0\ns_cbranch_scc0 S_NP")
    A.label("S_NOK")
    A(f"v_mov_b32 v22, s{sNONCE}\ns_mov_b64 exec, 3\nds_write_b32 v11, v22 offset:{C_NON}")
    ctl_add(A, 11, 10, C_E1)
    A(f"s_or_b32 s{T5}, s{sNONCE}, s{sXCC}\nv_mov_b32 v22, s{T5}\ns_lshl_b32 s{T4}, s{sXCD}, 7\ns_add_u32 s{T4}, s{T4}, {WS_REG}\ns_lshl_b32 s{T0}, s{sJ}, 2\ns_add_u32 s{T0}, s{T0}, s{T4}\ns_mov_b64 exec, 1")
    A(f"buffer_store_dword v22, v21, {s(SWS,4)}, s{T0} offen sc1\ns_mov_b64 exec, -1")
    A("v_lshlrev_b32 v20, 2, v0\nv_and_b32 v20, 127, v20")
    n1 = CFG.regat - 2
    A("\n".join(["s_barrier"] * n1))
    A(f"buffer_load_dword v24, v20, {s(SWS,4)}, s{T4} offen sc1")
    A("\n".join(["s_barrier"] * (5 - n1)))
    A.label("S_RP")
    A(f"s_waitcnt vmcnt(0)\nv_and_b32 v25, -8, v24\nv_cmp_ne_u32 vcc, s{sNONCE}, v25\ns_cbranch_vccz S_ROK")
    A(f"buffer_load_dword v24, v20, {s(SWS,4)}, s{T4} offen sc1\ns_sub_u32 s{sSPIN}, s{sSPIN}, 1\ns_cmp_lt_i32 s{sSPIN}, 0\ns_cbranch_scc0 S_RP")
    A.label("S_ROK")
    A(f"s_waitcnt vmcnt(0)\nv_cmp_ne_u32 vcc, s{T5}, v24\ns_cmp_eq_u64 vcc, 0\ns_cselect_b32 s{sFAST}, {1 if CFG.fast else 0}, 0")
    A(f"v_mov_b32 v23, s{sFAST}\ns_mov_b64 exec, 3\nds_write_b32 v11, v23 offset:{C_NON+4}\ns_mov_b64 exec, -1")
    SA = 8
    G, TMP, L = 32, 64, 64
    slot_addr(A, SA, 1)
    pair_gather(A, 9, 7, sRBL)
    sPA = T4
    A(f"s_lshl_b32 s{T0}, s{sXCD}, 3\ns_add_u32 s{T0}, s{T0}, s{sC8}\ns_lshl_b32 s{T0}, s{T0}, 4\ns_add_u32 s{T0}, s{T0}, s{sRBL}\ns_mul_i32 s{sPA}, s{T0}, {PSTR}\ns_add_u32 s{sPA}, s{sPA}, {WS_PA}")
    for k in range(1, 4):
        A(f"s_xor_b32 s{T0}, s{sRBL}, {k}\ns_mul_i32 s{T0}, s{T0}, {4*PSTR}\ns_add_u32 s{sK1+k-1}, s{sPA}, s{T0}")
    sHD = T5
    A(f"s_lshl_b32 s{sHD}, s{sC8}, 2\ns_add_u32 s{sHD}, s{sHD}, s{sRBL}")
    sPB = T4
    A(f"s_mul_i32 s{sPB}, s{sHD}, {8*PSTR}\ns_add_u32 s{sPB}, s{sPB}, {WS_PB}")
    for k in range(0, 8):
        A(f"s_xor_b32 s{T0}, s{sXCD}, {k}\ns_mul_i32 s{T0}, s{T0}, {PSTR}\ns_add_u32 s{8+k}, s{T0}, s{sPB}")
    A(f"s_lshl_b32 s{T0}, s{sXCD}, 5\ns_add_u32 s{T0}, s{T0}, s{sHD}\ns_lshl_b32 s{T0}, s{T0}, 11\ns_add_u32 s7, s{T0}, {WS_PC}")
    A("s_setprio 3")
    ctl_wait(A, 11, 26, C_E2, 4, 1)
    pair_gather2(A, G, TMP, 9, 7)
    ctl_add(A, 11, 10, C_QW)
    def level(srcs, pre):
        loads = []; tags = []
        for k, sr in enumerate(srcs):
            for g in range(3):
                loads.append(f"buffer_load_dwordx4 {v(L+12*k+4*g,4)}, v{VL16}, {s(SWS,4)}, s{sr} offen offset:{g*1024} sc1")
                tags.append(L+12*k+4*g+3)
        if pre:
            A("s_mov_b64 exec, 1")
            tagged_poll(A, loads[2::3], tags[2::3], CFG.psleep)
            A("s_mov_b64 exec, -1")
            hstamp(A, pre)
        tagged_poll(A, loads, tags)
        for k in range(len(srcs)):
            for r in range(0, 12, 2):
                A(f"v_pk_add_f32 {v(G+r,2)}, {v(G+r,2)}, {v(L+12*k+r,2)}")
    level([sK1, sK1+1, sK1+2], 1 if (CFG.prepoll1 and not CFG.pa_fast) else 0)
    hstamp(A, 6)
    set_tags(A, G, 3)
    for g in range(3):
        A(f"buffer_store_dwordx4 {v(G+4*g,4)}, v{VL16}, {s(SWS,4)}, s8 offen offset:{g*1024} sc1")
    if CFG.w2t == 2:
        srd(A, ST1, PTR(7), 1376*1024)
        A(f"s_mul_i32 s{T0}, s{sJ}, 44032\nv_lshlrev_b32 v6, 7, v0\ns_mov_b64 exec, 1")
        for k in range(7):
            A(f"buffer_load_dwordx4 {v(L+4*k,4)}, v{VL16}, {s(SWS,4)}, s{9+k} offen offset:2048 sc1")
        A(f"s_waitcnt vmcnt(0)\nv_xor_b32 v62, s{sNONCE}, v{L+3}")
        for k in range(1, 7):
            A(f"v_xor_b32 v63, s{sNONCE}, v{L+4*k+3}\nv_or_b32 v62, v62, v63")
        A("v_cmp_ne_u32 vcc, 0, v62\ns_mov_b64 exec, -1\ns_cbranch_vccz S_NOW2")
        for k in range(6):
            if k == 5: A("s_mov_b64 exec, 0xffffff")
            A(f"buffer_load_dword v250, v6, {s(ST1,4)}, s{T0} offen\ns_add_u32 s{T0}, s{T0}, 8192")
        A("s_mov_b64 exec, -1")
        A.label("S_NOW2")
    hstamp(A, 8)
    A.label("L_HEND")
    stamp_out(A, 4)
    A("s_endpgm")

def reduce4(A, pfx, ACCB, tmp, pre=(), post=()):
    aw = tmp + 64
    A(f"s_lshl_b32 s{T0}, s{sW}, 14\nv_add_u32 v{aw}, s{T0}, v{VL16}")
    for k in range(1, 4):
        A(f"s_xor_b32 s{T0}, s{sW}, {k}\ns_lshl_b32 s{T0}, s{T0}, 14\nv_add_u32 v{aw+k}, s{T0}, v{VL16}")
    for j in (1, 2, 3):
        for q in range(4):
            A(f"ds_write_b128 v{aw}, {v(ACCB+16*j+4*q,4)} offset:{j*4096+q*1024}")
            if pre: A(pre[0]); pre = pre[1:]
    A("s_waitcnt lgkmcnt(0)\ns_barrier")
    for k in range(1, 4):
        for q in range(4):
            A(f"ds_read_b128 {v(tmp+16*k+4*q,4)}, v{aw+k} offset:{k*4096+q*1024}")
    late = list(pre) + list(post)
    for k in range(1, 4):
        for q in range(4):
            if late: A(late.pop(0))
            A(f"s_waitcnt lgkmcnt({11 - 4*(k-1) - q})")
            for r in range(4*q, 4*q+4, 2):
                A(f"v_pk_add_f32 {v(ACCB+r,2)}, {v(ACCB+r,2)}, {v(tmp+16*k+r,2)}")
    for o in late: A(o)
    return ACCB

def finish_stats(A, sx, sxx, nm, rstd, t):
    A(f"v_mul_f32 v{nm}, s{sK1}, v{sx}")
    A(f"v_mul_f32 v{t}, v{nm}, v{nm}")
    A(f"v_fma_f32 v{t}, v{sxx}, s{sK1}, -v{t}")
    A(f"v_max_f32 v{t}, 0, v{t}")
    A(f"v_add_f32 v{t}, s{sK2}, v{t}")
    A(f"v_rsq_f32 v{rstd}, v{t}")
    A(f"v_sub_f32 v{nm}, 0, v{nm}")

def compute(A):
    A(f"s_and_b32 s{sRH}, s{sW}, 1\ns_lshr_b32 s{sHH}, s{sW}, 1")
    ROW, HALF = 1, 2
    XA, WA, QA = 8, 12, 16
    SEL = 20
    ONES, SXX = 5, 6
    RSA, CSK, CSV = 24, 28, 32
    FX = [36, 40]; FW = [44, 52]
    AK, AV = 64, 80
    ID, PW = 112, 120
    A(f"v_and_b32 v{ROW}, 31, v0\nv_lshrrev_b32 v{HALF}, 5, v0")
    A(f"v_lshrrev_b32 v3, 1, v{ROW}\nv_and_b32 v3, 7, v3\nv_xor_b32 v3, v3, v{HALF}\nv_lshlrev_b32 v3, 4, v3")
    A(f"v_lshl_add_u32 v3, v{ROW}, 7, v3\ns_lshl_b32 s{T0}, s{sRH}, 12\nv_add_u32 v3, s{T0}, v3")
    for k in range(4):
        A(f"s_xor_b32 s{T0}, s{sW}, {k}\ns_lshl_b32 s{T0}, s{T0}, 5\nv_xor_b32 v{XA+k}, s{T0}, v3")
    A(f"v_bfe_u32 v3, v0, 2, 2\nv_lshlrev_b32 v7, 7, v3\nv_lshrrev_b32 v3, 1, v3\nv_xor_b32 v3, s{sHH}, v3\nv_lshl_add_u32 v7, v3, 6, v7")
    A(f"v_bfe_u32 v3, v0, 4, 1\nv_lshl_add_u32 v7, v3, 5, v7\nv_and_b32 v3, 3, v0\nv_lshl_add_u32 v7, v3, 3, v7\nv_add_u32 v7, {RING}, v7")
    A(f"v_lshl_add_u32 v60, v{HALF}, 11, v7\nv_lshl_add_u32 v61, v{HALF}, 10, v7")
    for k in range(4):
        A(f"s_xor_b32 s{T0}, s{sW}, {k}\ns_lshl_b32 s{T1}, s{T0}, 12\nv_add_u32 v{WA+k}, s{T1}, v60\ns_lshl_b32 s{T1}, s{T0}, 11\nv_add_u32 v{QA+k}, s{T1}, v61")
    A(f"v_mov_b32 v{ONES}, 0x3f803f80\nv_mov_b32 v{SXX}, 0")
    A(f"v_lshrrev_b32 v3, 2, v0\nv_xor_b32 v3, v3, v0\nv_and_b32 v3, 4, v3\nv_and_b32 v7, 3, v0\nv_or_b32 v3, v3, v7\nv_cmp_eq_u32 vcc, 0, v3")
    for i in range(4):
        A(f"v_cndmask_b32 v{SEL+i}, 0, v{ONES}, vcc")
    A(f"s_mov_b32 s{sK1}, {fbits(1/512)}\ns_mov_b32 s{sK2}, {fbits(1e-5)}\ns_mov_b32 s{sK3}, {fbits(LOG2E)}")
    A(f"v_and_b32 v60, 1, v0\nv_cmp_eq_u32 vcc, 1, v60\nv_mov_b32 v61, 0x3f80\nv_mov_b32 v62, 0x3f800000\nv_cndmask_b32 v61, v61, v62, vcc")
    A(f"v_bfe_u32 v60, v0, 2, 1\nv_cmp_eq_u32 vcc, v60, v{HALF}\nv_cndmask_b32 v61, 0, v61, vcc")
    A("v_bfe_u32 v60, v0, 3, 2\nv_lshlrev_b32 v60, 1, v60\nv_bfe_u32 v62, v0, 1, 1\nv_or_b32 v60, v60, v62")
    for r in range(8):
        A(f"v_cmp_eq_u32 vcc, {r}, v60\nv_cndmask_b32 v{ID+r}, 0, v61, vcc")
    A(f"v_bfe_u32 v60, v0, 2, 2\nv_lshl_add_u32 v60, v{HALF}, 2, v60\nv_lshlrev_b32 v60, 5, v60\nv_and_b32 v61, 3, v0\nv_lshl_add_u32 v60, v61, 3, v60")
    A(f"s_lshl_b32 s{T0}, s{sW}, 13\ns_add_u32 s{T0}, s{T0}, {RL}\nv_add_u32 v60, s{T0}, v60")
    A("v_bfe_u32 v61, v0, 4, 1\nv_mul_u32_u24 v61, 0x8000, v61\nv_lshl_or_b32 v61, v61, 16, v61")
    ctl_setup(A, 110, 111, 62)
    common_srds(A)

    def reads(sq, sg_, b):
        A(f"ds_read_b128 {v(FX[b],4)}, v{XA+sg_} offset:{XL + sq*8192}")
        for sg in range(2):
            for t in range(2):
                A(f"ds_read_b64_tr_b16 {v(FW[b]+4*sg+2*t,2)}, v{WA+sg_} offset:{(sq&3)*16384 + sg*1024 + t*512}")
    for c in range(8):
        A("s_barrier")
        if c in (2, 4): stamp(A, f"B{c}")
        if c == 0:
            stamp(A, "B0")
            for e in range(2):
                for t in range(2):
                    A(f"ds_read_b64_tr_b16 {v(PW+4*e+2*t,2)}, v60 offset:{e*512+t*256}")
        reads(c, 0, 0)
        for k in range(4):
            b = k & 1
            if k < 3: reads(c, k + 1, b ^ 1)
            A(f"s_waitcnt lgkmcnt({5 if k < 3 else 0})")
            if c == 0 and k == 0:
                for i in range(8):
                    A(f"v_xor_b32 v{PW+i}, v{PW+i}, v61")
            first = (c == 0 and k == 0)
            X = FX[b]; W = FW[b]
            mfma(A, AK, W, X, None if first else AK)
            if k in (0, 3):
                m16(A, CSK, SEL, W, None if first else CSK)
            else:
                m16(A, RSA, SEL, X, None if (c == 0 and k == 1) else RSA)
            mfma(A, AV, X, W+4, None if first else AV)
            if k in (0, 3):
                m16(A, CSV, SEL, W+4, None if first else CSV)
            else:
                for i in range(4):
                    A(f"v_dot2c_f32_bf16 v{SXX}, v{X+i}, v{X+i}")
    stamp(A, "loop")
    A(f"s_xor_b32 s{T0}, s{sW}, 1\ns_lshl_b32 s{T0}, s{T0}, 13\ns_add_u32 s{T0}, s{T0}, {RL+4096}\nv_lshl_add_u32 v36, v0, 2, s{T0}")
    A(f"s_xor_b32 s{T0}, s{sW}, 2\ns_lshl_b32 s{T0}, s{T0}, 13\ns_add_u32 s{T0}, s{T0}, {RL+4096}\nv_lshl_add_u32 v37, v0, 2, s{T0}")
    A(f"s_lshl_b32 s{T0}, s{sW}, 13\ns_add_u32 s{T0}, s{T0}, {RL+4096}\nv_lshl_add_u32 v38, v0, 2, s{T0}")
    A(f"ds_write_b32 v37, v{SXX} offset:768")
    A(f"ds_write_b32 v37, v{RSA} offset:512")
    A(f"ds_write_b32 v36, v{CSK}")
    A(f"ds_write_b32 v36, v{CSV} offset:256")
    A(f"s_add_u32 s{T0}, s{T0}, 1024\nv_lshl_add_u32 v39, v{ROW}, 2, s{T0}\nv_lshl_add_u32 v40, v{HALF}, 4, s{T0}")
    ctl_add(A, 110, 111, C_E1)
    ctl_wait(A, 110, 62, C_E1, 5)
    stamp(A, "E1")
    A(f"ds_read_b64 v[102:103], v110 offset:{C_NON}")
    A(f"ds_read2st64_b32 v[44:45], v38 offset0:2 offset1:3")
    A(f"ds_read2st64_b32 v[46:47], v38 offset0:0 offset1:1")
    A("v_cmp_gt_u32 vcc, 32, v0")
    A("s_waitcnt lgkmcnt(1)")
    NM, RSTD = 48, 49
    A(f"v_add_f32 v{RSA}, v{RSA}, v44\nv_add_f32 v{SXX}, v{SXX}, v45\nv_mov_b32 v50, v{SXX}")
    A(f"v_permlane32_swap_b32 v{SXX}, v50\nv_add_f32 v{SXX}, v{SXX}, v50")
    finish_stats(A, RSA, SXX, NM, RSTD, 50)
    A(f"ds_write_b32 v39, v{RSTD}")
    NF = 104
    A(f"v_cvt_pk_bf16_f32 v{NF+1}, v{NM}, 0\nv_lshlrev_b32 v50, 16, v{NF+1}\nv_sub_f32 v50, v{NM}, v50\nv_cvt_pk_bf16_f32 v{NF}, v{NM}, v50")
    A(f"v_mov_b32 v{NF+2}, 0\nv_mov_b32 v{NF+3}, 0")
    RS = 128
    A("s_waitcnt lgkmcnt(0)")
    for q in range(4):
        A(f"ds_read_b128 {v(RS+4*q,4)}, v40 offset:{q*32}")
    def cs_frag(cs, F):
        A(f"v_cndmask_b32 v{cs}, 0, v{cs}, vcc")
        A(f"v_cvt_pk_bf16_f32 v{F}, v{cs}, v{cs}\nv_lshlrev_b32 v50, 16, v{F}\nv_sub_f32 v50, v{cs}, v50")
        A(f"v_cvt_pk_bf16_f32 v{F+1}, v50, 0\nv_mov_b32 v{F+2}, 0\nv_mov_b32 v{F+3}, 0")
    A(f"v_add_f32 v{CSK}, v{CSK}, v46")
    cs_frag(CSK, 52)
    mfma(A, AK, 52, NF, AK)
    A(f"v_add_f32 v{CSV}, v{CSV}, v47")
    cs_frag(CSV, 56)
    mfma(A, AV, NF, 56, AV)
    CK = 108
    A(f"v_mul_f32 v{CK}, s{sK3}, v{RSTD}")
    def scale_pack(acc, outb):
        for i in range(0, 16, 2):
            A(f"v_pk_mul_f32 {v(acc+i,2)}, {v(acc+i,2)}, {v(CK,2)} op_sel_hi:[1,0]")
        for i in range(8):
            A(f"v_cvt_pk_bf16_f32 v{outb+i}, v{acc+2*i}, v{acc+2*i+1}")
    KB = 36
    P = [144, 160]
    scale_pack(AK, KB)
    mfma(A, P[0], PW, KB)
    mfma(A, P[1], PW+4, KB+4)
    A("s_waitcnt lgkmcnt(0)")
    VB, V0, V1 = 44, 52, 176
    for i in range(0, 16, 2):
        A(f"v_pk_mul_f32 {v(AV+i,2)}, {v(AV+i,2)}, {v(RS+i,2)}")
    for i in range(8):
        A(f"v_cvt_pk_bf16_f32 v{VB+i}, v{AV+2*i}, v{AV+2*i+1}")
    A("v_and_b32 v60, 16, v0\nv_cmp_eq_u32 vcc, 0, v60")
    for i in range(8):
        A(f"v_cndmask_b32 v{V0+i}, v{ONES}, v{VB+i}, vcc")
    for i in range(8):
        A(f"v_cndmask_b32 v{V1+i}, v{VB+i}, v{ONES}, vcc")
    TM = 184; PK = [192, 200]; T = [64, 80]; TB = [36, 44]; KV = [208, 224]
    softmax_tile(A, P[0], PK[0], TM)
    mfma(A, T[0], PK[0], ID); mfma(A, T[0], PK[0]+4, ID+4, T[0])
    softmax_tile(A, P[1], PK[1], TM)
    mfma(A, T[1], PK[1], ID); mfma(A, T[1], PK[1]+4, ID+4, T[1])
    A(f"s_lshl_b32 s{T0}, s{sW}, 13\ns_add_u32 s{T0}, s{T0}, {RL}\nv_add_u32 v60, s{T0}, v{VL16}")
    A(f"v_readfirstlane_b32 s{sNONCE}, v102\nv_readfirstlane_b32 s{sFAST}, v103")
    pair_gather(A, 61, 101, sW)
    for e in range(2):
        for i in range(8):
            A(f"v_cvt_pk_bf16_f32 v{TB[e]+i}, v{T[e]+2*i}, v{T[e]+2*i+1}")
        Ve = V0 if e == 0 else V1
        mfma(A, KV[e], TB[e], Ve); mfma(A, KV[e], TB[e]+4, Ve+4, KV[e])
    stamp(A, "smdone")
    SA = 63
    slot_addr(A, SA, 3)
    A(f"s_lshl_b32 s{T0}, s{sXCD}, 3\ns_add_u32 s{T0}, s{T0}, s{sC8}\ns_lshl_b32 s{T0}, s{T0}, 2\ns_and_b32 s{T6}, s{sRB}, 3\ns_add_u32 s{T0}, s{T0}, s{T6}\ns_lshl_b32 s{T0}, s{T0}, 2\ns_add_u32 s{T0}, s{T0}, s{sW}\ns_mul_i32 s{T7}, s{T0}, {PSTR}\ns_add_u32 s{T7}, s{T7}, {WS_PA}")
    G = 64
    set_tags(A, G, 3)
    for e in range(2):
        m_ = GMASK if e == 0 else "0xffff0001"
        A(f"s_mov_b32 exec_lo, {m_}\ns_mov_b32 exec_hi, {m_}")
        for q in range(4):
            A(f"ds_write_b128 v60, {v(KV[e]+4*q,4)} offset:{e*4096+q*1024}")
    ctl_add(A, 110, 111, C_E2)
    ctl_wait(A, 110, 62, C_E2, 4)
    stamp(A, "E2")
    A(f"s_cmp_eq_u32 s{T6}, s{sW}\ns_cbranch_scc1 C_NOPA")
    pair_gather2(A, G, 144, 61, 101)
    hstore(A, [f"buffer_store_dwordx4 {v(G+4*g,4)}, v{VL16}, {s(SWS,4)}, s{T7} offen offset:{g*1024}" for g in range(3)], not CFG.pa_fast)
    A.label("C_NOPA")
    stamp(A, "atom")
    ctl_wait(A, 110, 62, C_WQ, 2)
    AQ = 128; CSQ = 28
    def qreads(n, b):
        sq, k = n >> 2, n & 3
        A(f"ds_read_b128 {v(FX[b],4)}, v{XA+k} offset:{XL + sq*8192}")
        for t in range(2):
            A(f"ds_read_b64_tr_b16 {v(FW[b]+2*t,2)}, v{QA+k} offset:{sq*8192 + t*512}")
    FW[0], FW[1] = 44, 48
    FX3 = [36, 40, 52]; FW3 = [44, 48, 56]
    def qreads3(n):
        sq, k = n >> 2, n & 3
        b = n % 3
        A(f"ds_read_b128 {v(FX3[b],4)}, v{XA+k} offset:{XL + sq*8192}")
        for t in range(2):
            A(f"ds_read_b64_tr_b16 {v(FW3[b]+2*t,2)}, v{QA+k} offset:{sq*8192 + t*512}")
    qreads3(0); qreads3(1)
    for n in range(32):
        if n + 2 < 32: qreads3(n + 2)
        A(f"s_waitcnt lgkmcnt({3*min(2, 31-n)})")
        mfma(A, AQ, FW3[n % 3], FX3[n % 3], None if n == 0 else AQ)
        m16(A, CSQ, SEL, FW3[n % 3], None if n == 0 else CSQ)
    stamp(A, "qgemm")
    ctl_add(A, 110, 111, C_QW)
    A("v_cmp_gt_u32 vcc, 32, v0")
    cs_frag(CSQ, 52)
    mfma(A, AQ, 52, NF, AQ)
    QB = 36
    scale_pack(AQ, QB)
    mfma(A, P[0], PW, QB)
    mfma(A, P[1], PW+4, QB+4)
    PHQ = 192
    TA0, TA1, VXR = 12, 13, 14
    A(f"v_bfe_u32 v3, v0, 2, 2\nv_lshl_add_u32 v60, v{HALF}, 2, v3\nv_lshlrev_b32 v{TA0}, 7, v60\nv_lshrrev_b32 v3, 1, v3\nv_lshl_add_u32 v{TA0}, v3, 6, v{TA0}")
    A(f"v_bfe_u32 v3, v0, 4, 1\nv_lshl_add_u32 v{TA0}, v3, 5, v{TA0}\nv_and_b32 v3, 3, v0\nv_lshl_add_u32 v{TA0}, v3, 3, v{TA0}")
    A(f"s_lshl_b32 s{T0}, s{sW}, 14\nv_add_u32 v{TA0}, s{T0}, v{TA0}\ns_lshl_b32 s{T0}, s{sHH}, 6\nv_xor_b32 v{TA0}, s{T0}, v{TA0}\nv_xor_b32 v{TA1}, 64, v{TA0}")
    A(f"v_lshlrev_b32 v{VXR}, 10, v{ROW}\nv_lshl_add_u32 v{VXR}, v{HALF}, 3, v{VXR}")
    softmax_tile(A, P[0], PHQ, TM)
    XR = 16
    A(f"s_lshl_b32 s{T0}, s{sRB}, 16\ns_lshl_b32 s{T1}, s{sRH}, 15\ns_add_u32 s{T0}, s{T0}, s{T1}\ns_lshl_b32 s{T1}, s{sC8}, 7\ns_add_u32 s{T0}, s{T0}, s{T1}\ns_lshl_b32 s{T1}, s{sHH}, 6\ns_add_u32 s{T0}, s{T0}, s{T1}")
    for q in range(4):
        A(f"buffer_load_dwordx2 {v(XR+2*q,2)}, v{VXR}, {s(SX_,4)}, s{T0} offen offset:{q*16}")
    softmax_tile(A, P[1], PHQ+8, TM)
    stamp(A, "arrv")
    A(f"s_lshl_b32 s{T6}, s{sC8}, 2\ns_add_u32 s{T5}, s{T6}, s{sW}\ns_mul_i32 s{T5}, s{T5}, {8*PSTR}\ns_add_u32 s{T5}, s{T5}, {WS_PB}")
    A(f"s_lshl_b32 s{T0}, s{sHH}, 1\ns_add_u32 s{T6}, s{T6}, s{T0}\ns_lshl_b32 s{T1}, s{sRB}, 1")
    for k in range(8):
        A(f"s_add_u32 s{T0}, s{T1}, {k}\ns_and_b32 s{T0}, s{T0}, 7\ns_mul_i32 s{T0}, s{T0}, {PSTR}\ns_add_u32 s{8+k}, s{T0}, s{T5}")
    L = 64
    SCR = 65536 + 7*12288
    A(f"s_mul_i32 s{T0}, s{sHH}, 5504\ns_add_u32 s{T0}, s{T0}, {SCR}\ns_mul_i32 s{T1}, s{sRH}, 2304\ns_add_u32 s{T1}, s{T1}, s{T0}\nv_lshl_add_u32 v59, v0, 2, s{T1}")
    A(f"v_lshlrev_b32 v3, 4, v{ROW}\nv_lshl_add_u32 v3, v{HALF}, 8, v3\nv_lshlrev_b32 v60, 4, v{HALF}\nv_add_u32 v60, 2048, v60\nv_cmp_gt_u32 vcc, 16, v{ROW}")
    for q in range(4):
        A(f"v_add_u32 v61, {q*512}, v3\nv_add_u32 v62, {q*32}, v60\nv_cndmask_b32 v{8+q}, v62, v61, vcc\nv_add_u32 v{8+q}, s{T0}, v{8+q}")
    A(f"s_lshl_b32 s{T0}, s{sHH}, 2\nv_add_u32 v58, s{T0}, v110\nv_mov_b32 v56, v110\nv_mov_b32 v57, 1")
    ctl_wait(A, 110, 62, C_QW, 5)
    if CFG.ddw and not CFG.w1c: ctl_wait(A, 110, 62, C_FULL, 2, 2)
    A(f"ds_read_b32 v62, v110 offset:{C_NON+4}\ns_waitcnt lgkmcnt(0)\nv_readfirstlane_b32 s{sFAST}, v62")
    loads = []; tags = []
    for k in range(8):
        for g in range(3):
            loads.append(f"buffer_load_dwordx4 {v(L+12*k+4*g,4)}, v{VL16}, {s(SWS,4)}, s{8+k} offen offset:{g*1024} sc1")
            tags.append(L+12*k+4*g+3)
    A("s_mov_b64 exec, 1")
    tagged_poll(A, loads[2::3], tags[2::3], CFG.psleep)
    A("s_mov_b64 exec, -1")
    stamp(A, "kvld")
    tagged_poll(A, loads, tags)
    for k in range(1, 8):
        for r in range(0, 12, 2):
            A(f"v_pk_add_f32 {v(L+r,2)}, {v(L+r,2)}, {v(L+12*k+r,2)}")
    for i in range(9):
        A(f"ds_write_b32 v59, v{gval(L,i)} offset:{i*256}")
    ctl_add(A, 58, 57, C_KV)
    ctl_wait(A, 58, 62, C_KV, 2)
    KVR = 160
    for e in range(2):
        for q in range(4):
            A(f"ds_read_b128 {v(KVR+16*e+4*q,4)}, v{8+q} offset:{e*2304}")
    stamp(A, "syncA")
    A(f"s_mov_b32 s{sK3}, {fbits(1e-6)}")
    A(f"s_lshl_b32 s{T0}, s{sRB}, 1\ns_add_u32 s{T0}, s{T0}, s{sRH}\ns_mul_i32 s{T0}, s{T0}, {CFG.ost}\ns_lshl_b32 s{T4}, s{T6}, 10\ns_add_u32 s{T4}, s{T4}, s{T0}")
    KA = 88; O = [128, 144]; OB = 104; RC = 112
    for e in range(2):
        A(f"s_waitcnt lgkmcnt({4*(1-e)})")
        if e == 1: ctl_add(A, 56, 57, C_SV)
        for r in range(8):
            A(f"v_cvt_pk_bf16_f32 v{KA+8*e+r}, v{KVR+16*e+2*r}, v{KVR+16*e+2*r+1}")
        mfma(A, O[e], KA+8*e, PHQ+8*e); mfma(A, O[e], KA+8*e+4, PHQ+8*e+4, O[e])
    for e in range(2):
        A(f"v_add_f32 v{RC}, s{sK3}, v{O[e]+8}\nv_rcp_f32 v{RC}, v{RC}")
        for r in range(0, 8, 2):
            A(f"v_pk_mul_f32 {v(O[e]+r,2)}, {v(O[e]+r,2)}, {v(RC,2)} op_sel_hi:[1,0]")
        for r in range(4):
            A(f"v_cvt_pk_bf16_f32 v{OB+4*e+r}, v{O[e]+2*r}, v{O[e]+2*r+1}")
    hstore(A, [f"buffer_store_dwordx4 {v(OB+4*e,4)}, v{VL16}, {s(SWS,4)}, s{T4} offen offset:{e*1024}" for e in range(2)], CFG.o_sc1)
    A(f"s_lshl_b32 s{T3}, s{sRB}, 7\ns_add_u32 s{T3}, s{T3}, {WS_F1}")
    stamp(A, "ostore")
    A(f"s_lshl_b32 s{T0}, s{sC8}, 4\ns_lshl_b32 s{T1}, s{sW}, 2\ns_add_u32 s{T0}, s{T0}, s{T1}\ns_add_u32 s{T2}, s{T3}, s{T0}")
    A(f"s_lshl_b32 s{T0}, s{sW}, 5\ns_add_u32 s{T0}, s{T0}, s{T3}\nv_lshl_add_u32 v60, v0, 2, s{T0}")
    A(f"s_lshl_b32 s{T0}, s2, 4\ns_add_u32 s{T0}, s{T0}, s{T1}\ns_add_u32 s{T0}, s{T0}, {WS_FW}\nv_mov_b32 v61, s{T0}\nv_cmp_gt_u32 vcc, 8, v0\nv_cndmask_b32 v60, v61, v60, vcc")
    A(f"s_mul_i32 s{T4}, s{sRB}, {2*CFG.ost}\ns_lshl_b32 s{T0}, s{sW}, 13\ns_add_u32 s{T4}, s{T4}, s{T0}")
    A(f"s_mul_i32 s{T0}, s{sRH}, {CFG.ost}\ns_add_u32 s{T5}, s{T4}, {CFG.ost}\ns_sub_u32 s{T5}, s{T5}, s{T0}\ns_add_u32 s{T4}, s{T4}, s{T0}")
    A("s_waitcnt vmcnt(0)")
    flag_store(A, 62, T2)
    VB = 52
    for i in range(3):
        A(f"v_add_u32 v56, {64*i}, v0\nv_mul_u32_u24 v57, 43691, v56\nv_lshrrev_b32 v57, 19, v57\nv_mul_u32_u24 v3, 12, v57\nv_sub_u32 v56, v56, v3")
        A(f"v_mul_u32_u24 v57, 2752, v57\nv_lshl_add_u32 v{VB+i}, v56, 4, v57")
        if i: A(f"v_subrev_u32 v{VB+i}, {1024*i}, v{VB+i}")
    srd(A, ST1, PTR(5), 512*2752)
    sB1, sB2, sB3 = 8, 9, 10
    A(f"s_mul_i32 s{sB1}, s{sW}, {16*2752}\ns_mul_i32 s{T0}, s{sC16}, 192\ns_add_u32 s{sB1}, s{sB1}, s{T0}\ns_mul_i32 s{sB2}, s{sW}, 3072\ns_add_u32 s{sB2}, s{sB2}, 65536")
    A(f"s_and_b32 s{sB3}, s{sC16}, {3 if CFG.arot else 0}\ns_lshl_b32 s{sB3}, s{sB3}, 1")
    def w1dma(c):
        o_ = []
        for i in range(3):
            pre = f"s_add_u32 s11, s{sB3}, {c}\ns_and_b32 s11, s11, 7\ns_mul_i32 s11, s11, {64*2752}\ns_add_u32 s11, s11, s{sB1}\ns_add_u32 m0, s{sB2}, {c*12288}\n" if i == 0 else ""
            off = f" offset:{i*1024}" if i else ""
            o_.append(pre + f"buffer_load_dwordx4 v{VB+i}, {s(ST1,4)}, s11 offen{off} lds")
        return o_
    w1l = sum([w1dma(c) for c in range(7)], []) if CFG.w1c else []
    A(f"s_mov_b64 s[{sMASK}:{sMASK+1}], 0x1ff")
    poll(A, 61, 60, "0", f"s{sNONCE}", s(sMASK, 2))
    stamp(A, "hop1")
    AF = 64
    for k in range(8):
        for rt in range(2):
            if k % 4 == 0:
                if rt == 0: A(f"s_and_b32 s{T2}, s{sC8}, {1 if CFG.arot else 0}\ns_xor_b32 s{T2}, s{T2}, {k//4}\ns_lshl_b32 s{T2}, s{T2}, 12")
                A(f"s_add_u32 s{T0+rt}, s{T4+rt}, s{T2}")
            A(f"buffer_load_dwordx4 {v(AF+8*k+4*rt,4)}, v{VL16}, {s(SWS,4)}, s{T0+rt} offen offset:{(k%4)*1024} sc1")
    WF = [36, 44]
    ACC = lambda nt, rt: 192 + (2*nt + rt) * 16
    def woreads(k):
        for nt in range(2):
            for t in range(2):
                A(f"ds_read_b64_tr_b16 {v(WF[k&1]+4*nt+2*t,2)}, v{TA0+nt} offset:{k*2048+t*1024}")
    woreads(0)
    nw1 = 0
    for k in range(8):
        if k < 7: woreads(k + 1)
        A(f"s_waitcnt vmcnt({2*(7-k) + nw1}) lgkmcnt({4 if k < 7 else 0})")
        for rt, nt in ((1, 0), (0, 1), (1, 1), (0, 0)):
            mfma(A, ACC(nt, rt), WF[k&1]+4*nt, AF+8*k+4*rt, None if k == 0 else ACC(nt, rt))
            if 4*k + 4 > 32 - CFG.w1in*2 and (rt, nt) in ((1, 0), (1, 1)) and nw1 < CFG.w1in:
                A(w1l[nw1]); nw1 += 1
    stamp(A, "P2lp")
    if CFG.w2t == 1:
        srd(A, SW_, PTR(7), 1376*1024)
        A(f"s_mul_i32 s{T0}, s{sJ}, 44032\ns_mul_i32 s{T1}, s{sW}, 11008\ns_add_u32 s{T0}, s{T0}, s{T1}\nv_lshlrev_b32 v60, 7, v0")
        A(f"buffer_load_dword v61, v60, {s(SW_,4)}, s{T0} offen\ns_add_u32 s{T0}, s{T0}, 8192\ns_mov_b64 exec, 0x3fffff")
        A(f"buffer_load_dword v62, v60, {s(SW_,4)}, s{T0} offen\ns_mov_b64 exec, -1")
    R = reduce4(A, "P2", 192, 96, w1l[nw1:], w1dma(7) if CFG.w1c else [])
    stamp(A, "P2red")
    for r in range(8):
        A(f"v_lshlrev_b32 v36, 16, v{XR+r}\nv_and_b32 v37, 0xffff0000, v{XR+r}")
        A(f"v_pk_add_f32 {v(R+2*r,2)}, {v(R+2*r,2)}, v[36:37]")
        A(f"v_cvt_pk_bf16_f32 v{40+r}, v{R+2*r}, v{R+2*r+1}")
    sHO = 7
    A(f"s_lshl_b32 s{T0}, s{sRB}, 1\ns_add_u32 s{T0}, s{T0}, s{sRH}\ns_lshl_b32 s{T1}, s{sC8}, 1\ns_add_u32 s{T1}, s{T1}, s{sHH}")
    A(f"s_mul_i32 s{sHO}, s{T0}, {CFG.hst}\ns_lshl_b32 s{T2}, s{T1}, 11\ns_add_u32 s{sHO}, s{sHO}, s{T2}\ns_add_u32 s{sHO}, s{sHO}, {WS_H}")
    A(f"v_pk_mul_f32 v[38:39], {v(R,2)}, {v(R,2)}\nv_pk_add_f32 v[36:37], {v(R,2)}, {v(R+2,2)}")
    for r in range(2, 16, 2):
        A(f"v_pk_fma_f32 v[38:39], {v(R+r,2)}, {v(R+r,2)}, v[38:39]")
        if r >= 4: A(f"v_pk_add_f32 v[36:37], v[36:37], {v(R+r,2)}")
    A("v_add_f32 v36, v36, v37\nv_add_f32 v38, v38, v39\nv_permlane32_swap_b32 v36, v38\nv_add_f32 v36, v36, v38")
    A(f"s_lshl_b32 s{T2}, s{T0}, 12\ns_lshl_b32 s{T3}, s{T1}, 8\ns_add_u32 s{T2}, s{T2}, s{T3}\ns_add_u32 s{T2}, s{T2}, {WS_ST}\nv_lshlrev_b32 v37, 2, v0")
    hstore(A, [f"buffer_store_dwordx4 v[40:43], v{VL16}, {s(SWS,4)}, s{sHO} offen",
               f"buffer_store_dwordx4 v[44:47], v{VL16}, {s(SWS,4)}, s{sHO} offen offset:1024",
               f"buffer_store_dword v36, v37, {s(SWS,4)}, s{T2} offen"], CFG.h_sc1)
    A(f"s_lshl_b32 s{T6}, s{T0}, 6\ns_lshl_b32 s{T3}, s{T1}, 2\ns_add_u32 s{T6}, s{T6}, s{T3}\ns_add_u32 s{T6}, s{T6}, {WS_F2}")
    W1L = 65536
    stamp(A, "P2st")
    TB0, TB1 = 8, 9
    A(f"v_bfe_u32 v3, v0, 2, 2\nv_lshl_add_u32 v3, v{HALF}, 2, v3\nv_mul_u32_u24 v{TB0}, 192, v3")
    A(f"v_bfe_u32 v3, v0, 4, 1\nv_lshl_add_u32 v{TB0}, v3, 5, v{TB0}\nv_and_b32 v3, 3, v0\nv_lshl_add_u32 v{TB0}, v3, 3, v{TB0}\nv_add_u32 v{TB0}, {W1L}, v{TB0}\nv_add_u32 v{TB1}, {16*3072}, v{TB0}")
    A(f"s_mul_i32 s{T3}, s{sW}, {8*3072}\nv_add_u32 v10, s{T3}, v{TB0}")
    A(f"v_lshrrev_b32 v3, 2, v0\nv_xor_b32 v3, v3, v0\nv_and_b32 v3, 4, v3\nv_and_b32 v7, 3, v0\nv_or_b32 v3, v3, v7\nv_cmp_eq_u32 vcc, 0, v3")
    for i in range(4):
        A(f"v_cndmask_b32 v{SEL+i}, 0, v{ONES}, vcc")
    if CFG.w1c:
        A("s_waitcnt vmcnt(0)")
        flag_store(A, 62, T6)
        stamp(A, "P2fl")
        A("s_barrier")
    CW = 64
    CS1 = 24
    for k in range(8):
        for nt in range(3):
            for t in range(2):
                A(f"ds_read_b64_tr_b16 {v(CW+12*k+4*nt+2*t,2)}, v10 offset:{k*3072 + t*1536 + nt*64}")
        if k == 1 or k == 3 or k == 5 or k == 7:
            A("s_waitcnt lgkmcnt(0)")
            for kk in (k-1, k):
                for nt in range(3):
                    m16(A, CS1+4*nt, SEL, CW+12*kk+4*nt, None if kk == 0 else CS1+4*nt)
        if k == 5 and not CFG.w1c:
            A("s_waitcnt vmcnt(0)")
            flag_store(A, 62, T6)
            stamp(A, "P2fl")
    stamp(A, "P2end")
    srd(A, ST0, PTR(6), 2752)
    srd(A, SW_, PTR(7), 1376*1024)
    B1 = 36
    A(f"v_lshlrev_b32 v3, 1, v{ROW}\ns_mul_i32 s{T0}, s{sC16}, 192")
    for nt in range(3):
        A(f"buffer_load_ushort v{B1+nt}, v3, {s(ST0,4)}, s{T0} offen offset:{nt*64}")
    A(f"s_lshl_b32 s{T0}, s{sW}, 14\nv_lshl_add_u32 v3, v0, 2, s{T0}")
    for nt in range(3):
        A(f"ds_write_b32 v3, v{CS1+4*nt} offset:{nt*256}")
    sRT = 35
    A(f"s_lshl_b32 s{sRT}, s{sRBK}, 2\ns_add_u32 s{sRT}, s{sRT}, s{sW}")
    A(f"s_lshl_b32 s{T5}, s{sRT}, 6\ns_add_u32 s{T5}, s{T5}, {WS_F2}\nv_lshlrev_b32 v60, 2, v0\nv_and_b32 v60, 63, v60")
    A("s_waitcnt lgkmcnt(0)\ns_barrier")
    A("v_lshlrev_b32 v3, 2, v0")
    for w in range(4):
        for nt in range(3):
            A(f"ds_read_b32 v{40+3*w+nt}, v3 offset:{w*16384+nt*256}")
    VO0, VO1 = 10, 11
    wide_pattern(A, VO0, 1024, 60+1, 62, 63)
    A(f"v_add_u32 v{VO1}, {8192-1024}, v{VO0}")
    A("v_cmp_gt_u32 vcc, 32, v0")
    A("s_waitcnt vmcnt(0) lgkmcnt(0)")
    CF = 24
    for nt in range(3):
        A(f"v_add_f32 v52, v{40+nt}, v{43+nt}\nv_add_f32 v53, v{46+nt}, v{49+nt}\nv_add_f32 v52, v52, v53")
        A(f"v_cndmask_b32 v52, 0, v52, vcc\nv_cndmask_b32 v{B1+nt}, 0, v{B1+nt}, vcc")
        A(f"v_cvt_pk_bf16_f32 v{CF+4*nt}, v52, v52\nv_lshlrev_b32 v53, 16, v{CF+4*nt}\nv_sub_f32 v53, v52, v53")
        A(f"v_cvt_pk_bf16_f32 v53, v53, 0\nv_lshl_or_b32 v{CF+4*nt+1}, v{B1+nt}, 16, v53\nv_mov_b32 v{CF+4*nt+2}, v{B1+nt}\nv_mov_b32 v{CF+4*nt+3}, 0")
    A("s_barrier")
    A(f"s_mov_b64 s[{sMASK}:{sMASK+1}], 0xffff")
    poll(A, 61, 60, f"s{T5}", f"s{sNONCE}", s(sMASK, 2))
    stamp(A, "hop2")
    AF = 128; STR = 112
    A(f"s_mul_i32 s{T4}, s{sRT}, {CFG.hst}\ns_add_u32 s{T4}, s{T4}, {WS_H}\ns_lshl_b32 s{T5}, s{sRT}, 12\ns_add_u32 s{T5}, s{T5}, {WS_ST}")
    sW2, sL2 = T6, T7
    A(f"s_mul_i32 s{sW2}, s{sW}, {22*16*1024}\ns_lshl_b32 s{T0}, s{sC8}, 7\ns_add_u32 s{sW2}, s{sW2}, s{T0}")
    def hload(k):
        pre = f"s_lshl_b32 s{T0}, s{sC16}, {13 if CFG.arot else 15}\ns_add_u32 s{T0}, s{T0}, {k*1024}\ns_and_b32 s{T0}, s{T0}, 0x7fff\ns_add_u32 s{T0}, s{T0}, s{T4}\n" if k % 4 == 0 else ""
        return pre + f"buffer_load_dwordx4 {v(AF+4*k,4)}, v{VL16}, {s(SWS,4)}, s{T0} offen offset:{(k%4)*1024} sc1"
    def w2slot(k):
        sl = k % 20
        return (f"s_lshl_b32 s{T1}, s{sW}, 14\ns_add_u32 m0, s{T1}, {sl*2048}" if sl < 8 else
                f"s_mul_i32 s{T1}, s{sW}, 24576\ns_add_u32 m0, s{T1}, {65536 + (sl-8)*2048}")
    sRS = sK3
    A(f"s_mul_i32 s{sROT}, s{sC8}, {3 if CFG.arot else 0}")
    act = lambda src: f"s_add_u32 s{T2}, {src}, s{sROT}\ns_cmp_ge_u32 s{T2}, 22\ns_cselect_b32 s3, 22, 0\ns_sub_u32 s{T2}, s{T2}, s3\ns_lshl_b32 s{T2}, s{T2}, 14\ns_add_u32 s{T2}, s{T2}, s{sW2}\n"
    def w2dyn(lo, n, first):
        pre = ""
        if first:
            pre = (f"s_and_b32 s{sRS}, s{sRB}, 3\ns_mul_i32 s{sRS}, s{sRS}, {n//4}\ns_add_u32 s{sRS}, s{sRS}, {lo}\n" if CFG.wrot else f"s_mov_b32 s{sRS}, {lo}\n")
            pre += (f"s_lshl_b32 s{sL2}, s{sW}, 14\n" if lo == 0 else f"s_mul_i32 s{sL2}, s{sW}, 24576\ns_add_u32 s{sL2}, s{sL2}, {65536 - 8*2048}\n")
        return [pre + f"s_lshl_b32 s{T1}, s{sRS}, 11\ns_add_u32 m0, s{T1}, s{sL2}\n" + act(f"s{sRS}") + f"buffer_load_dwordx4 v{VO0}, {s(SW_,4)}, s{T2} offen lds",
                f"buffer_load_dwordx4 v{VO1}, {s(SW_,4)}, s{T2} offen offset:1024 lds\ns_add_u32 s{sRS}, s{sRS}, 1\ns_cmp_eq_u32 s{sRS}, {lo+n}\ns_cselect_b32 s{sRS}, {lo}, s{sRS}"]
    def w2load(k):
        return [w2slot(k) + "\n" + act(str(k)) + f"buffer_load_dwordx4 v{VO0}, {s(SW_,4)}, s{T2} offen lds",
                f"buffer_load_dwordx4 v{VO1}, {s(SW_,4)}, s{T2} offen offset:1024 lds"]
    seq = [hload(k) for k in range(32)]
    A("v_lshlrev_b32 v7, 2, v0")
    stl = [f"buffer_load_dword v{STR+g}, v7, {s(SWS,4)}, s{T5} offen offset:{g*256} sc1" for g in range(16)]
    w2a = sum([w2dyn(0, 8, k == 0) for k in range(8)], [])
    order = seq[:2] + stl + seq[2:]
    idx = lambda k: k if k < 2 else k + 16
    D = CFG.p3D
    for o in order[:D]: A(o)
    issued = D
    FW = [40, 48]
    ACC3 = [64, 80, 96]
    def w1reads(kg, nts, F):
        base = TB0 if kg < 16 else TB1
        for i_, nt in enumerate(nts):
            for t in range(2):
                A(f"ds_read_b64_tr_b16 {v(F+4*i_+2*t,2)}, v{base} offset:{(kg&15)*3072 + t*1536 + nt*64}")
    c0 = -2 * 0.7978845608028654 * LOG2E
    c1 = c0 * 0.044715
    NM, RSTD, SD, NF, KK = 18, 19, 16, (20 if CFG.p3m else 56), 14
    def stats():
        for g in range(3):
            A(f"v_pk_add_f32 {v(STR,2)}, {v(STR,2)}, {v(STR+4*g+4,2)}\nv_pk_add_f32 {v(STR+2,2)}, {v(STR+2,2)}, {v(STR+4*g+6,2)}")
        A(f"v_pk_add_f32 {v(STR,2)}, {v(STR,2)}, {v(STR+2,2)}\nv_add_f32 v{STR}, v{STR}, v{STR+1}\nv_mov_b32 v{STR+1}, v{STR}")
        A(f"v_permlane32_swap_b32 v{STR}, v{STR+1}")
        finish_stats(A, STR, STR+1, NM, RSTD, SD)
        A(f"v_mul_f32 v{SD}, v{SD}, v{RSTD}")
        A(f"v_cvt_pk_bf16_f32 v{NF+1}, v{NM}, v{SD}")
        A(f"v_lshlrev_b32 v60, 16, v{NF+1}\nv_sub_f32 v60, v{NM}, v60\nv_cvt_pk_bf16_f32 v{NF}, v{NM}, v60")
        A(f"v_and_b32 v60, 0xffff0000, v{NF+1}\nv_sub_f32 v60, v{SD}, v60\nv_cvt_pk_bf16_f32 v{NF+2}, v60, 0\nv_mov_b32 v{NF+3}, 0")
        A(f"v_mul_f32 v{KK+1}, {fbits(c0)}, v{RSTD}\nv_mul_f32 v60, v{RSTD}, v{RSTD}\nv_mul_f32 v60, v60, v{RSTD}\nv_mul_f32 v{KK}, {fbits(c1)}, v60")
    if CFG.p3m:
        FW3_ = [36, 48]
        p3a = 0 if CFG.hw2 else CFG.p3a
        order = order + w2a[:p3a]
        nh = len(order) - p3a
        w1reads(0, (0, 1, 2), FW3_[0])
        stamp(A, "p3i")
        for k in range(32):
            if k < 31 and not CFG.spread: w1reads(k + 1, (0, 1, 2), FW3_[(k+1)&1])
            if issued < nh: new = order[issued:min(issued + CFG.p3r, nh)]
            elif k >= 32 - p3a: new = order[issued:issued + 1]
            else: new = []
            if CFG.hw2 and k == CFG.p3bk: A("s_barrier")
            for nt in range(3):
                if nt == 0:
                    A(f"s_waitcnt vmcnt({issued - 1 - idx(k)}) lgkmcnt({(4 if CFG.spread else 6) if (k < 31 or CFG.spread) else 0})")
                    stamp(A, f"p3k{k}")
                elif CFG.spread:
                    A(f"s_waitcnt lgkmcnt({4 if k < 31 else 4 - 2*nt})")
                mfma(A, ACC3[nt], FW3_[k&1]+4*nt, AF+4*k, None if k == 0 else ACC3[nt])
                if CFG.spread and k < 31: w1reads(k + 1, (nt,), FW3_[(k+1)&1] + 4*nt)
                if nt < len(new): A(new[nt])
            issued += len(new)
            if k == 3: stats()
            if k == 4:
                for nt in range(3): mfma(A, ACC3[nt], CF+4*nt, NF, ACC3[nt])
        assert issued == len(order)
    else:
        w1reads(0, (0, 1), FW[0])
        for k in range(32):
            if k < 31: w1reads(k + 1, (0, 1), FW[(k+1)&1])
            else: w1reads(0, (2,), 60)
            A(f"s_waitcnt vmcnt({issued - 1 - idx(k)}) lgkmcnt({4 if k < 31 else 2})")
            new = order[issued:issued + 2]; issued += len(new)
            for nt in range(2):
                mfma(A, ACC3[nt], FW[k&1]+4*nt, AF+4*k, None if k == 0 else ACC3[nt])
                if nt < len(new): A(new[nt])
            if k == 3: stats()
            if k == 4:
                mfma(A, ACC3[2], CF+8, NF)
                mfma(A, ACC3[0], CF, NF, ACC3[0])
                mfma(A, ACC3[1], CF+4, NF, ACC3[1])
        for o in order[issued:]: A(o)
    stamp(A, "P3lp")
    A(f"s_mul_i32 s{T4}, s{sRT}, {CFG.h1st}\ns_mul_i32 s{T0}, s{sC16}, 6144\ns_add_u32 s{T4}, s{T4}, s{T0}\ns_add_u32 s{T4}, s{T4}, {WS_H1}")
    w2b = sum([w2dyn(8, 12, k == 8) for k in range(8, 20)], [])
    T = 112
    def gelu(X, OUT, pk):
        b = []
        if pk:
            for r in range(0, 16, 2): b.append(f"v_pk_mul_f32 {v(T+r,2)}, {v(X+r,2)}, {v(X+r,2)}")
            for r in range(0, 16, 2): b.append(f"v_pk_fma_f32 {v(T+r,2)}, {v(T+r,2)}, {v(KK,2)}, {v(KK,2)} op_sel:[0,0,1] op_sel_hi:[1,0,1]")
            for r in range(0, 16, 2): b.append(f"v_pk_mul_f32 {v(T+r,2)}, {v(T+r,2)}, {v(X+r,2)}")
            for r in range(16): b.append(f"v_exp_f32 v{T+r}, v{T+r}")
            for r in range(0, 16, 2): b.append(f"v_pk_fma_f32 {v(T+r,2)}, {v(T+r,2)}, {v(SD,2)}, {v(SD,2)} op_sel_hi:[1,0,0]")
            for r in range(16): b.append(f"v_rcp_f32 v{T+r}, v{T+r}")
            for r in range(0, 16, 2): b.append(f"v_pk_mul_f32 {v(X+r,2)}, {v(X+r,2)}, {v(T+r,2)}")
            for r in range(8): b.append(f"v_cvt_pk_bf16_f32 v{OUT+r}, v{X+2*r}, v{X+2*r+1}")
        else:
            st = [lambda r: f"v_mul_f32 v{T+r}, v{X+r}, v{X+r}",
                  lambda r: f"v_fma_f32 v{T+r}, v{T+r}, v{KK}, v{KK+1}",
                  lambda r: f"v_mul_f32 v{T+r}, v{T+r}, v{X+r}",
                  lambda r: f"v_exp_f32 v{T+r}, v{T+r}",
                  lambda r: f"v_fma_f32 v{T+r}, v{T+r}, v{SD}, v{SD}",
                  lambda r: f"v_rcp_f32 v{T+r}, v{T+r}",
                  lambda r: f"v_mul_f32 v{X+r}, v{X+r}, v{T+r}"]
            for step in range(8 + 7):
                for sidx in range(7, -1, -1):
                    g = step - sidx
                    if 0 <= g < 8:
                        if sidx == 7: b.append(f"v_cvt_pk_bf16_f32 v{OUT+g}, v{X+2*g}, v{X+2*g+1}")
                        else:
                            b.append(st[sidx](2*g)); b.append(st[sidx](2*g+1))
        return b
    def h1store(nt, OUT):
        lab = f"P3_NOST{nt}"
        A(f"s_cmp_ge_u32 s{sC16}, {15 if nt == 0 else 14}\ns_cbranch_scc1 {lab}")
        if nt == 2: A(f"s_add_u32 s{T4}, s{T4}, 4096")
        o = (nt & 1) * 2048
        hstore(A, [f"buffer_store_dwordx4 {v(OUT,4)}, v{VL16}, {s(SWS,4)}, s{T4} offen offset:{o}",
                   f"buffer_store_dwordx4 {v(OUT+4,4)}, v{VL16}, {s(SWS,4)}, s{T4} offen offset:{o+1024}"], CFG.h1_sc1)
        A.label(lab)
        stamp(A, f"gelu{nt}")
    if CFG.p3m:
        A("s_barrier")
        rest = [] if CFG.hw2 else w2a[CFG.p3a:] + w2b
        body = gelu(ACC3[0], 24, 1) + ["ST0"] + gelu(ACC3[1], 32, 1) + ["ST1"] + gelu(ACC3[2], 44, 1) + ["ST2"]
        span = (len(body) * 5) // 6
        nd = 0
        for i, b_ in enumerate(body):
            if b_.startswith("ST"): h1store(int(b_[2]), (24, 32, 44)[int(b_[2])])
            else: A(b_)
            if rest and nd < CFG.p3g and i >= nd * span // CFG.p3g:
                A(rest[nd]); nd += 1
        w2b = [None]*8 + rest[nd:]
    else:
        body = gelu(ACC3[0], 24, CFG.gpk) + ["ST0"] + gelu(ACC3[1], 32, CFG.gpk) + ["ST1"]
        F2 = [60, 40]
        pos = 0
        for k in range(32):
            if k < 31: w1reads(k + 1, (2,), F2[(k+1)&1])
            A(f"s_waitcnt lgkmcnt({2 if k < 31 else 0})")
            mfma(A, ACC3[2], F2[k&1], AF+4*k, ACC3[2])
            if k % 2 == 0: A(w2a[k // 2])
            end = len(body) if k == 31 else (len(body) * (k + 1)) // 33
            for b_ in body[pos:end]:
                if b_ == "ST0": h1store(0, 24)
                elif b_ == "ST1": h1store(1, 32)
                else: A(b_)
            pos = end
        A("s_barrier")
        body = gelu(ACC3[2], 44, 1)
        for i, b_ in enumerate(body):
            A(b_)
            if i % 10 == 0 and i // 10 < 8: A(w2b[i // 10])
        h1store(2, 44)
    for o in (w2b[8:16] if not CFG.p3o else []): A(o)
    srd(A, SX_, PTR(11), 64*CFG.h1st, add=WS_H1)
    srd(A, ST0, PTR(8), 1024)
    srd(A, ST1, PTR(9), 2097152)
    A(f"s_lshl_b32 s{T3}, s{sRT}, 6\ns_lshl_b32 s{T0}, s{sC16}, 2\ns_add_u32 s{T3}, s{T3}, s{T0}\ns_add_u32 s{T3}, s{T3}, {WS_F3}")
    TA2, TA3, VO, VB2 = 14, 15, 16, 17
    A(f"s_lshl_b32 s{T0}, s{sW}, 13\ns_add_u32 s{T0}, s{T0}, 65536\nv_add_u32 v{TA2}, s{T0}, v{TA0}\nv_add_u32 v{TA3}, s{T0}, v{TA1}")
    A(f"v_lshlrev_b32 v{VO}, 10, v{ROW}\nv_lshl_add_u32 v{VO}, v{HALF}, 4, v{VO}\nv_lshlrev_b32 v{VB2}, 3, v{HALF}")
    lo = [0, 3, 7, 11]; hi = [3, 7, 10, 14]
    msk = [(((1 << (hi[w]+1)) - (1 << lo[w])) * 0x10001) for w in range(4)]
    A(f"s_mov_b32 s{sMASK}, {msk[0]}\ns_cmp_eq_u32 s{sW}, 1\ns_cselect_b32 s{sMASK}, {msk[1]}, s{sMASK}\ns_cmp_eq_u32 s{sW}, 2\ns_cselect_b32 s{sMASK}, {msk[2]}, s{sMASK}")
    A(f"s_cmp_eq_u32 s{sW}, 3\ns_cselect_b32 s{sMASK}, {msk[3]}, s{sMASK}\ns_mov_b32 s{sMASK+1}, 0")
    A(f"s_lshl_b32 s{T5}, s{sRB}, 7\ns_add_u32 s{T5}, s{T5}, {WS_F3}\nv_lshlrev_b32 v60, 2, v0\nv_and_b32 v60, 127, v60")
    A("s_waitcnt vmcnt(0)")
    A(f"s_cmp_eq_u32 s{sC16}, 15\ns_cbranch_scc1 P3_NOFL")
    flag_store(A, 62, T3)
    A.label("P3_NOFL")
    for o in (w2b[16:] if not CFG.p3o else w2b[8:]): A(o)
    stamp(A, "P3fl")
    HR, B2R = 20, 28
    A(f"s_lshl_b32 s{T3}, s{sC8}, 7\ns_lshl_b32 s{T0}, s{sHH}, 6\ns_add_u32 s{T3}, s{T3}, s{T0}")
    for t in range(2):
        A(f"buffer_load_dwordx4 {v(HR+4*t,4)}, v{VL16}, {s(SWS,4)}, s{sHO} offen offset:{t*1024} sc1")
    for q in range(4):
        A(f"buffer_load_dwordx2 {v(B2R+2*q,2)}, v{VB2}, {s(ST0,4)}, s{T3} offen offset:{q*16}")
    sOUT = sHO
    poll(A, 61, 60, f"s{T5}", f"s{sNONCE}", s(sMASK, 2))
    stamp(A, "hop3")
    A(f"s_lshl_b32 s{sOUT}, s{sRB}, 16\ns_lshl_b32 s{T0}, s{sRH}, 15\ns_add_u32 s{sOUT}, s{sOUT}, s{T0}\ns_add_u32 s{sOUT}, s{sOUT}, s{T3}")
    A(f"s_mul_i32 s{T4}, s{sRB}, {2*CFG.h1st}\ns_mul_i32 s{T0}, s{sW}, {22*1024}\ns_add_u32 s{T4}, s{T4}, s{T0}\ns_mul_i32 s{T0}, s{sRH}, {CFG.h1st}\ns_add_u32 s{T5}, s{T4}, {CFG.h1st}\ns_sub_u32 s{T5}, s{T5}, s{T0}\ns_add_u32 s{T4}, s{T4}, s{T0}")
    NR = 16
    assert CFG.p4D <= 30
    AFR = lambda k: 64 + (k % NR) * 8
    A(f"s_cmp_eq_u32 s{sW}, 3\ns_cselect_b32 s{sK1}, 20, 99\ns_mov_b32 s{sK2}, s{sROT}")
    def h1load(k):
        return [f"s_lshl_b32 s{T3}, s{sK2}, 10\ns_cmp_ge_u32 s{sK2}, s{sK1}\ns_cselect_b32 s{T3}, 0x40000000, s{T3}\ns_add_u32 s{T0}, s{T4}, s{T3}\nbuffer_load_dwordx4 {v(AFR(k),4)}, v{VL16}, {s(SX_,4)}, s{T0} offen sc1",
                f"s_add_u32 s{T0}, s{T5}, s{T3}\nbuffer_load_dwordx4 {v(AFR(k)+4,4)}, v{VL16}, {s(SX_,4)}, s{T0} offen sc1\ns_add_u32 s{sK2}, s{sK2}, 1\ns_cmp_eq_u32 s{sK2}, 22\ns_cselect_b32 s{sK2}, 0, s{sK2}"]
    order = []
    for k in range(22):
        for o in h1load(k): order.append((("h", k), o))
        if k == 9:
            for kk in (20, 21):
                for o in w2load(kk): order.append((("w", kk), o))
    D = CFG.p4D
    if CFG.p4x & 1: order = [(t, o.replace(' sc1', '')) for t, o in order]
    for _, o in order[:D]: A(o)
    issued = D
    WF = [36, 44]
    def w2reads(k):
        sl = k % 20
        if CFG.p4x & 2: return
        for nt in range(2):
            for t in range(2):
                if sl < 8:
                    A(f"ds_read_b64_tr_b16 {v(WF[k&1]+4*nt+2*t,2)}, v{TA0+nt} offset:{sl*2048+t*1024}")
                else:
                    A(f"ds_read_b64_tr_b16 {v(WF[k&1]+4*nt+2*t,2)}, v{TA2+nt} offset:{(sl-8)*2048+t*1024}")
    def last_idx(tag):
        return max(i for i, (t, _) in enumerate(order) if t == tag)
    stamp(A, "p4i")
    if CFG.hw2: A("s_barrier")
    w2reads(0)
    for k in range(22):
        if k < 21:
            if k + 1 >= 20:
                A(f"s_waitcnt vmcnt({issued - 1 - last_idx(('w', k+1))})")
            w2reads(k + 1)
        A(f"s_waitcnt vmcnt({issued - 1 - last_idx(('h', k))}) lgkmcnt({4 if k < 21 else 0})")
        stamp(A, f"p4k{k}")
        new = order[issued:issued + 2]
        issued += len(new)
        j = 0
        for rt, nt in ((1, 0), (0, 1), (1, 1), (0, 0)):
            if True:
                if not (CFG.p4x & 4) or k == 0: mfma(A, ACC(nt, rt), WF[k&1]+4*nt, AFR(k)+4*rt, None if k == 0 else ACC(nt, rt))
                if j < len(new): A(new[j][1])
                j += 1
    assert issued >= len(order)
    stamp(A, "P4lp")
    R = reduce4(A, "P4", 192, 96)
    stamp(A, "P4red")
    for r in range(8):
        A(f"v_lshlrev_b32 v36, 16, v{HR+r}\nv_and_b32 v37, 0xffff0000, v{HR+r}\nv_lshlrev_b32 v38, 16, v{B2R+r}\nv_and_b32 v39, 0xffff0000, v{B2R+r}")
        A(f"v_pk_add_f32 {v(R+2*r,2)}, {v(R+2*r,2)}, v[38:39]")
        A(f"v_pk_add_f32 {v(R+2*r,2)}, {v(R+2*r,2)}, v[36:37]")
        A(f"v_cvt_pk_bf16_f32 v{48+r}, v{R+2*r}, v{R+2*r+1}")
    for p in range(2):
        A(f"v_permlane32_swap_b32 v{48+4*p}, v{50+4*p}\nv_permlane32_swap_b32 v{49+4*p}, v{51+4*p}")
        A(f"buffer_store_dwordx4 {v(48+4*p,4)}, v{VO}, {s(ST1,4)}, s{sOUT} offen offset:{p*32}" + (" sc1" if CFG.out_sc1 else ""))
    stamp_out(A, 0)
    A("s_endpgm")

def main(out, **kw):
    for k_, v_ in kw.items(): setattr(CFG, k_, v_)
    nstamp[0] = 0
    A = Asm()
    gen(A)
    A.pad()
    kernel_desc(A, KN, 256, sgpr=102)
    head = open("cdna_kernels/" + NAME + ".s.ref").read().split("; Override")[0]
    if CFG.stamp: head += "; stamps: " + " ".join(STAMPSETS[CFG.stamp][1:]) + "\n"
    head += f"; @launch grid=(256,1,1) block=(512,1,1) lds=163840\n"
    head += '.amdgcn_target "amdgcn-amd-amdhsa--gfx950"\n'
    open(out, "w").write(head + A.text())

if __name__ == "__main__":
    kw = {}
    for a_ in sys.argv[2:]:
        k_, v_ = a_.split("=", 1)
        kw[k_] = v_ if k_ in ('tl', 'pace', 't2') else int(v_)
    main(sys.argv[1], **kw)
```

```python
import sys, struct
from asmlib import *

NAME = "sequential_preLN__linear_kernel_hedgehog__dense_activation_gelu__prompt"
KN = NAME + "_kernel"
WS_O = 0
WS_PA = 6 << 20
GST = 640
PSTR = 3*1024
WS_PB = 14 << 20
WS_PC = 4 << 20
WS_F1X = 5 << 20
WS_EPOCH = (4 << 20) + (532 << 10)
WS_REG = (4 << 20) + (528 << 10)
WS_F1 = (4 << 20) + (512 << 10)
WS_FW = WS_F1 + 4096
WS_F2 = WS_FW + 4096
WS_F3 = WS_F2 + 4096
WS_ST = (4 << 20) + (640 << 10)
WS_H = 17 << 20
WS_H1 = 20 << 20
H1_BYTES = 64 * 86 * 1024
WS_STAMP = 16 << 20
WS_SIZE = 32 << 20
LOG2E = 1.4426950408889634
def fbits(x): return "0x%08x" % struct.unpack("<I", struct.pack("<f", x))[0]

class Cfg:
    stamp = 0
    rot = 2
    fast = 1
    pd = 3
    p4D = 12
    p4x = 0
    ost = 32768
    hst = 32768
    h1st = 88064
    diag = 0
    pa_sc1 = 0
    pc_sc1 = 0
    o_sc1 = 1
    h_sc1 = 1
    h1_sc1 = 1
    prepoll1 = 1
    w1late = 1
    hprio = 0
    regat = 3
    w2t = 1
    ddw = 0
    p3m = 1
    p3a = 8
    p3g = 20
    hw2 = 1
    p3r = 1
    p3bk = 22
    spread = 1
    ddn = 6
    p3o = 1
    gpk = 0
    arot = 0
    ctouch = 1
    m42 = 0
    spin_us = 0
    f1sleep = 2
    srvt = 0
    s1sleep = 1
    pa_fast = 0
    w1in = 0
    w1c = 0
    wqlate = 1
    p3D = 26
    out_sc1 = 0
    prepoll2 = 1
    prepoll3 = 0
    tl = "fl,pa1,pb1,wq,wo,w1"
    pace = "0,0,0,0,99,0,0,0,0"
    tthr = 2
    t2 = ""
    pa_full = 0
    psleep = 6
    wrot = 1
    dthr = 0
CFG = Cfg()

SX_, SW_, SWS, SDBG, ST0, ST1 = 8, 12, 16, 20, 24, 28
PTR = lambda i: 36 + 2*i
sXCD, sJ, sRB, sC8, sRBK, sC16, sW, sRH, sHH, sNONCE = 60, 61, 62, 63, 64, 65, 66, 67, 68, 69
sFAST, sSPIN, sROT = 4, 5, 6
sRB1, sHQ, sRL1, sPX = 20, 21, 22, 23
sGB = 44
T0, T1, T2, T3, T4, T5, T6, T7 = 70, 71, 72, 73, 74, 75, 76, 77
sMASK = 78
sK1, sK2, sK3 = 32, 33, 34

nstamp = [0]
SREG = lambda i: 82 + 2*i if i < 10 else 56
STAMPSETS = {
 1: ["start","B0","loop","atom","arrv","syncA","hop1","P2end","hop2","P3lp","hop3"],
 2: ["start","B0","B2","B4","loop","E1","smdone","E2","atom","qgemm","arrv"],
 3: ["start","syncA","kvld","ostore","hop1","P2lp","P2red","P2st","P2fl","P2end","hop2"],
 5: ["start","hop2","p3i","p3k0","p3k1","p3k5","p3k8","p3k16","p3k24","P3lp","hop3"],
 6: ["start","hop3","p4i","p4k0","p4k4","p4k8","p4k12","p4k16","p4k20","P4lp","P4red"],
 4: ["start","hop2","P3lp","gelu0","gelu1","gelu2","P3fl","hop3","P4lp","P4red","qgemm"],
}
def stamp(A, name):
    if CFG.stamp and name in STAMPSETS[CFG.stamp]:
        i = STAMPSETS[CFG.stamp].index(name); nstamp[0] = 11
        assert i < 11
        b = SREG(i)
        A(f"s_memtime s[{b}:{b+1}]")

def mfma(A, d, x, y, c=None):
    cc = "0" if c is None else v(c, 16)
    A(f"v_mfma_f32_32x32x16_bf16 {v(d,16)}, {v(x,4)}, {v(y,4)}, {cc}")
def m16(A, d, x, y, c=None):
    cc = "0" if c is None else v(c, 4)
    A(f"v_mfma_f32_16x16x32_bf16 {v(d,4)}, {v(x,4)}, {v(y,4)}, {cc}")

def swap_reduce(A, x, y, op):
    A(f"v_permlane32_swap_b32 v{x}, v{y}")
    A(f"{op} v{x}, v{x}, v{y}")
    A(f"v_mov_b32 v{y}, v{x}")
    A(f"v_permlane32_swap_b32 v{x}, v{y}")

def softmax_tile(A, P, out, tm):
    M = tm
    A(f"v_max3_f32 v{M}, v{P}, v{P+1}, v{P+2}")
    A(f"v_max3_f32 v{M+1}, v{P+8}, v{P+9}, v{P+10}")
    A(f"v_max3_f32 v{M}, v{M}, v{P+3}, v{P+4}")
    A(f"v_max3_f32 v{M+1}, v{M+1}, v{P+11}, v{P+12}")
    A(f"v_max3_f32 v{M}, v{M}, v{P+5}, v{P+6}")
    A(f"v_max3_f32 v{M+1}, v{M+1}, v{P+13}, v{P+14}")
    A(f"v_max_f32 v{M}, v{M}, v{P+7}")
    A(f"v_max_f32 v{M+1}, v{M+1}, v{P+15}")
    swap_reduce(A, M, M+1, "v_max_f32")
    for i in range(0, 8, 2):
        A(f"v_pk_add_f32 {v(P+i,2)}, {v(P+i,2)}, {v(M,2)} op_sel_hi:[1,0] neg_lo:[0,1] neg_hi:[0,1]")
    for i in range(8, 16, 2):
        A(f"v_pk_add_f32 {v(P+i,2)}, {v(P+i,2)}, {v(M,2)} op_sel:[0,1] op_sel_hi:[1,1] neg_lo:[0,1] neg_hi:[0,1]")
    for i in range(16):
        A(f"v_exp_f32 v{P+i}, v{P+i}")
    T = tm + 2
    for g in range(2):
        b = P + 8*g
        A(f"v_pk_add_f32 {v(T,2)}, {v(b,2)}, {v(b+2,2)}")
        A(f"v_pk_add_f32 {v(T+2,2)}, {v(b+4,2)}, {v(b+6,2)}")
        A(f"v_pk_add_f32 {v(T,2)}, {v(T,2)}, {v(T+2,2)}")
        A(f"v_add_f32 v{M+g}, v{T}, v{T+1}")
    swap_reduce(A, M, M+1, "v_add_f32")
    A(f"v_rcp_f32 v{M}, v{M}")
    A(f"v_rcp_f32 v{M+1}, v{M+1}")
    for i in range(0, 8, 2):
        A(f"v_pk_mul_f32 {v(P+i,2)}, {v(P+i,2)}, {v(M,2)} op_sel_hi:[1,0]")
    for i in range(8, 16, 2):
        A(f"v_pk_mul_f32 {v(P+i,2)}, {v(P+i,2)}, {v(M,2)} op_sel:[0,1] op_sel_hi:[1,1]")
    for i in range(8):
        A(f"v_cvt_pk_bf16_f32 v{out+i}, v{P+2*i}, v{P+2*i+1}")

_uid = [0]
def uid(p):
    _uid[0] += 1
    return f"{p}{_uid[0]}"

def hstore(A, ins, force=0):
    if not CFG.fast or force:
        for s_ in ins: A(s_ + " sc1")
        return
    l1, l2 = uid("HS"), uid("HE")
    A(f"s_cmp_eq_u32 s{sFAST}, 1\ns_cbranch_scc1 {l1}")
    for s_ in ins: A(s_ + " sc1")
    A(f"s_branch {l2}")
    A.label(l1)
    for s_ in ins: A(s_)
    A.label(l2)

def flag_store(A, vtmp, soff, force=0):
    A(f"v_mov_b32 v{vtmp}, s{sNONCE}\nv_mov_b32 v{vtmp+1}, 0\ns_mov_b64 exec, 1")
    hstore(A, [f"buffer_store_dword v{vtmp}, v{vtmp+1}, {s(SWS,4)}, s{soff} offen"], force)
    A("s_mov_b64 exec, -1")

def poll(A, vdst, vaddr, soff, want, mask, sleep=0):
    l, le = uid("PL"), uid("PE")
    A.label(l)
    A(f"buffer_load_dword v{vdst}, v{vaddr}, {s(SWS,4)}, {soff} offen sc1")
    A(f"s_sub_u32 s{sSPIN}, s{sSPIN}, 1\ns_cmp_lt_i32 s{sSPIN}, 0\ns_cbranch_scc1 {le}")
    A("s_waitcnt vmcnt(0)")
    A(f"v_cmp_ne_u32 vcc, {want}, v{vdst}")
    A(f"s_and_b64 vcc, vcc, {mask}")
    if sleep:
        A(f"s_cbranch_scc0 {le}\ns_sleep {sleep}\ns_branch {l}")
    else:
        A(f"s_cbranch_scc1 {l}")
    A.label(le)

XL, RING, RL = 0, 65536, 131072

def stamp_out(A, wadd):
    if not CFG.stamp: return
    A("s_mov_b64 exec, -1\ns_waitcnt vmcnt(0)")
    A(f"s_memtime s[{T0}:{T1}]\ns_memrealtime s[{T2}:{T3}]\ns_waitcnt lgkmcnt(0)")
    A(f"v_mov_b32 v0, s80\nv_mov_b32 v1, s{T2}\nv_mov_b32 v2, s{sFAST}\ns_sub_u32 s{T0}, s{T0}, s82\nv_mov_b32 v3, s{T0}")
    for i in range(1, 11):
        A(f"s_sub_u32 s{T0}, s{SREG(i)}, s82\nv_mov_b32 v{3+i}, s{T0}")
    A(f"s_getreg_b32 s{T0}, hwreg(HW_REG_XCC_ID)\nv_mov_b32 v14, s{T0}\nv_mov_b32 v15, s{sSPIN}")
    A(f"s_lshl_b32 s{T0}, s2, 3\ns_add_u32 s{T0}, s{T0}, s{sW}\ns_add_u32 s{T0}, s{T0}, {wadd}\ns_lshl_b32 s{T0}, s{T0}, 6\ns_add_u32 s{T0}, s{T0}, {WS_STAMP}")
    A("v_mov_b32 v16, 0\ns_mov_b64 exec, 1")
    for i in range(4):
        A(f"buffer_store_dwordx4 {v(4*i,4)}, v16, {s(SWS,4)}, s{T0} offen offset:{16*i}")

HSET = ["start", "h1", "h2", "h3", "h4", "h5", "h6", "h7", "h8", "h9", "h10"]
def hstamp(A, i):
    if CFG.stamp:
        b = SREG(i)
        A(f"s_memtime s[{b}:{b+1}]")

def gen(A):
    kernel_head(A, KN)
    A("s_cmp_ge_u32 s2, 256\ns_cbranch_scc1 L_END")
    if CFG.stamp or CFG.spin_us:
        A("s_memrealtime s[80:81]")
    stamp(A, "start")
    A("s_load_dwordx16 s[36:51], s[0:1], 0")
    A("s_load_dwordx8 s[52:59], s[0:1], 64")
    A(f"s_and_b32 s{sXCD}, s2, 7\ns_lshr_b32 s{sJ}, s2, 3")
    A(f"s_lshl_b32 s{sRB}, s{sXCD}, 2\ns_lshr_b32 s{T0}, s{sJ}, 3\ns_add_u32 s{sRB}, s{sRB}, s{T0}\ns_and_b32 s{sC8}, s{sJ}, 7")
    A(f"s_lshr_b32 s{sRBK}, s{sRB}, 1\ns_and_b32 s{sC16}, s{sJ}, 15")
    if CFG.m42:
        A(f"s_lshr_b32 s{sPX}, s{sXCD}, 1\ns_lshr_b32 s{sRL1}, s{sJ}, 2\ns_lshl_b32 s{sRB1}, s{sPX}, 3\ns_add_u32 s{sRB1}, s{sRB1}, s{sRL1}")
        A(f"s_and_b32 s{T1}, s{sJ}, 3\ns_and_b32 s{sHQ}, s{sXCD}, 1\ns_lshl_b32 s{sHQ}, s{sHQ}, 2\ns_add_u32 s{sHQ}, s{sHQ}, s{T1}")
        A(f"s_lshl_b32 s{sROT}, s{T1}, 1\ns_add_u32 s{sROT}, s{sROT}, s{sRL1}\ns_add_u32 s{sROT}, s{sROT}, s{sPX}\ns_lshl_b32 s{T1}, s{T1}, 3")
    else:
        A(f"s_mov_b32 s{sPX}, s{sXCD}\ns_mov_b32 s{sRL1}, s{T0}\ns_mov_b32 s{sRB1}, s{sRB}\ns_mov_b32 s{sHQ}, s{sC8}")
        A(f"s_lshl_b32 s{sROT}, s{T0}, 1\ns_add_u32 s{sROT}, s{sROT}, s{sC8}\ns_add_u32 s{sROT}, s{sROT}, s{sXCD}\ns_lshl_b32 s{T1}, s{sC8}, 2")
    A(f"s_and_b32 s{sROT}, s{sROT}, {7 if CFG.rot == 1 else (6 if CFG.rot == 2 else 0)}\ns_lshl_b32 s3, s{sXCD}, 5\ns_add_u32 s3, s3, s{T1}")
    A(f"v_lshrrev_b32 v1, 6, v0\nv_and_b32 v0, 63, v0\nv_readfirstlane_b32 s{sW}, v1")
    A(f"s_mov_b32 s{sSPIN}, 0x80000")
    A(f"v_lshlrev_b32 v4, 4, v0")
    A(f"s_cmp_lt_u32 s{sW}, 4\ns_cbranch_scc1 L_COMPUTE")
    helper(A)
    A.label("L_COMPUTE")
    compute(A)
    A.label("L_END")
    A("s_endpgm")

VL16 = 4

def load_nonce(A):
    A(f"s_mov_b32 s{sGB}, s3")
    A(f"s_add_u32 s{T0}, s{PTR(11)}, {WS_EPOCH}\ns_addc_u32 s{T1}, s{PTR(11)+1}, 0\ns_load_dword s{sNONCE}, s[{T0}:{T1}], 0")
def fin_nonce(A):
    A(f"s_waitcnt lgkmcnt(0)\ns_add_u32 s{sNONCE}, s{sNONCE}, 16\ns_and_b32 s{sNONCE}, s{sNONCE}, -16\ns_or_b32 s{sNONCE}, s{sNONCE}, 8")

def common_srds(A):
    A("s_waitcnt lgkmcnt(0)")
    load_nonce(A)
    srd(A, SX_, PTR(0), 2097152)
    srd(A, SWS, PTR(11), WS_SIZE)
    fin_nonce(A)

def wide_pattern(A, dst, stride, t1=1, t2=2, t3=3):
    A(f"v_lshrrev_b32 v{t1}, 3, v0\nv_and_b32 v{t2}, 7, v0\nv_bfe_u32 v{t3}, v0, 4, 1\nv_lshlrev_b32 v{t3}, 2, v{t3}\nv_xor_b32 v{t2}, v{t2}, v{t3}\nv_lshlrev_b32 v{t2}, 4, v{t2}")
    A(f"v_mul_u32_u24 v{t1}, {stride}, v{t1}\nv_add_u32 v{dst}, v{t1}, v{t2}")


GMASK = "0x1ffff"
QW = [156672 + 320, 162816 + 64]
VERD = 3072

C_QW, C_E1, C_QT, C_E2, C_NON, C_WQ, C_SV = 0, 4, 8, 12, 16, 24, 28
C_FULL, C_KV, C_FREE = 32, 40, 48
def ctl_setup(A, vadr, vone, t):
    A(f"v_mov_b32 v{vone}, 1\nv_mov_b32 v{vadr}, {QW[0]}\nv_mov_b32 v{t}, {QW[1]}\nv_cmp_eq_u32 vcc, 0, v0\nv_cndmask_b32 v{vadr}, v{t}, v{vadr}, vcc")
def ctl_add(A, vadr, vone, off, restore="-1"):
    A(f"s_mov_b64 exec, 3\nds_add_u32 v{vadr}, v{vone} offset:{off}\ns_mov_b64 exec, {restore}")
def ctl_wait(A, vadr, vt, off, thr, sleep=0):
    l, le = uid("CW"), uid("CE")
    A.label(l)
    A(f"ds_read_b32 v{vt}, v{vadr} offset:{off}\ns_sub_u32 s{sSPIN}, s{sSPIN}, 1\ns_cmp_lt_i32 s{sSPIN}, 0\ns_cbranch_scc1 {le}")
    A(f"s_waitcnt lgkmcnt(0)\nv_readfirstlane_b32 s3, v{vt}\ns_cmp_lt_u32 s3, {thr}")
    if sleep:
        A(f"s_cbranch_scc0 {le}\ns_sleep {sleep}\ns_branch {l}")
    else:
        A(f"s_cbranch_scc1 {l}")
    A.label(le)

def free_wait(A, vadr, vt, thr, sleep=1):
    l, le = uid("FW"), uid("FE")
    A.label(l)
    A(f"ds_read_b128 {v(vt,4)}, v{vadr} offset:{C_FREE}\ns_sub_u32 s{sSPIN}, s{sSPIN}, 1\ns_cmp_lt_i32 s{sSPIN}, 0\ns_cbranch_scc1 {le}")
    A(f"s_waitcnt lgkmcnt(0)\nv_min3_u32 v{vt}, v{vt}, v{vt+1}, v{vt+2}\nv_min_u32 v{vt}, v{vt}, v{vt+3}\nv_readfirstlane_b32 s3, v{vt}\ns_cmp_lt_u32 s3, {thr}")
    A(f"s_cbranch_scc0 {le}\ns_sleep {sleep}\ns_branch {l}")
    A.label(le)

def set_gexec(A):
    A(f"s_mov_b32 exec_lo, {GMASK}\ns_mov_b32 exec_hi, {GMASK}")

def slot_addr(A, dst, t):
    A(f"v_and_b32 v{t}, 31, v0\nv_min_u32 v{t}, 16, v{t}\nv_lshrrev_b32 v{dst}, 5, v0\nv_mul_u32_u24 v{dst}, 17, v{dst}\nv_add_lshl_u32 v{dst}, v{dst}, v{t}, 4")

def gval(G, r):
    return G + 4*(r // 3) + (r % 3)

def pair_gather(A, va, vz, shl):
    A(f"s_lshr_b32 s{T0}, s{shl}, 1\ns_lshl_b32 s{T0}, s{T0}, 14\ns_and_b32 s{T1}, s{shl}, 1\ns_mul_i32 s{T2}, s{T1}, {4096+256}\ns_add_u32 s{T2}, s{T2}, s{T0}\ns_add_u32 s{T2}, s{T2}, {RL}")
    A(f"v_lshl_add_u32 v{va}, v0, 2, s{T2}")
    A(f"s_mul_i32 s{T2}, s{T1}, {4096-256}\ns_add_u32 s{T2}, s{T2}, s{T0}\ns_add_u32 s{T2}, s{T2}, {RL+256}")
    A(f"v_bfe_u32 v{vz}, v0, 2, 3\nv_lshlrev_b32 v{vz}, 9, v{vz}\nv_and_b32 v3, 3, v0\nv_lshl_add_u32 v{vz}, v3, 2, v{vz}\nv_add_u32 v{vz}, s{T2}, v{vz}")

def pair_gather2(A, G, tmp, va, vz):
    for i in range(8):
        A(f"ds_read2st64_b32 {v(tmp+2*i,2)}, v{va} offset0:{2*i} offset1:{2*i+32}")
    A(f"ds_read2st64_b32 {v(tmp+16,2)}, v{vz} offset0:0 offset1:32")
    for i in range(9):
        A(f"s_waitcnt lgkmcnt({8-i})\nv_add_f32 v{gval(G,i)}, v{tmp+2*i}, v{tmp+2*i+1}")

def set_tags(A, G, n):
    for g in range(n):
        A(f"v_mov_b32 v{G+4*g+3}, s{sNONCE}")

def tagged_poll(A, loads, regs, sleep=0):
    l, le = uid("TP"), uid("TE")
    A.label(l)
    for o in loads: A(o)
    A(f"s_sub_u32 s{sSPIN}, s{sSPIN}, 1\ns_cmp_lt_i32 s{sSPIN}, 0\ns_cbranch_scc1 {le}")
    n = len(regs)
    acc = regs[0]
    A(f"s_waitcnt vmcnt(0)")
    t = TPT
    A(f"v_xor_b32 v{t}, s{sNONCE}, v{regs[0]}")
    for i in range(1, n):
        A(f"v_xor_b32 v{t+1}, s{sNONCE}, v{regs[i]}\nv_or_b32 v{t}, v{t}, v{t+1}")
    A(f"v_cmp_ne_u32 vcc, 0, v{t}")
    if sleep:
        A(f"s_cbranch_vccz {le}\ns_sleep {sleep}\ns_branch {l}")
    else:
        A(f"s_cbranch_vccnz {l}")
    A.label(le)
    A("s_waitcnt vmcnt(0)")
TPT = 62

def w1pat(A, VB):
    for i in range(3):
        A(f"v_add_u32 v1, {64*i}, v0\nv_mul_u32_u24 v2, 43691, v1\nv_lshrrev_b32 v2, 19, v2\nv_mul_u32_u24 v3, 12, v2\nv_sub_u32 v1, v1, v3")
        A(f"v_mul_u32_u24 v2, 2752, v2\nv_lshl_add_u32 v{VB+i}, v1, 4, v2")
def w1base(A, quarter):
    A(f"s_and_b32 s{T4}, s{sC16}, {3 if CFG.arot else 0}\ns_add_u32 s{T4}, s{T4}, {quarter}\ns_and_b32 s{T4}, s{T4}, 3\ns_mul_i32 s{T4}, s{T4}, {128*2752}\ns_mul_i32 s{T0}, s{sC16}, 192\ns_add_u32 s{T4}, s{T4}, s{T0}")
def w1regs(A, base, ngroups, VB):
    for g in range(ngroups):
        A(f"s_add_u32 s{T0}, s{T4}, {g*16*2752}")
        for i in range(3):
            A(f"buffer_load_dwordx4 {v(base+12*g+4*i,4)}, v{VB+i}, {s(ST1,4)}, s{T0} offen")

def helper(A):
    sI = sW
    A(f"s_sub_u32 s{sI}, s{sW}, 4")
    A(f"s_cmp_eq_u32 s{sI}, 2\ns_cbranch_scc1 L_TOUCH\ns_cmp_eq_u32 s{sI}, 3\ns_cbranch_scc1 L_REG")
    if CFG.hprio: A(f"s_setprio {CFG.hprio}")
    VX0, VX1, VW, VW1, VW2 = 5, 6, 7, 8, 9
    A(f"v_lshrrev_b32 v1, 3, v0\nv_and_b32 v2, 7, v0\nv_lshrrev_b32 v3, 4, v0")
    A(f"v_xor_b32 v{VX0}, v2, v3\nv_lshlrev_b32 v{VX0}, 4, v{VX0}\nv_lshl_add_u32 v{VX0}, v1, 10, v{VX0}")
    A(f"v_xor_b32 v{VX1}, 64, v{VX0}\nv_add_u32 v{VX1}, {8192-1024}, v{VX1}")
    wide_pattern(A, VW, 3072)
    A(f"v_add_u32 v{VW1}, {24576-2048}, v{VW}\nv_add_u32 v{VW2}, {24576-1024}, v{VW}")
    sXO, sWO, sXL, sRL = T4, T5, T6, T7
    A(f"s_lshl_b32 s{sXO}, s{sRB1}, 16\ns_lshl_b32 s{T0}, s{sI}, 15\ns_add_u32 s{sXO}, s{sXO}, s{T0}")
    A(f"s_lshl_b32 s{sWO}, s{sHQ}, 7\ns_mul_i32 s{T0}, s{sI}, {32*3072}\ns_add_u32 s{sWO}, s{sWO}, s{T0}")
    A(f"s_lshl_b32 s{sXL}, s{sI}, 12\ns_lshl_b32 s{sRL}, s{sI}, 13\ns_add_u32 s{sRL}, s{sRL}, {RING}")
    A("s_waitcnt lgkmcnt(0)")
    hstamp(A, 1)
    srd(A, SX_, PTR(0), 2097152)
    srd(A, SW_, PTR(1), 1572864)
    def issue(sq):
        if sq < 8:
            A(f"s_add_u32 s{T0}, s{sROT}, {sq}\ns_and_b32 s{T0}, s{T0}, 7")
            A(f"s_lshl_b32 s{T1}, s{T0}, 7\ns_add_u32 s{T1}, s{T1}, s{sXO}")
            A(f"s_mul_i32 s{T2}, s{T0}, {64*3072}\ns_add_u32 s{T2}, s{T2}, s{sWO}\ns_add_u32 s{T2}, s{T2}, 1024")
            for g in range(2):
                A(f"s_add_u32 m0, s{sXL}, {XL + sq*8192 + g*2048}")
                if g: A(f"s_add_u32 s{T1}, s{T1}, 16384")
                A(f"buffer_load_dwordx4 v{VX0}, {s(SX_,4)}, s{T1} offen lds")
                A(f"buffer_load_dwordx4 v{VX1}, {s(SX_,4)}, s{T1} offen offset:1024 lds")
                A(f"s_add_u32 m0, s{sRL}, {(sq & 3)*16384 + g*4096}")
                if g: A(f"s_add_u32 s{T2}, s{T2}, {16*3072}")
                A(f"buffer_load_dwordx4 v{VW}, {s(SW_,4)}, s{T2} offen lds")
                A(f"buffer_load_dwordx4 v{VW}, {s(SW_,4)}, s{T2} offen offset:1024 lds")
                A(f"buffer_load_dwordx4 v{VW1}, {s(SW_,4)}, s{T2} offen offset:2048 lds")
                A(f"buffer_load_dwordx4 v{VW1}, {s(SW_,4)}, s{T2} offen offset:3072 lds")
        else:
            p = sq - 8
            for sh in range(2):
                A(f"s_add_u32 s{T0}, s{sROT}, {2*p+sh}\ns_and_b32 s{T0}, s{T0}, 7")
                A(f"s_mul_i32 s{T2}, s{T0}, {64*3072}\ns_add_u32 s{T2}, s{T2}, s{sWO}")
                for g in range(2):
                    A(f"s_add_u32 m0, s{sXL}, {RING + p*16384 + sh*8192 + g*2048}")
                    if g: A(f"s_add_u32 s{T2}, s{T2}, {16*3072}")
                    A(f"buffer_load_dwordx4 v{VW}, {s(SW_,4)}, s{T2} offen lds")
                    A(f"buffer_load_dwordx4 v{VW2}, {s(SW_,4)}, s{T2} offen offset:1024 lds")
    issue(0)
    hstamp(A, 2)
    srd(A, ST0, PTR(2), 16384)
    A(f"s_lshl_b32 s{T0}, s{sHQ}, 11\ns_lshl_b32 s{T1}, s{sI}, 10\ns_add_u32 s{T0}, s{T0}, s{T1}")
    A(f"s_lshl_b32 s{T1}, s{sI}, 14\ns_add_u32 m0, s{T1}, {RL}")
    A(f"buffer_load_dwordx4 v{VL16}, {s(ST0,4)}, s{T0} offen lds")
    A(f"s_add_u32 m0, s{T1}, {RL+8192}")
    A(f"buffer_load_dwordx4 v{VL16}, {s(ST0,4)}, s{T0} offen lds")
    issue(1)
    hstamp(A, 3)
    load_nonce(A)
    A(f"v_mov_b32 v25, {QW[0]}\ns_cmp_eq_u32 s{sI}, 1\ns_cselect_b32 s{T0}, {QW[1]-QW[0]}, 0\nv_add_u32 v25, s{T0}, v25\nv_mov_b32 v21, 0")
    ctl_setup(A, 11, 10, 12)
    PF = 128
    A(f"v_add_u32 v13, s{sRL}, v{VL16}\nv_add_u32 v14, 24576, v{VW}")
    def issue_reg(sq):
        A(f"s_add_u32 s{T0}, s{sROT}, {sq}\ns_and_b32 s{T0}, s{T0}, 7")
        A(f"s_lshl_b32 s{T1}, s{T0}, 7\ns_add_u32 s{T1}, s{T1}, s{sXO}")
        A(f"s_mul_i32 s{T2}, s{T0}, {64*3072}\ns_add_u32 s{T2}, s{T2}, s{sWO}\ns_add_u32 s{T2}, s{T2}, 1024")
        for g in range(2):
            A(f"s_add_u32 m0, s{sXL}, {XL + sq*8192 + g*2048}")
            if g: A(f"s_add_u32 s{T1}, s{T1}, 16384\ns_add_u32 s{T2}, s{T2}, {16*3072}")
            A(f"buffer_load_dwordx4 v{VX0}, {s(SX_,4)}, s{T1} offen lds")
            A(f"buffer_load_dwordx4 v{VX1}, {s(SX_,4)}, s{T1} offen offset:1024 lds")
            for e in range(2):
                for sg in range(2):
                    r = PF + 32*(sq-4) + 16*g + 8*e + 4*sg
                    A(f"buffer_load_dwordx4 {v(r,4)}, v{14 if e else VW}, {s(SW_,4)}, s{T2} offen offset:{sg*1024}")
    def dump(sq):
        for b_ in range(8):
            A(f"ds_write_b128 v13, {v(PF + 32*(sq-4) + 4*b_,4)} offset:{(sq & 3)*16384 + b_*1024}")
    fin_nonce(A)
    A("s_waitcnt vmcnt(12)")
    hstamp(A, 4)
    A("s_barrier")
    issue(2); issue(3)
    A("s_waitcnt vmcnt(24)\ns_barrier")
    issue_reg(4); issue_reg(5)
    A("s_waitcnt vmcnt(36)\ns_barrier")
    issue_reg(6); issue_reg(7)
    A("s_waitcnt vmcnt(36)")
    dump(4)
    A("s_barrier")
    nq = 0
    for c in range(4, 8):
        if c + 1 < 8:
            A(f"s_waitcnt vmcnt({12*(6-c) + 8*nq})")
            if c == 5: hstamp(A, 2)
            dump(c + 1)
        if c == 5: hstamp(A, 6)
        A("s_waitcnt lgkmcnt(0)")
        if c == 5: hstamp(A, 7)
        A("s_barrier")
        if c == 5: hstamp(A, 8)
        if c >= 5 and not CFG.wqlate:
            issue(8 + c - 5); nq += 1
    if CFG.wqlate:
        issue(8); issue(9); issue(10)
    ctl_wait(A, 25, 26, C_E1, 4, 1)
    issue(11)
    srd(A, SWS, PTR(11), WS_SIZE)
    srd(A, ST0, PTR(3), 524288)
    VO0, VO1 = 16, 17
    wide_pattern(A, VO0, 1024)
    A(f"v_add_u32 v{VO1}, {8192-1024}, v{VO0}")
    srd(A, ST1, PTR(5), 512*2752)
    w1pat(A, 18)
    A("v_subrev_u32 v19, 1024, v19\nv_subrev_u32 v20, 2048, v20")
    A(f"s_lshl_b32 s{T4}, s{sI}, 18\ns_lshl_b32 s{T0}, s{sC8}, 7\ns_add_u32 s{T4}, s{T4}, s{T0}\ns_lshl_b32 s{T6}, s{sI}, 15")
    A(f"s_and_b32 s{T0}, s{sC8}, {1 if CFG.arot else 0}\ns_lshl_b32 s{T0}, s{T0}, 16\ns_sub_u32 s{T5}, s{T4}, s{T0}\ns_add_u32 s{T4}, s{T4}, s{T0}")
    A("s_waitcnt vmcnt(0)")
    ctl_add(A, 11, 10, C_WQ)
    hstamp(A, 5)
    ctl_wait(A, 25, 26, C_QW, 5, 2)
    hstamp(A, 9)
    for k in range(16):
        A(f"s_add_u32 m0, s{T6}, {k*2048}\ns_add_u32 s{T0}, s{T5 if k & 4 else T4}, {k*16384}")
        A(f"buffer_load_dwordx4 v{VO0}, {s(ST0,4)}, s{T0} offen lds")
        A(f"buffer_load_dwordx4 v{VO1}, {s(ST0,4)}, s{T0} offen offset:1024 lds")
    A(f"s_lshl_b32 s{T1}, s2, 4\ns_lshl_b32 s{T2}, s{sI}, 3\ns_add_u32 s{T1}, s{T1}, s{T2}\ns_add_u32 s{T1}, s{T1}, {WS_FW}")
    def hw1(c):
        A(f"s_add_u32 s{T0}, s{T6}, {c}\ns_and_b32 s{T0}, s{T0}, 7\ns_mul_i32 s{T0}, s{T0}, {64*2752}\ns_add_u32 s{T0}, s{T0}, s{T4}")
        for g in range(2):
            A(f"s_add_u32 m0, s{T5}, {c*12288 + g*3072}")
            if g: A(f"s_add_u32 s{T0}, s{T0}, {16*2752}")
            for i in range(3):
                off = f" offset:{i*1024}" if i else ""
                A(f"buffer_load_dwordx4 v{18+i}, {s(ST1,4)}, s{T0} offen{off} lds")
    if not CFG.w1c:
        A(f"s_mul_i32 s{T4}, s{sI}, {32*2752}\ns_mul_i32 s{T0}, s{sC16}, 192\ns_add_u32 s{T4}, s{T4}, s{T0}\ns_mul_i32 s{T5}, s{sI}, 6144\ns_add_u32 s{T5}, s{T5}, 65536")
        A(f"s_and_b32 s{T6}, s{sC16}, {3 if CFG.arot else 0}\ns_lshl_b32 s{T6}, s{T6}, 1")
        hw1(0); hw1(1)
    A(f"v_mov_b32 v22, s{sNONCE}\nv_mov_b32 v23, s{sNONCE}\ns_waitcnt vmcnt({0 if CFG.w1c else 12})\ns_mov_b64 exec, 1")
    A(f"buffer_store_dwordx2 v[22:23], v21, {s(SWS,4)}, s{T1} offen")
    A("s_mov_b64 exec, -1")
    hstamp(A, 10)
    if not CFG.w1c:
        for c in range(2, 7): hw1(c)
        A(f"s_waitcnt vmcnt({CFG.ddn})")
        ctl_add(A, 11, 10, C_FULL)
        ctl_wait(A, 25, 26, C_SV, 4, 2)
        hw1(7)
        if CFG.hw2:
            srd(A, ST1, PTR(7), 1376*1024)
            A(f"s_mul_i32 s{T4}, s{sI}, {2*22*16*1024}\ns_lshl_b32 s{T0}, s{sC8}, 7\ns_add_u32 s{T4}, s{T4}, s{T0}")
            A(f"s_mul_i32 s{sROT}, s{sC8}, {3 if CFG.arot else 0}")
        A("s_waitcnt vmcnt(0)")
        if CFG.hw2:
            def hw2batch(lo, n):
                if lo == 0: A(f"s_lshl_b32 s{T5}, s{sI}, 15")
                else: A(f"s_mul_i32 s{T5}, s{sI}, {2*24576}\ns_add_u32 s{T5}, s{T5}, {65536 - 8*2048}")
                A(f"s_and_b32 s{T6}, s{sRB}, 3\ns_mul_i32 s{T6}, s{T6}, {n//4}\ns_add_u32 s{T6}, s{T6}, {lo}")
                for k in range(n):
                    A(f"s_add_u32 s{T2}, s{T6}, s{sROT}\ns_cmp_ge_u32 s{T2}, 22\ns_cselect_b32 s3, 22, 0\ns_sub_u32 s{T2}, s{T2}, s3\ns_lshl_b32 s{T2}, s{T2}, 14\ns_add_u32 s{T2}, s{T2}, s{T4}")
                    A(f"s_lshl_b32 s{T1}, s{T6}, 11\ns_add_u32 s{T1}, s{T1}, s{T5}")
                    for u in range(2):
                        A(f"s_add_u32 m0, s{T1}, {u*(16384 if lo == 0 else 24576)}")
                        if u: A(f"s_add_u32 s{T2}, s{T2}, {22*16*1024}")
                        A(f"buffer_load_dwordx4 v{VO0}, {s(ST1,4)}, s{T2} offen lds")
                        A(f"buffer_load_dwordx4 v{VO1}, {s(ST1,4)}, s{T2} offen offset:1024 lds")
                    A(f"s_add_u32 s{T6}, s{T6}, 1\ns_cmp_eq_u32 s{T6}, {lo+n}\ns_cselect_b32 s{T6}, {lo}, s{T6}")
            A("s_barrier\ns_barrier\ns_barrier")
            A("s_barrier")
            hw2batch(0, 8)
            A("s_barrier")
            hw2batch(8, 12)
            A("s_waitcnt vmcnt(0)\ns_barrier")
    A("s_branch L_HEND")

    A.label("L_TOUCH")
    if CFG.ctouch:
        A(f"s_getpc_b64 s[{T4}:{T5}]")
        A.label("L_PC")
        A(f"s_sub_u32 s{T4}, s{T4}, L_PC-{KN}\ns_subb_u32 s{T5}, s{T5}, 0")
        A(f"v_lshlrev_b32 v1, 5, v0\nv_add_u32 v1, s{sJ}, v1\nv_lshlrev_b32 v1, 7, v1\ns_mov_b32 s{T0}, L_END-{KN}\nv_cmp_gt_u32 vcc, s{T0}, v1\ns_and_saveexec_b64 s[{T2}:{T3}], vcc")
        A(f"global_load_dword v251, v1, s[{T4}:{T5}]\ns_mov_b64 exec, -1")
    VT, VA = 5, 6
    A(f"v_lshlrev_b32 v{VT}, 7, v0")
    A("s_waitcnt lgkmcnt(0)")
    srd(A, SWS, PTR(11), WS_SIZE)
    class Rec:
        def __init__(s_): s_.groups = [[]]
        def __call__(s_, t): s_.groups[-1].append(t)
    Aout = A
    A = Rec()
    def touch(sr, soff, nlines, va=VT, step=8192):
        k = 0
        while nlines > 0:
            n = min(64, nlines)
            if n < 64: A(f"s_mov_b64 exec, {hex((1 << n) - 1) if n <= 32 else -1}")
            if 32 < n < 64: A(f"s_mov_b32 exec_hi, {hex((1 << (n-32)) - 1)}")
            A(f"s_add_u32 s{T3}, s{soff}, {k*step}")
            A(f"buffer_load_dword v250, v{va}, {s(sr,4)}, s{T3} offen")
            if n < 64: A("s_mov_b64 exec, -1")
            if n > 16: A.groups.append([])
            nlines -= n; k += 1
    def do(what):
        if what == "p1":
            srd(A, ST0, PTR(0), 2097152); srd(A, ST1, PTR(1), 1572864)
            A(f"v_lshrrev_b32 v1, 5, v0\nv_mul_u32_u24 v1, {64*3072}, v1\nv_bfe_u32 v2, v0, 4, 1\nv_mul_u32_u24 v2, 3072, v2\nv_and_b32 v3, 15, v0\nv_lshlrev_b32 v3, 7, v3\nv_add3_u32 v{VA}, v1, v2, v3")
            A(f"s_mul_i32 s{T0}, s{sJ}, 6144\ns_add_u32 s{T0}, s{T0}, {128*3072 + 1024}")
            touch(ST1, T0, 64, VA)
            A(f"v_mul_u32_u24 v1, 43, v0\nv_lshrrev_b32 v1, 8, v1\nv_mul_u32_u24 v2, 6, v1\nv_sub_u32 v2, v0, v2\nv_lshlrev_b32 v2, 7, v2\nv_lshl_add_u32 v7, v1, 10, v2")
            A(f"s_lshl_b32 s{T1}, s{sXCD}, 18\ns_lshl_b32 s{T2}, s{sJ}, 13\ns_add_u32 s{T1}, s{T1}, s{T2}\ns_add_u32 s{T1}, s{T1}, 256")
            touch(ST0, T1, 48, 7)
            A(f"s_add_u32 s{T0}, s{T0}, {128*3072}")
            touch(ST1, T0, 128, VA, 128*3072)
        elif what == "wq":
            srd(A, ST1, PTR(1), 1572864)
            if CFG.m42:
                A(f"v_lshrrev_b32 v1, 2, v0\nv_mul_u32_u24 v1, 3072, v1\nv_and_b32 v2, 3, v0\nv_lshl_add_u32 v{VA}, v2, 7, v1")
                A(f"s_mul_i32 s{T0}, s{sJ}, {16*3072}\ns_and_b32 s{T1}, s{sXCD}, 1\ns_lshl_b32 s{T1}, s{T1}, 9\ns_add_u32 s{T0}, s{T0}, s{T1}")
                touch(ST1, T0, 64, VA)
            else:
                A(f"v_lshrrev_b32 v1, 3, v0\nv_mul_u32_u24 v1, 3072, v1\nv_and_b32 v2, 7, v0\nv_lshl_add_u32 v{VA}, v2, 7, v1")
                A(f"s_mul_i32 s{T0}, s{sJ}, {16*3072}")
                touch(ST1, T0, 128, VA, 8*3072)
        elif what == "wo":
            srd(A, ST0, PTR(3), 524288)
            A(f"s_lshl_b32 s{T0}, s{sJ}, 14"); touch(ST0, T0, 128)
        elif what in ("w1", "w1a", "w1b"):
            srd(A, ST1, PTR(5), 512*2752)
            A(f"s_mul_i32 s{T0}, s{sJ}, 44032")
            if what == "w1b": A(f"s_add_u32 s{T0}, s{T0}, {192*128}")
            touch(ST1, T0, {"w1": 344, "w1a": 192, "w1b": 152}[what])
        elif what == "w2":
            srd(A, ST1, PTR(7), 1376*1024)
            A(f"s_mul_i32 s{T0}, s{sJ}, 44032"); touch(ST1, T0, 344)
        elif what == "fl":
            A(f"s_lshl_b32 s{T0}, s{sRBK}, 8\ns_add_u32 s{T0}, s{T0}, {WS_F1}\nv_and_b32 v1, 1, v0\nv_lshlrev_b32 v1, 7, v1\nv_lshrrev_b32 v2, 1, v0\nv_lshl_add_u32 v{VA}, v2, 12, v1")
            touch(SWS, T0, 8, VA)
            A(f"s_lshl_b32 s{T0}, s2, 4\ns_add_u32 s{T0}, s{T0}, {WS_FW}"); touch(SWS, T0, 1)
            if CFG.m42:
                A(f"s_lshl_b32 s{T0}, s{sRB}, 12\ns_lshl_b32 s{T1}, s{sC8}, 9\ns_add_u32 s{T0}, s{T0}, s{T1}\ns_add_u32 s{T0}, s{T0}, {WS_F1X}"); touch(SWS, T0, 4)
        elif what in ("pa", "pal", "pa1", "pa24"):
            A(f"s_add_u32 s{T0}, s3, s{sRL1}\ns_mul_i32 s{T0}, s{T0}, {4*PSTR}\ns_add_u32 s{T0}, s{T0}, {WS_PA}")
            if what == "pa":
                A(f"v_lshrrev_b32 v1, 5, v0\nv_mul_u32_u24 v1, {PSTR}, v1\nv_and_b32 v2, 31, v0\nv_min_u32 v2, 29, v2\nv_lshl_add_u32 v{VA}, v2, 7, v1")
                touch(SWS, T0, 128, VA, 2*PSTR)
            elif what == "pa24":
                touch(SWS, T0, 96)
            elif what == "pa1":
                A(f"v_mul_u32_u24 v{VA}, {PSTR}, v0\ns_add_u32 s{T0}, s{T0}, {2*1024}")
                touch(SWS, T0, 4, VA)
            else:
                A(f"v_lshrrev_b32 v1, 3, v0\nv_mul_u32_u24 v1, {PSTR}, v1\nv_and_b32 v2, 7, v0\nv_min_u32 v2, 4, v2\nv_lshl_add_u32 v{VA}, v2, 7, v1\ns_add_u32 s{T0}, s{T0}, {5*GST}")
                touch(SWS, T0, 32, VA)
        elif what == "pc":
            A(f"s_lshl_b32 s{T0}, s{sXCD}, 5\ns_lshl_b32 s{T1}, s{sC8}, 2\ns_add_u32 s{T0}, s{T0}, s{T1}\ns_and_b32 s{T2}, s{sRB}, 3\ns_add_u32 s{T0}, s{T0}, s{T2}\ns_lshl_b32 s{T0}, s{T0}, 11\ns_add_u32 s{T0}, s{T0}, {WS_PC}")
            touch(SWS, T0, 15)
        elif what == "pb1":
            A(f"s_lshl_b32 s{T0}, s{sHQ}, 2\ns_and_b32 s{T2}, s{sRL1}, 3\ns_add_u32 s{T0}, s{T0}, s{T2}\ns_lshl_b32 s{T0}, s{T0}, 3\ns_add_u32 s{T0}, s{T0}, s{sPX}\ns_mul_i32 s{T0}, s{T0}, {PSTR}\ns_add_u32 s{T0}, s{T0}, {WS_PB + 2*1024}")
            touch(SWS, T0, 1)
        elif what in ("o", "h", "h1"):
            st = {"o": CFG.ost, "h": CFG.hst, "h1": CFG.h1st}[what]
            base = {"o": WS_O, "h": WS_H, "h1": WS_H1}[what]
            A(f"s_mul_i32 s{T0}, s{sXCD}, {8*st}\ns_mul_i32 s{T1}, s{sJ}, {st//4}\ns_add_u32 s{T0}, s{T0}, s{T1}\ns_add_u32 s{T0}, s{T0}, {base}")
            touch(SWS, T0, st // 512)
        elif what == "st":
            A(f"s_lshl_b32 s{T0}, s{sXCD}, 15\ns_lshl_b32 s{T1}, s{sJ}, 10\ns_add_u32 s{T0}, s{T0}, s{T1}\ns_add_u32 s{T0}, s{T0}, {WS_ST}")
            touch(SWS, T0, 8)
        elif what == "wait":
            A("s_waitcnt vmcnt(0)")
        elif what.startswith("nop"):
            for _ in range(int(what[3:])): A("s_nop 15")
        else:
            raise ValueError(what)
    for w_ in CFG.tl.split(","):
        if w_: do(w_)
    g1 = [g for g in A.groups if g]
    A.groups = [[]]
    for w_ in CFG.t2.split(","):
        if w_: do(w_)
    g2 = [g for g in A.groups if g]
    A = Aout
    pace = [int(x) for x in CFG.pace.split(",")]
    def emit(n):
        for _ in range(n):
            if g1:
                for t in g1.pop(0): A(t)
    emit(pace[0])
    for c in range(8):
        A("s_barrier")
        emit(pace[c+1])
    emit(99)
    hstamp(A, 5)
    A("s_branch L_HEND")

    A.label("L_REG")
    ctl_setup(A, 11, 10, 12)
    A("v_mov_b32 v12, 0\nv_mov_b32 v13, 0\nv_mov_b32 v14, 0\nv_mov_b32 v15, 0\ns_mov_b64 exec, 3")
    for i in range(4):
        A(f"ds_write_b128 v11, v[12:15] offset:{16*i}")
    A(f"s_mov_b64 exec, -1\nv_mov_b32 v6, {QW[0]}")
    A("s_waitcnt lgkmcnt(0)")
    load_nonce(A)
    srd(A, SWS, PTR(11), WS_SIZE)
    A("v_mov_b32 v21, 0")
    sXCC, sRBL = T6, T7
    A(f"s_getreg_b32 s{sXCC}, hwreg(HW_REG_XCC_ID)\ns_and_b32 s{sXCC}, s{sXCC}, 7\ns_mov_b32 s{sRBL}, s{sRL1}")
    fin_nonce(A)
    A(f"s_or_b32 s{T5}, s{sNONCE}, s{sXCC}\nv_mov_b32 v22, s{T5}\ns_lshl_b32 s{T4}, s{sXCD}, 7\ns_add_u32 s{T4}, s{T4}, {WS_REG}\ns_lshl_b32 s{T0}, s{sJ}, 2\ns_add_u32 s{T0}, s{T0}, s{T4}\ns_mov_b64 exec, 1")
    A(f"buffer_store_dword v22, v21, {s(SWS,4)}, s{T0} offen sc1\ns_mov_b64 exec, -1")
    A("v_lshlrev_b32 v20, 2, v0\nv_and_b32 v20, 127, v20")
    n1 = CFG.regat
    A("\n".join(["s_barrier"] * n1))
    A(f"buffer_load_dword v24, v20, {s(SWS,4)}, s{T4} offen sc1")
    A("\n".join(["s_barrier"] * (8 - n1)))
    A.label("S_RP")
    A(f"s_waitcnt vmcnt(0)\nv_and_b32 v25, -8, v24\nv_cmp_ne_u32 vcc, s{sNONCE}, v25\ns_cbranch_vccz S_ROK")
    A(f"buffer_load_dword v24, v20, {s(SWS,4)}, s{T4} offen sc1\ns_sub_u32 s{sSPIN}, s{sSPIN}, 1\ns_cmp_lt_i32 s{sSPIN}, 0\ns_cbranch_scc0 S_RP")
    A.label("S_ROK")
    A(f"s_waitcnt vmcnt(0)\nv_cmp_ne_u32 vcc, s{T5}, v24\ns_cmp_eq_u64 vcc, 0\ns_cselect_b32 s{sFAST}, {1 if CFG.fast else 0}, 0")
    A(f"v_mov_b32 v23, s{sFAST}\ns_mov_b64 exec, 3\nds_write_b32 v11, v23 offset:{C_NON+4}\ns_mov_b64 exec, -1")
    G, TMP, L = 32, 64, 64
    NSRC = 8 if CFG.m42 else 4
    A(f"s_cmp_lt_u32 s{sRBL}, 4\ns_cbranch_scc1 S_SERVE")
    ctl_add(A, 11, 10, C_QW)
    A("s_branch L_HEND")
    A.label("S_SERVE")
    pair_gather(A, 9, 7, sRBL)
    A(f"s_lshl_b32 s{T4}, s{sGB}, 2\ns_add_u32 s{T4}, s{T4}, s{sRBL}\ns_mul_i32 s{T4}, s{T4}, {PSTR}\ns_add_u32 s{T4}, s{T4}, {WS_PA}")
    for k in range(1, NSRC):
        A(f"s_xor_b32 s{T0}, s{sRBL}, {k}\ns_mul_i32 s{T0}, s{T0}, {4*PSTR}\ns_add_u32 s{8+k}, s{T4}, s{T0}")
    A(f"s_lshl_b32 s{T0}, s{sHQ}, 2\ns_add_u32 s{T0}, s{T0}, s{sRBL}\ns_lshl_b32 s{T0}, s{T0}, 3\ns_add_u32 s{T0}, s{T0}, s{sPX}\ns_mul_i32 s{T0}, s{T0}, {PSTR}\ns_add_u32 s8, s{T0}, {WS_PB}")
    A("s_setprio 3")
    ctl_wait(A, 11, 26, C_E2, 4, 1)
    pair_gather2(A, G, TMP, 9, 7)
    ctl_add(A, 11, 10, C_QW)
    def level(srcs, pre):
        loads = []; tags = []
        for k, sr in enumerate(srcs):
            for g in range(3):
                loads.append(f"buffer_load_dwordx4 {v(L+12*k+4*g,4)}, v{VL16}, {s(SWS,4)}, s{sr} offen offset:{g*1024} sc1")
                tags.append(L+12*k+4*g+3)
        if pre:
            A("s_mov_b64 exec, 1")
            tagged_poll(A, loads[2::3], tags[2::3], CFG.s1sleep)
            A("s_mov_b64 exec, -1")
            hstamp(A, pre)
        tagged_poll(A, loads, tags)
        for k in range(len(srcs)):
            for r in range(0, 12, 2):
                A(f"v_pk_add_f32 {v(G+r,2)}, {v(G+r,2)}, {v(L+12*k+r,2)}")
    level(list(range(9, 8 + NSRC)), 1 if (CFG.prepoll1 and not CFG.pa_fast) else 0)
    hstamp(A, 6)
    set_tags(A, G, 3)
    for g in range(3):
        A(f"buffer_store_dwordx4 {v(G+4*g,4)}, v{VL16}, {s(SWS,4)}, s8 offen offset:{g*1024} sc1")
    if CFG.srvt:
        A("v_lshlrev_b32 v6, 7, v0")
        for bit, st, base in ((1, CFG.ost, WS_O), (2, CFG.hst, WS_H)):
            if CFG.srvt & bit:
                A(f"s_mul_i32 s{T0}, s{sXCD}, {8*st}\ns_mul_i32 s{T1}, s{sJ}, {st//4}\ns_add_u32 s{T0}, s{T0}, s{T1}\ns_add_u32 s{T0}, s{T0}, {base}")
                A(f"buffer_load_dword v250, v6, {s(SWS,4)}, s{T0} offen")
        if CFG.srvt & 2:
            A(f"s_lshl_b32 s{T0}, s{sXCD}, 15\ns_lshl_b32 s{T1}, s{sJ}, 10\ns_add_u32 s{T0}, s{T0}, s{T1}\ns_add_u32 s{T0}, s{T0}, {WS_ST}\ns_mov_b64 exec, 0xff")
            A(f"buffer_load_dword v250, v6, {s(SWS,4)}, s{T0} offen\ns_mov_b64 exec, -1")
    if CFG.w2t == 2:
        srd(A, ST1, PTR(7), 1376*1024)
        A(f"s_mul_i32 s{T0}, s{sJ}, 44032\nv_lshlrev_b32 v6, 7, v0\ns_mov_b64 exec, 1")
        for k in range(7):
            A(f"buffer_load_dwordx4 {v(L+4*k,4)}, v{VL16}, {s(SWS,4)}, s{9+k} offen offset:2048 sc1")
        A(f"s_waitcnt vmcnt(0)\nv_xor_b32 v62, s{sNONCE}, v{L+3}")
        for k in range(1, 7):
            A(f"v_xor_b32 v63, s{sNONCE}, v{L+4*k+3}\nv_or_b32 v62, v62, v63")
        A("v_cmp_ne_u32 vcc, 0, v62\ns_mov_b64 exec, -1\ns_cbranch_vccz S_NOW2")
        for k in range(6):
            if k == 5: A("s_mov_b64 exec, 0xffffff")
            A(f"buffer_load_dword v250, v6, {s(ST1,4)}, s{T0} offen\ns_add_u32 s{T0}, s{T0}, 8192")
        A("s_mov_b64 exec, -1")
        A.label("S_NOW2")
    hstamp(A, 8)
    A.label("L_HEND")
    stamp_out(A, 4)
    A("s_endpgm")

def reduce4(A, pfx, ACCB, tmp, pre=(), post=()):
    aw = tmp + 64
    A(f"s_lshl_b32 s{T0}, s{sW}, 14\nv_add_u32 v{aw}, s{T0}, v{VL16}")
    for k in range(1, 4):
        A(f"s_xor_b32 s{T0}, s{sW}, {k}\ns_lshl_b32 s{T0}, s{T0}, 14\nv_add_u32 v{aw+k}, s{T0}, v{VL16}")
    for j in (1, 2, 3):
        for q in range(4):
            A(f"ds_write_b128 v{aw}, {v(ACCB+16*j+4*q,4)} offset:{j*4096+q*1024}")
            if pre: A(pre[0]); pre = pre[1:]
    A("s_waitcnt lgkmcnt(0)\ns_barrier")
    for k in range(1, 4):
        for q in range(4):
            A(f"ds_read_b128 {v(tmp+16*k+4*q,4)}, v{aw+k} offset:{k*4096+q*1024}")
    late = list(pre) + list(post)
    for k in range(1, 4):
        for q in range(4):
            if late: A(late.pop(0))
            A(f"s_waitcnt lgkmcnt({11 - 4*(k-1) - q})")
            for r in range(4*q, 4*q+4, 2):
                A(f"v_pk_add_f32 {v(ACCB+r,2)}, {v(ACCB+r,2)}, {v(tmp+16*k+r,2)}")
    for o in late: A(o)
    return ACCB

def finish_stats(A, sx, sxx, nm, rstd, t):
    A(f"v_mul_f32 v{nm}, s{sK1}, v{sx}")
    A(f"v_mul_f32 v{t}, v{nm}, v{nm}")
    A(f"v_fma_f32 v{t}, v{sxx}, s{sK1}, -v{t}")
    A(f"v_max_f32 v{t}, 0, v{t}")
    A(f"v_add_f32 v{t}, s{sK2}, v{t}")
    A(f"v_rsq_f32 v{rstd}, v{t}")
    A(f"v_sub_f32 v{nm}, 0, v{nm}")

def compute(A):
    A(f"s_and_b32 s{sRH}, s{sW}, 1\ns_lshr_b32 s{sHH}, s{sW}, 1")
    ROW, HALF = 1, 2
    XA, WA, QA = 8, 12, 16
    SEL = 20
    ONES, SXX = 5, 6
    RSA, CSK, CSV = 24, 28, 32
    FX = [36, 40]; FW = [44, 52]
    AK, AV = 64, 80
    ID, PW = 112, 120
    A(f"v_and_b32 v{ROW}, 31, v0\nv_lshrrev_b32 v{HALF}, 5, v0")
    A(f"v_lshrrev_b32 v3, 1, v{ROW}\nv_and_b32 v3, 7, v3\nv_xor_b32 v3, v3, v{HALF}\nv_lshlrev_b32 v3, 4, v3")
    A(f"v_lshl_add_u32 v3, v{ROW}, 7, v3\ns_lshl_b32 s{T0}, s{sRH}, 12\nv_add_u32 v3, s{T0}, v3")
    for k in range(4):
        A(f"s_xor_b32 s{T0}, s{sW}, {k}\ns_lshl_b32 s{T0}, s{T0}, 5\nv_xor_b32 v{XA+k}, s{T0}, v3")
    A(f"v_bfe_u32 v3, v0, 2, 2\nv_lshlrev_b32 v7, 7, v3\nv_lshrrev_b32 v3, 1, v3\nv_xor_b32 v3, s{sHH}, v3\nv_lshl_add_u32 v7, v3, 6, v7")
    A(f"v_bfe_u32 v3, v0, 4, 1\nv_lshl_add_u32 v7, v3, 5, v7\nv_and_b32 v3, 3, v0\nv_lshl_add_u32 v7, v3, 3, v7\nv_add_u32 v7, {RING}, v7")
    A(f"v_lshl_add_u32 v60, v{HALF}, 11, v7\nv_lshl_add_u32 v61, v{HALF}, 10, v7")
    for k in range(4):
        A(f"s_xor_b32 s{T0}, s{sW}, {k}\ns_lshl_b32 s{T1}, s{T0}, 12\nv_add_u32 v{WA+k}, s{T1}, v60\ns_lshl_b32 s{T1}, s{T0}, 11\nv_add_u32 v{QA+k}, s{T1}, v61")
    A(f"v_mov_b32 v{ONES}, 0x3f803f80\nv_mov_b32 v{SXX}, 0")
    A(f"v_lshrrev_b32 v3, 2, v0\nv_xor_b32 v3, v3, v0\nv_and_b32 v3, 4, v3\nv_and_b32 v7, 3, v0\nv_or_b32 v3, v3, v7\nv_cmp_eq_u32 vcc, 0, v3")
    for i in range(4):
        A(f"v_cndmask_b32 v{SEL+i}, 0, v{ONES}, vcc")
    A(f"s_mov_b32 s{sK1}, {fbits(1/512)}\ns_mov_b32 s{sK2}, {fbits(1e-5)}\ns_mov_b32 s{sK3}, {fbits(LOG2E)}")
    A(f"v_and_b32 v60, 1, v0\nv_cmp_eq_u32 vcc, 1, v60\nv_mov_b32 v61, 0x3f80\nv_mov_b32 v62, 0x3f800000\nv_cndmask_b32 v61, v61, v62, vcc")
    A(f"v_bfe_u32 v60, v0, 2, 1\nv_cmp_eq_u32 vcc, v60, v{HALF}\nv_cndmask_b32 v61, 0, v61, vcc")
    A("v_bfe_u32 v60, v0, 3, 2\nv_lshlrev_b32 v60, 1, v60\nv_bfe_u32 v62, v0, 1, 1\nv_or_b32 v60, v60, v62")
    for r in range(8):
        A(f"v_cmp_eq_u32 vcc, {r}, v60\nv_cndmask_b32 v{ID+r}, 0, v61, vcc")
    A(f"v_bfe_u32 v60, v0, 2, 2\nv_lshl_add_u32 v60, v{HALF}, 2, v60\nv_lshlrev_b32 v60, 5, v60\nv_and_b32 v61, 3, v0\nv_lshl_add_u32 v60, v61, 3, v60")
    A(f"s_lshl_b32 s{T0}, s{sW}, 13\ns_add_u32 s{T0}, s{T0}, {RL}\nv_add_u32 v60, s{T0}, v60")
    A("v_bfe_u32 v61, v0, 4, 1\nv_mul_u32_u24 v61, 0x8000, v61\nv_lshl_or_b32 v61, v61, 16, v61")
    ctl_setup(A, 110, 111, 62)
    common_srds(A)

    def reads(sq, sg_, b):
        A(f"ds_read_b128 {v(FX[b],4)}, v{XA+sg_} offset:{XL + sq*8192}")
        for sg in range(2):
            for t in range(2):
                A(f"ds_read_b64_tr_b16 {v(FW[b]+4*sg+2*t,2)}, v{WA+sg_} offset:{(sq&3)*16384 + sg*1024 + t*512}")
    for c in range(8):
        A("s_barrier")
        if c in (2, 4): stamp(A, f"B{c}")
        if c == 0:
            stamp(A, "B0")
            for e in range(2):
                for t in range(2):
                    A(f"ds_read_b64_tr_b16 {v(PW+4*e+2*t,2)}, v60 offset:{e*512+t*256}")
        reads(c, 0, 0)
        for k in range(4):
            b = k & 1
            if k < 3: reads(c, k + 1, b ^ 1)
            A(f"s_waitcnt lgkmcnt({5 if k < 3 else 0})")
            if c == 0 and k == 0:
                for i in range(8):
                    A(f"v_xor_b32 v{PW+i}, v{PW+i}, v61")
            first = (c == 0 and k == 0)
            X = FX[b]; W = FW[b]
            mfma(A, AK, W, X, None if first else AK)
            if k in (0, 3):
                m16(A, CSK, SEL, W, None if first else CSK)
            else:
                m16(A, RSA, SEL, X, None if (c == 0 and k == 1) else RSA)
            mfma(A, AV, X, W+4, None if first else AV)
            if k in (0, 3):
                m16(A, CSV, SEL, W+4, None if first else CSV)
            else:
                for i in range(4):
                    A(f"v_dot2c_f32_bf16 v{SXX}, v{X+i}, v{X+i}")
    stamp(A, "loop")
    A(f"s_xor_b32 s{T0}, s{sW}, 1\ns_lshl_b32 s{T0}, s{T0}, 13\ns_add_u32 s{T0}, s{T0}, {RL+4096}\nv_lshl_add_u32 v36, v0, 2, s{T0}")
    A(f"s_xor_b32 s{T0}, s{sW}, 2\ns_lshl_b32 s{T0}, s{T0}, 13\ns_add_u32 s{T0}, s{T0}, {RL+4096}\nv_lshl_add_u32 v37, v0, 2, s{T0}")
    A(f"s_lshl_b32 s{T0}, s{sW}, 13\ns_add_u32 s{T0}, s{T0}, {RL+4096}\nv_lshl_add_u32 v38, v0, 2, s{T0}")
    A(f"ds_write_b32 v37, v{SXX} offset:768")
    A(f"ds_write_b32 v37, v{RSA} offset:512")
    A(f"ds_write_b32 v36, v{CSK}")
    A(f"ds_write_b32 v36, v{CSV} offset:256")
    A(f"s_add_u32 s{T0}, s{T0}, 1024\nv_lshl_add_u32 v39, v{ROW}, 2, s{T0}\nv_lshl_add_u32 v40, v{HALF}, 4, s{T0}")
    ctl_add(A, 110, 111, C_E1)
    ctl_wait(A, 110, 62, C_E1, 4)
    stamp(A, "E1")
    A(f"ds_read2st64_b32 v[44:45], v38 offset0:2 offset1:3")
    A(f"ds_read2st64_b32 v[46:47], v38 offset0:0 offset1:1")
    A("v_cmp_gt_u32 vcc, 32, v0")
    A("s_waitcnt lgkmcnt(1)")
    NM, RSTD = 48, 49
    A(f"v_add_f32 v{RSA}, v{RSA}, v44\nv_add_f32 v{SXX}, v{SXX}, v45\nv_mov_b32 v50, v{SXX}")
    A(f"v_permlane32_swap_b32 v{SXX}, v50\nv_add_f32 v{SXX}, v{SXX}, v50")
    finish_stats(A, RSA, SXX, NM, RSTD, 50)
    A(f"ds_write_b32 v39, v{RSTD}")
    NF = 104
    A(f"v_cvt_pk_bf16_f32 v{NF+1}, v{NM}, 0\nv_lshlrev_b32 v50, 16, v{NF+1}\nv_sub_f32 v50, v{NM}, v50\nv_cvt_pk_bf16_f32 v{NF}, v{NM}, v50")
    A(f"v_mov_b32 v{NF+2}, 0\nv_mov_b32 v{NF+3}, 0")
    RS = 128
    A("s_waitcnt lgkmcnt(0)")
    for q in range(4):
        A(f"ds_read_b128 {v(RS+4*q,4)}, v40 offset:{q*32}")
    def cs_frag(cs, F):
        A(f"v_cndmask_b32 v{cs}, 0, v{cs}, vcc")
        A(f"v_cvt_pk_bf16_f32 v{F}, v{cs}, v{cs}\nv_lshlrev_b32 v50, 16, v{F}\nv_sub_f32 v50, v{cs}, v50")
        A(f"v_cvt_pk_bf16_f32 v{F+1}, v50, 0\nv_mov_b32 v{F+2}, 0\nv_mov_b32 v{F+3}, 0")
    A(f"v_add_f32 v{CSK}, v{CSK}, v46")
    cs_frag(CSK, 52)
    mfma(A, AK, 52, NF, AK)
    A(f"v_add_f32 v{CSV}, v{CSV}, v47")
    cs_frag(CSV, 56)
    mfma(A, AV, NF, 56, AV)
    CK = 108
    A(f"v_mul_f32 v{CK}, s{sK3}, v{RSTD}")
    def scale_pack(acc, outb):
        for i in range(0, 16, 2):
            A(f"v_pk_mul_f32 {v(acc+i,2)}, {v(acc+i,2)}, {v(CK,2)} op_sel_hi:[1,0]")
        for i in range(8):
            A(f"v_cvt_pk_bf16_f32 v{outb+i}, v{acc+2*i}, v{acc+2*i+1}")
    KB = 36
    P = [144, 160]
    scale_pack(AK, KB)
    mfma(A, P[0], PW, KB)
    mfma(A, P[1], PW+4, KB+4)
    A("s_waitcnt lgkmcnt(0)")
    VB, V0, V1 = 44, 52, 176
    for i in range(0, 16, 2):
        A(f"v_pk_mul_f32 {v(AV+i,2)}, {v(AV+i,2)}, {v(RS+i,2)}")
    for i in range(8):
        A(f"v_cvt_pk_bf16_f32 v{VB+i}, v{AV+2*i}, v{AV+2*i+1}")
    A("v_and_b32 v60, 16, v0\nv_cmp_eq_u32 vcc, 0, v60")
    for i in range(8):
        A(f"v_cndmask_b32 v{V0+i}, v{ONES}, v{VB+i}, vcc")
    for i in range(8):
        A(f"v_cndmask_b32 v{V1+i}, v{VB+i}, v{ONES}, vcc")
    TM = 184; PK = [192, 200]; T = [64, 80]; TB = [36, 44]; KV = [208, 224]
    softmax_tile(A, P[0], PK[0], TM)
    mfma(A, T[0], PK[0], ID); mfma(A, T[0], PK[0]+4, ID+4, T[0])
    softmax_tile(A, P[1], PK[1], TM)
    mfma(A, T[1], PK[1], ID); mfma(A, T[1], PK[1]+4, ID+4, T[1])
    A(f"s_lshl_b32 s{T0}, s{sW}, 13\ns_add_u32 s{T0}, s{T0}, {RL}\nv_add_u32 v60, s{T0}, v{VL16}")
    if CFG.pa_fast:
        A(f"ds_read_b32 v62, v110 offset:{C_NON+4}\ns_waitcnt lgkmcnt(0)\nv_readfirstlane_b32 s{sFAST}, v62")
    else:
        A(f"s_mov_b32 s{sFAST}, 0")
    pair_gather(A, 61, 101, sW)
    for e in range(2):
        for i in range(8):
            A(f"v_cvt_pk_bf16_f32 v{TB[e]+i}, v{T[e]+2*i}, v{T[e]+2*i+1}")
        Ve = V0 if e == 0 else V1
        mfma(A, KV[e], TB[e], Ve); mfma(A, KV[e], TB[e]+4, Ve+4, KV[e])
    stamp(A, "smdone")
    A(f"s_mov_b32 s{T6}, s{sRL1}\ns_add_u32 s{T0}, s{sGB}, s{T6}\ns_lshl_b32 s{T0}, s{T0}, 2\ns_add_u32 s{T0}, s{T0}, s{sW}\ns_mul_i32 s{T7}, s{T0}, {PSTR}\ns_add_u32 s{T7}, s{T7}, {WS_PA}")
    G = 64
    set_tags(A, G, 3)
    for e in range(2):
        m_ = GMASK if e == 0 else "0xffff0001"
        A(f"s_mov_b32 exec_lo, {m_}\ns_mov_b32 exec_hi, {m_}")
        for q in range(4):
            A(f"ds_write_b128 v60, {v(KV[e]+4*q,4)} offset:{e*4096+q*1024}")
    ctl_add(A, 110, 111, C_E2)
    ctl_wait(A, 110, 62, C_E2, 4)
    stamp(A, "E2")
    A(f"s_cmp_eq_u32 s{T6}, s{sW}\ns_cbranch_scc1 C_NOPA")
    pair_gather2(A, G, 144, 61, 101)
    hstore(A, [f"buffer_store_dwordx4 {v(G+4*g,4)}, v{VL16}, {s(SWS,4)}, s{T7} offen offset:{g*1024}" for g in range(3)], not CFG.pa_fast)
    A.label("C_NOPA")
    stamp(A, "atom")
    ctl_wait(A, 110, 62, C_WQ, 2)
    AQ = 128; CSQ = 28
    def qreads(n, b):
        sq, k = n >> 2, n & 3
        A(f"ds_read_b128 {v(FX[b],4)}, v{XA+k} offset:{XL + sq*8192}")
        for t in range(2):
            A(f"ds_read_b64_tr_b16 {v(FW[b]+2*t,2)}, v{QA+k} offset:{sq*8192 + t*512}")
    FW[0], FW[1] = 44, 48
    FX3 = [36, 40, 52]; FW3 = [44, 48, 56]
    def qreads3(n):
        sq, k = n >> 2, n & 3
        b = n % 3
        A(f"ds_read_b128 {v(FX3[b],4)}, v{XA+k} offset:{XL + sq*8192}")
        for t in range(2):
            A(f"ds_read_b64_tr_b16 {v(FW3[b]+2*t,2)}, v{QA+k} offset:{sq*8192 + t*512}")
    qreads3(0); qreads3(1)
    for n in range(32):
        if n + 2 < 32: qreads3(n + 2)
        A(f"s_waitcnt lgkmcnt({3*min(2, 31-n)})")
        mfma(A, AQ, FW3[n % 3], FX3[n % 3], None if n == 0 else AQ)
        m16(A, CSQ, SEL, FW3[n % 3], None if n == 0 else CSQ)
    stamp(A, "qgemm")
    ctl_add(A, 110, 111, C_QW)
    A("v_cmp_gt_u32 vcc, 32, v0")
    cs_frag(CSQ, 52)
    mfma(A, AQ, 52, NF, AQ)
    QB = 36
    scale_pack(AQ, QB)
    mfma(A, P[0], PW, QB)
    mfma(A, P[1], PW+4, QB+4)
    PHQ = 192
    TA0, TA1, VXR = 12, 13, 14
    A(f"v_bfe_u32 v3, v0, 2, 2\nv_lshl_add_u32 v60, v{HALF}, 2, v3\nv_lshlrev_b32 v{TA0}, 7, v60\nv_lshrrev_b32 v3, 1, v3\nv_lshl_add_u32 v{TA0}, v3, 6, v{TA0}")
    A(f"v_bfe_u32 v3, v0, 4, 1\nv_lshl_add_u32 v{TA0}, v3, 5, v{TA0}\nv_and_b32 v3, 3, v0\nv_lshl_add_u32 v{TA0}, v3, 3, v{TA0}")
    A(f"s_lshl_b32 s{T0}, s{sW}, 14\nv_add_u32 v{TA0}, s{T0}, v{TA0}\ns_lshl_b32 s{T0}, s{sHH}, 6\nv_xor_b32 v{TA0}, s{T0}, v{TA0}\nv_xor_b32 v{TA1}, 64, v{TA0}")
    A(f"v_lshlrev_b32 v{VXR}, 10, v{ROW}\nv_lshl_add_u32 v{VXR}, v{HALF}, 3, v{VXR}")
    softmax_tile(A, P[0], PHQ, TM)
    XR = 16
    A(f"s_lshl_b32 s{T0}, s{sRB}, 16\ns_lshl_b32 s{T1}, s{sRH}, 15\ns_add_u32 s{T0}, s{T0}, s{T1}\ns_lshl_b32 s{T1}, s{sC8}, 7\ns_add_u32 s{T0}, s{T0}, s{T1}\ns_lshl_b32 s{T1}, s{sHH}, 6\ns_add_u32 s{T0}, s{T0}, s{T1}")
    for q in range(4):
        A(f"buffer_load_dwordx2 {v(XR+2*q,2)}, v{VXR}, {s(SX_,4)}, s{T0} offen offset:{q*16}")
    softmax_tile(A, P[1], PHQ+8, TM)
    stamp(A, "arrv")
    NX = 4 if CFG.m42 else 8
    A(f"s_lshl_b32 s{T6}, s{sHQ}, 2\ns_add_u32 s{T5}, s{T6}, s{sW}\ns_mul_i32 s{T5}, s{T5}, {8*PSTR}\ns_add_u32 s{T5}, s{T5}, {WS_PB}")
    A(f"s_lshl_b32 s{T0}, s{sHH}, 1\ns_add_u32 s{T6}, s{T6}, s{T0}\ns_lshl_b32 s{T1}, s{sRL1}, {0 if CFG.m42 else 1}")
    for k in range(NX):
        A(f"s_add_u32 s{T0}, s{T1}, {k}\ns_and_b32 s{T0}, s{T0}, {NX-1}\ns_mul_i32 s{T0}, s{T0}, {PSTR}\ns_add_u32 s{8+k}, s{T0}, s{T5}")
    L = 64
    SCR = 65536 + 7*12288
    A(f"s_mul_i32 s{T0}, s{sHH}, 5504\ns_add_u32 s{T0}, s{T0}, {SCR}\ns_mul_i32 s{T1}, s{sRH}, 2304\ns_add_u32 s{T1}, s{T1}, s{T0}\nv_lshl_add_u32 v59, v0, 2, s{T1}")
    A(f"v_lshlrev_b32 v3, 4, v{ROW}\nv_lshl_add_u32 v3, v{HALF}, 8, v3\nv_lshlrev_b32 v60, 4, v{HALF}\nv_add_u32 v60, 2048, v60\nv_cmp_gt_u32 vcc, 16, v{ROW}")
    for q in range(4):
        A(f"v_add_u32 v61, {q*512}, v3\nv_add_u32 v62, {q*32}, v60\nv_cndmask_b32 v{8+q}, v62, v61, vcc\nv_add_u32 v{8+q}, s{T0}, v{8+q}")
    A(f"s_lshl_b32 s{T0}, s{sHH}, 2\nv_add_u32 v58, s{T0}, v110\nv_mov_b32 v56, v110\nv_mov_b32 v57, 1")
    ctl_wait(A, 110, 62, C_QW, 5)
    if CFG.ddw and not CFG.w1c: ctl_wait(A, 110, 62, C_FULL, 2, 2)
    A(f"ds_read_b32 v62, v110 offset:{C_NON+4}\ns_waitcnt lgkmcnt(0)\nv_readfirstlane_b32 s{sFAST}, v62")
    loads = []; tags = []
    for k in range(NX):
        for g in range(3):
            loads.append(f"buffer_load_dwordx4 {v(L+12*k+4*g,4)}, v{VL16}, {s(SWS,4)}, s{8+k} offen offset:{g*1024} sc1")
            tags.append(L+12*k+4*g+3)
    A("s_mov_b64 exec, 1")
    tagged_poll(A, loads[2::3], tags[2::3], CFG.psleep)
    A("s_mov_b64 exec, -1")
    stamp(A, "kvld")
    tagged_poll(A, loads, tags)
    for k in range(1, NX):
        for r in range(0, 12, 2):
            A(f"v_pk_add_f32 {v(L+r,2)}, {v(L+r,2)}, {v(L+12*k+r,2)}")
    for i in range(9):
        A(f"ds_write_b32 v59, v{gval(L,i)} offset:{i*256}")
    ctl_add(A, 58, 57, C_KV)
    ctl_wait(A, 58, 62, C_KV, 2)
    KVR = 160
    for e in range(2):
        for q in range(4):
            A(f"ds_read_b128 {v(KVR+16*e+4*q,4)}, v{8+q} offset:{e*2304}")
    stamp(A, "syncA")
    A(f"s_mov_b32 s{sK3}, {fbits(1e-6)}")
    A(f"s_lshl_b32 s{T0}, s{sRB1}, 1\ns_add_u32 s{T0}, s{T0}, s{sRH}\ns_mul_i32 s{T0}, s{T0}, {CFG.ost}\ns_lshl_b32 s{T4}, s{T6}, 10\ns_add_u32 s{T4}, s{T4}, s{T0}")
    KA = 88; O = [128, 144]; OB = 104; RC = 112
    for e in range(2):
        A(f"s_waitcnt lgkmcnt({4*(1-e)})")
        if e == 1: ctl_add(A, 56, 57, C_SV)
        for r in range(8):
            A(f"v_cvt_pk_bf16_f32 v{KA+8*e+r}, v{KVR+16*e+2*r}, v{KVR+16*e+2*r+1}")
        mfma(A, O[e], KA+8*e, PHQ+8*e); mfma(A, O[e], KA+8*e+4, PHQ+8*e+4, O[e])
    for e in range(2):
        A(f"v_add_f32 v{RC}, s{sK3}, v{O[e]+8}\nv_rcp_f32 v{RC}, v{RC}")
        for r in range(0, 8, 2):
            A(f"v_pk_mul_f32 {v(O[e]+r,2)}, {v(O[e]+r,2)}, {v(RC,2)} op_sel_hi:[1,0]")
        for r in range(4):
            A(f"v_cvt_pk_bf16_f32 v{OB+4*e+r}, v{O[e]+2*r}, v{O[e]+2*r+1}")
    hstore(A, [f"buffer_store_dwordx4 {v(OB+4*e,4)}, v{VL16}, {s(SWS,4)}, s{T4} offen offset:{e*1024}" for e in range(2)], CFG.o_sc1)
    A(f"s_lshl_b32 s{T3}, s{sRB}, 7\ns_add_u32 s{T3}, s{T3}, {WS_F1}")
    stamp(A, "ostore")
    A(f"s_lshl_b32 s{T0}, s{sHQ}, 4\ns_lshl_b32 s{T1}, s{sW}, 2\ns_add_u32 s{T0}, s{T0}, s{T1}\ns_lshl_b32 s{T2}, s{sRB1}, 7\ns_add_u32 s{T2}, s{T2}, s{T0}")
    A(f"s_lshl_b32 s{T2}, s{T2}, 5\ns_add_u32 s{T2}, s{T2}, {WS_F1X}" if CFG.m42 else f"s_add_u32 s{T2}, s{T2}, {WS_F1}")
    if CFG.m42:
        A(f"s_lshl_b32 s{T0}, s{sRB}, 12\ns_lshl_b32 s{T3}, s{sW}, 10\ns_add_u32 s{T0}, s{T0}, s{T3}\ns_add_u32 s{T0}, s{T0}, {WS_F1X}\nv_lshl_add_u32 v60, v0, 7, s{T0}")
    else:
        A(f"s_lshl_b32 s{T0}, s{sW}, 5\ns_add_u32 s{T0}, s{T0}, s{T3}\nv_lshl_add_u32 v60, v0, 2, s{T0}")
    A(f"s_lshl_b32 s{T0}, s2, 4\ns_add_u32 s{T0}, s{T0}, s{T1}\ns_add_u32 s{T0}, s{T0}, {WS_FW}\nv_mov_b32 v61, s{T0}\nv_cmp_gt_u32 vcc, 8, v0\nv_cndmask_b32 v60, v61, v60, vcc")
    A(f"s_mul_i32 s{T4}, s{sRB}, {2*CFG.ost}\ns_lshl_b32 s{T0}, s{sW}, 13\ns_add_u32 s{T4}, s{T4}, s{T0}")
    A(f"s_mul_i32 s{T0}, s{sRH}, {CFG.ost}\ns_add_u32 s{T5}, s{T4}, {CFG.ost}\ns_sub_u32 s{T5}, s{T5}, s{T0}\ns_add_u32 s{T4}, s{T4}, s{T0}")
    A("s_waitcnt vmcnt(0)")
    flag_store(A, 62, T2, CFG.m42)
    VB = 52
    for i in range(3):
        A(f"v_add_u32 v56, {64*i}, v0\nv_mul_u32_u24 v57, 43691, v56\nv_lshrrev_b32 v57, 19, v57\nv_mul_u32_u24 v3, 12, v57\nv_sub_u32 v56, v56, v3")
        A(f"v_mul_u32_u24 v57, 2752, v57\nv_lshl_add_u32 v{VB+i}, v56, 4, v57")
        if i: A(f"v_subrev_u32 v{VB+i}, {1024*i}, v{VB+i}")
    srd(A, ST1, PTR(5), 512*2752)
    sB1, sB2, sB3 = 8, 9, 10
    A(f"s_mul_i32 s{sB1}, s{sW}, {16*2752}\ns_mul_i32 s{T0}, s{sC16}, 192\ns_add_u32 s{sB1}, s{sB1}, s{T0}\ns_mul_i32 s{sB2}, s{sW}, 3072\ns_add_u32 s{sB2}, s{sB2}, 65536")
    A(f"s_and_b32 s{sB3}, s{sC16}, {3 if CFG.arot else 0}\ns_lshl_b32 s{sB3}, s{sB3}, 1")
    def w1dma(c):
        o_ = []
        for i in range(3):
            pre = f"s_add_u32 s11, s{sB3}, {c}\ns_and_b32 s11, s11, 7\ns_mul_i32 s11, s11, {64*2752}\ns_add_u32 s11, s11, s{sB1}\ns_add_u32 m0, s{sB2}, {c*12288}\n" if i == 0 else ""
            off = f" offset:{i*1024}" if i else ""
            o_.append(pre + f"buffer_load_dwordx4 v{VB+i}, {s(ST1,4)}, s11 offen{off} lds")
        return o_
    w1l = sum([w1dma(c) for c in range(7)], []) if CFG.w1c else []
    A(f"s_mov_b64 s[{sMASK}:{sMASK+1}], 0x1ff")
    poll(A, 61, 60, "0", f"s{sNONCE}", s(sMASK, 2), CFG.f1sleep if CFG.m42 else 0)
    stamp(A, "hop1")
    AF = 64
    for k in range(8):
        for rt in range(2):
            if k % 4 == 0:
                if rt == 0: A(f"s_and_b32 s{T2}, s{sC8}, {1 if CFG.arot else 0}\ns_xor_b32 s{T2}, s{T2}, {k//4}\ns_lshl_b32 s{T2}, s{T2}, 12")
                A(f"s_add_u32 s{T0+rt}, s{T4+rt}, s{T2}")
            A(f"buffer_load_dwordx4 {v(AF+8*k+4*rt,4)}, v{VL16}, {s(SWS,4)}, s{T0+rt} offen offset:{(k%4)*1024} sc1")
    WF = [36, 44]
    ACC = lambda nt, rt: 192 + (2*nt + rt) * 16
    def woreads(k):
        for nt in range(2):
            for t in range(2):
                A(f"ds_read_b64_tr_b16 {v(WF[k&1]+4*nt+2*t,2)}, v{TA0+nt} offset:{k*2048+t*1024}")
    woreads(0)
    nw1 = 0
    for k in range(8):
        if k < 7: woreads(k + 1)
        A(f"s_waitcnt vmcnt({2*(7-k) + nw1}) lgkmcnt({4 if k < 7 else 0})")
        for rt, nt in ((1, 0), (0, 1), (1, 1), (0, 0)):
            mfma(A, ACC(nt, rt), WF[k&1]+4*nt, AF+8*k+4*rt, None if k == 0 else ACC(nt, rt))
            if 4*k + 4 > 32 - CFG.w1in*2 and (rt, nt) in ((1, 0), (1, 1)) and nw1 < CFG.w1in:
                A(w1l[nw1]); nw1 += 1
    stamp(A, "P2lp")
    if CFG.w2t == 1:
        srd(A, SW_, PTR(7), 1376*1024)
        A(f"s_mul_i32 s{T0}, s{sJ}, 44032\ns_mul_i32 s{T1}, s{sW}, 11008\ns_add_u32 s{T0}, s{T0}, s{T1}\nv_lshlrev_b32 v60, 7, v0")
        A(f"buffer_load_dword v61, v60, {s(SW_,4)}, s{T0} offen\ns_add_u32 s{T0}, s{T0}, 8192\ns_mov_b64 exec, 0x3fffff")
        A(f"buffer_load_dword v62, v60, {s(SW_,4)}, s{T0} offen\ns_mov_b64 exec, -1")
    R = reduce4(A, "P2", 192, 96, w1l[nw1:], w1dma(7) if CFG.w1c else [])
    stamp(A, "P2red")
    for r in range(8):
        A(f"v_lshlrev_b32 v36, 16, v{XR+r}\nv_and_b32 v37, 0xffff0000, v{XR+r}")
        A(f"v_pk_add_f32 {v(R+2*r,2)}, {v(R+2*r,2)}, v[36:37]")
        A(f"v_cvt_pk_bf16_f32 v{40+r}, v{R+2*r}, v{R+2*r+1}")
    sHO = 7
    A(f"s_lshl_b32 s{T0}, s{sRB}, 1\ns_add_u32 s{T0}, s{T0}, s{sRH}\ns_lshl_b32 s{T1}, s{sC8}, 1\ns_add_u32 s{T1}, s{T1}, s{sHH}")
    A(f"s_mul_i32 s{sHO}, s{T0}, {CFG.hst}\ns_lshl_b32 s{T2}, s{T1}, 11\ns_add_u32 s{sHO}, s{sHO}, s{T2}\ns_add_u32 s{sHO}, s{sHO}, {WS_H}")
    A(f"v_pk_mul_f32 v[38:39], {v(R,2)}, {v(R,2)}\nv_pk_add_f32 v[36:37], {v(R,2)}, {v(R+2,2)}")
    for r in range(2, 16, 2):
        A(f"v_pk_fma_f32 v[38:39], {v(R+r,2)}, {v(R+r,2)}, v[38:39]")
        if r >= 4: A(f"v_pk_add_f32 v[36:37], v[36:37], {v(R+r,2)}")
    A("v_add_f32 v36, v36, v37\nv_add_f32 v38, v38, v39\nv_permlane32_swap_b32 v36, v38\nv_add_f32 v36, v36, v38")
    A(f"s_lshl_b32 s{T2}, s{T0}, 12\ns_lshl_b32 s{T3}, s{T1}, 8\ns_add_u32 s{T2}, s{T2}, s{T3}\ns_add_u32 s{T2}, s{T2}, {WS_ST}\nv_lshlrev_b32 v37, 2, v0")
    hstore(A, [f"buffer_store_dwordx4 v[40:43], v{VL16}, {s(SWS,4)}, s{sHO} offen",
               f"buffer_store_dwordx4 v[44:47], v{VL16}, {s(SWS,4)}, s{sHO} offen offset:1024",
               f"buffer_store_dword v36, v37, {s(SWS,4)}, s{T2} offen"], CFG.h_sc1)
    A(f"s_lshl_b32 s{T6}, s{T0}, 6\ns_lshl_b32 s{T3}, s{T1}, 2\ns_add_u32 s{T6}, s{T6}, s{T3}\ns_add_u32 s{T6}, s{T6}, {WS_F2}")
    W1L = 65536
    stamp(A, "P2st")
    TB0, TB1 = 8, 9
    A(f"v_bfe_u32 v3, v0, 2, 2\nv_lshl_add_u32 v3, v{HALF}, 2, v3\nv_mul_u32_u24 v{TB0}, 192, v3")
    A(f"v_bfe_u32 v3, v0, 4, 1\nv_lshl_add_u32 v{TB0}, v3, 5, v{TB0}\nv_and_b32 v3, 3, v0\nv_lshl_add_u32 v{TB0}, v3, 3, v{TB0}\nv_add_u32 v{TB0}, {W1L}, v{TB0}\nv_add_u32 v{TB1}, {16*3072}, v{TB0}")
    A(f"s_mul_i32 s{T3}, s{sW}, {8*3072}\nv_add_u32 v10, s{T3}, v{TB0}")
    A(f"v_lshrrev_b32 v3, 2, v0\nv_xor_b32 v3, v3, v0\nv_and_b32 v3, 4, v3\nv_and_b32 v7, 3, v0\nv_or_b32 v3, v3, v7\nv_cmp_eq_u32 vcc, 0, v3")
    for i in range(4):
        A(f"v_cndmask_b32 v{SEL+i}, 0, v{ONES}, vcc")
    if CFG.w1c:
        A("s_waitcnt vmcnt(0)")
        flag_store(A, 62, T6)
        stamp(A, "P2fl")
        A("s_barrier")
    CW = 64
    CS1 = 24
    for k in range(8):
        for nt in range(3):
            for t in range(2):
                A(f"ds_read_b64_tr_b16 {v(CW+12*k+4*nt+2*t,2)}, v10 offset:{k*3072 + t*1536 + nt*64}")
        if k == 1 or k == 3 or k == 5 or k == 7:
            A("s_waitcnt lgkmcnt(0)")
            for kk in (k-1, k):
                for nt in range(3):
                    m16(A, CS1+4*nt, SEL, CW+12*kk+4*nt, None if kk == 0 else CS1+4*nt)
        if k == 5 and not CFG.w1c:
            A("s_waitcnt vmcnt(0)")
            flag_store(A, 62, T6)
            stamp(A, "P2fl")
    stamp(A, "P2end")
    srd(A, ST0, PTR(6), 2752)
    srd(A, SW_, PTR(7), 1376*1024)
    B1 = 36
    A(f"v_lshlrev_b32 v3, 1, v{ROW}\ns_mul_i32 s{T0}, s{sC16}, 192")
    for nt in range(3):
        A(f"buffer_load_ushort v{B1+nt}, v3, {s(ST0,4)}, s{T0} offen offset:{nt*64}")
    A(f"s_lshl_b32 s{T0}, s{sW}, 14\nv_lshl_add_u32 v3, v0, 2, s{T0}")
    for nt in range(3):
        A(f"ds_write_b32 v3, v{CS1+4*nt} offset:{nt*256}")
    sRT = 35
    A(f"s_lshl_b32 s{sRT}, s{sRBK}, 2\ns_add_u32 s{sRT}, s{sRT}, s{sW}")
    A(f"s_lshl_b32 s{T5}, s{sRT}, 6\ns_add_u32 s{T5}, s{T5}, {WS_F2}\nv_lshlrev_b32 v60, 2, v0\nv_and_b32 v60, 63, v60")
    A("s_waitcnt lgkmcnt(0)\ns_barrier")
    A("v_lshlrev_b32 v3, 2, v0")
    for w in range(4):
        for nt in range(3):
            A(f"ds_read_b32 v{40+3*w+nt}, v3 offset:{w*16384+nt*256}")
    VO0, VO1 = 10, 11
    wide_pattern(A, VO0, 1024, 60+1, 62, 63)
    A(f"v_add_u32 v{VO1}, {8192-1024}, v{VO0}")
    A("v_cmp_gt_u32 vcc, 32, v0")
    A("s_waitcnt vmcnt(0) lgkmcnt(0)")
    CF = 24
    for nt in range(3):
        A(f"v_add_f32 v52, v{40+nt}, v{43+nt}\nv_add_f32 v53, v{46+nt}, v{49+nt}\nv_add_f32 v52, v52, v53")
        A(f"v_cndmask_b32 v52, 0, v52, vcc\nv_cndmask_b32 v{B1+nt}, 0, v{B1+nt}, vcc")
        A(f"v_cvt_pk_bf16_f32 v{CF+4*nt}, v52, v52\nv_lshlrev_b32 v53, 16, v{CF+4*nt}\nv_sub_f32 v53, v52, v53")
        A(f"v_cvt_pk_bf16_f32 v53, v53, 0\nv_lshl_or_b32 v{CF+4*nt+1}, v{B1+nt}, 16, v53\nv_mov_b32 v{CF+4*nt+2}, v{B1+nt}\nv_mov_b32 v{CF+4*nt+3}, 0")
    A("s_barrier")
    A(f"s_mov_b64 s[{sMASK}:{sMASK+1}], 0xffff")
    poll(A, 61, 60, f"s{T5}", f"s{sNONCE}", s(sMASK, 2))
    stamp(A, "hop2")
    AF = 128; STR = 112
    A(f"s_mul_i32 s{T4}, s{sRT}, {CFG.hst}\ns_add_u32 s{T4}, s{T4}, {WS_H}\ns_lshl_b32 s{T5}, s{sRT}, 12\ns_add_u32 s{T5}, s{T5}, {WS_ST}")
    sW2, sL2 = T6, T7
    A(f"s_mul_i32 s{sW2}, s{sW}, {22*16*1024}\ns_lshl_b32 s{T0}, s{sC8}, 7\ns_add_u32 s{sW2}, s{sW2}, s{T0}")
    def hload(k):
        pre = f"s_lshl_b32 s{T0}, s{sC16}, {13 if CFG.arot else 15}\ns_add_u32 s{T0}, s{T0}, {k*1024}\ns_and_b32 s{T0}, s{T0}, 0x7fff\ns_add_u32 s{T0}, s{T0}, s{T4}\n" if k % 4 == 0 else ""
        return pre + f"buffer_load_dwordx4 {v(AF+4*k,4)}, v{VL16}, {s(SWS,4)}, s{T0} offen offset:{(k%4)*1024} sc1"
    def w2slot(k):
        sl = k % 20
        return (f"s_lshl_b32 s{T1}, s{sW}, 14\ns_add_u32 m0, s{T1}, {sl*2048}" if sl < 8 else
                f"s_mul_i32 s{T1}, s{sW}, 24576\ns_add_u32 m0, s{T1}, {65536 + (sl-8)*2048}")
    sRS = sK3
    A(f"s_mul_i32 s{sROT}, s{sC8}, {3 if CFG.arot else 0}")
    act = lambda src: f"s_add_u32 s{T2}, {src}, s{sROT}\ns_cmp_ge_u32 s{T2}, 22\ns_cselect_b32 s3, 22, 0\ns_sub_u32 s{T2}, s{T2}, s3\ns_lshl_b32 s{T2}, s{T2}, 14\ns_add_u32 s{T2}, s{T2}, s{sW2}\n"
    def w2dyn(lo, n, first):
        pre = ""
        if first:
            pre = (f"s_and_b32 s{sRS}, s{sRB}, 3\ns_mul_i32 s{sRS}, s{sRS}, {n//4}\ns_add_u32 s{sRS}, s{sRS}, {lo}\n" if CFG.wrot else f"s_mov_b32 s{sRS}, {lo}\n")
            pre += (f"s_lshl_b32 s{sL2}, s{sW}, 14\n" if lo == 0 else f"s_mul_i32 s{sL2}, s{sW}, 24576\ns_add_u32 s{sL2}, s{sL2}, {65536 - 8*2048}\n")
        return [pre + f"s_lshl_b32 s{T1}, s{sRS}, 11\ns_add_u32 m0, s{T1}, s{sL2}\n" + act(f"s{sRS}") + f"buffer_load_dwordx4 v{VO0}, {s(SW_,4)}, s{T2} offen lds",
                f"buffer_load_dwordx4 v{VO1}, {s(SW_,4)}, s{T2} offen offset:1024 lds\ns_add_u32 s{sRS}, s{sRS}, 1\ns_cmp_eq_u32 s{sRS}, {lo+n}\ns_cselect_b32 s{sRS}, {lo}, s{sRS}"]
    def w2load(k):
        return [w2slot(k) + "\n" + act(str(k)) + f"buffer_load_dwordx4 v{VO0}, {s(SW_,4)}, s{T2} offen lds",
                f"buffer_load_dwordx4 v{VO1}, {s(SW_,4)}, s{T2} offen offset:1024 lds"]
    seq = [hload(k) for k in range(32)]
    A("v_lshlrev_b32 v7, 2, v0")
    stl = [f"buffer_load_dword v{STR+g}, v7, {s(SWS,4)}, s{T5} offen offset:{g*256} sc1" for g in range(16)]
    w2a = sum([w2dyn(0, 8, k == 0) for k in range(8)], [])
    order = seq[:2] + stl + seq[2:]
    idx = lambda k: k if k < 2 else k + 16
    D = CFG.p3D
    for o in order[:D]: A(o)
    issued = D
    FW = [40, 48]
    ACC3 = [64, 80, 96]
    def w1reads(kg, nts, F):
        base = TB0 if kg < 16 else TB1
        for i_, nt in enumerate(nts):
            for t in range(2):
                A(f"ds_read_b64_tr_b16 {v(F+4*i_+2*t,2)}, v{base} offset:{(kg&15)*3072 + t*1536 + nt*64}")
    c0 = -2 * 0.7978845608028654 * LOG2E
    c1 = c0 * 0.044715
    NM, RSTD, SD, NF, KK = 18, 19, 16, (20 if CFG.p3m else 56), 14
    def stats():
        for g in range(3):
            A(f"v_pk_add_f32 {v(STR,2)}, {v(STR,2)}, {v(STR+4*g+4,2)}\nv_pk_add_f32 {v(STR+2,2)}, {v(STR+2,2)}, {v(STR+4*g+6,2)}")
        A(f"v_pk_add_f32 {v(STR,2)}, {v(STR,2)}, {v(STR+2,2)}\nv_add_f32 v{STR}, v{STR}, v{STR+1}\nv_mov_b32 v{STR+1}, v{STR}")
        A(f"v_permlane32_swap_b32 v{STR}, v{STR+1}")
        finish_stats(A, STR, STR+1, NM, RSTD, SD)
        A(f"v_mul_f32 v{SD}, v{SD}, v{RSTD}")
        A(f"v_cvt_pk_bf16_f32 v{NF+1}, v{NM}, v{SD}")
        A(f"v_lshlrev_b32 v60, 16, v{NF+1}\nv_sub_f32 v60, v{NM}, v60\nv_cvt_pk_bf16_f32 v{NF}, v{NM}, v60")
        A(f"v_and_b32 v60, 0xffff0000, v{NF+1}\nv_sub_f32 v60, v{SD}, v60\nv_cvt_pk_bf16_f32 v{NF+2}, v60, 0\nv_mov_b32 v{NF+3}, 0")
        A(f"v_mul_f32 v{KK+1}, {fbits(c0)}, v{RSTD}\nv_mul_f32 v60, v{RSTD}, v{RSTD}\nv_mul_f32 v60, v60, v{RSTD}\nv_mul_f32 v{KK}, {fbits(c1)}, v60")
    if CFG.p3m:
        FW3_ = [36, 48]
        p3a = 0 if CFG.hw2 else CFG.p3a
        order = order + w2a[:p3a]
        nh = len(order) - p3a
        w1reads(0, (0, 1, 2), FW3_[0])
        stamp(A, "p3i")
        for k in range(32):
            if k < 31 and not CFG.spread: w1reads(k + 1, (0, 1, 2), FW3_[(k+1)&1])
            if issued < nh: new = order[issued:min(issued + CFG.p3r, nh)]
            elif k >= 32 - p3a: new = order[issued:issued + 1]
            else: new = []
            if CFG.hw2 and k == CFG.p3bk: A("s_barrier")
            for nt in range(3):
                if nt == 0:
                    A(f"s_waitcnt vmcnt({issued - 1 - idx(k)}) lgkmcnt({(4 if CFG.spread else 6) if (k < 31 or CFG.spread) else 0})")
                    stamp(A, f"p3k{k}")
                elif CFG.spread:
                    A(f"s_waitcnt lgkmcnt({4 if k < 31 else 4 - 2*nt})")
                mfma(A, ACC3[nt], FW3_[k&1]+4*nt, AF+4*k, None if k == 0 else ACC3[nt])
                if CFG.spread and k < 31: w1reads(k + 1, (nt,), FW3_[(k+1)&1] + 4*nt)
                if nt < len(new): A(new[nt])
            issued += len(new)
            if k == 3: stats()
            if k == 4:
                for nt in range(3): mfma(A, ACC3[nt], CF+4*nt, NF, ACC3[nt])
        assert issued == len(order)
    else:
        w1reads(0, (0, 1), FW[0])
        for k in range(32):
            if k < 31: w1reads(k + 1, (0, 1), FW[(k+1)&1])
            else: w1reads(0, (2,), 60)
            A(f"s_waitcnt vmcnt({issued - 1 - idx(k)}) lgkmcnt({4 if k < 31 else 2})")
            new = order[issued:issued + 2]; issued += len(new)
            for nt in range(2):
                mfma(A, ACC3[nt], FW[k&1]+4*nt, AF+4*k, None if k == 0 else ACC3[nt])
                if nt < len(new): A(new[nt])
            if k == 3: stats()
            if k == 4:
                mfma(A, ACC3[2], CF+8, NF)
                mfma(A, ACC3[0], CF, NF, ACC3[0])
                mfma(A, ACC3[1], CF+4, NF, ACC3[1])
        for o in order[issued:]: A(o)
    stamp(A, "P3lp")
    A(f"s_mul_i32 s{T4}, s{sRT}, {CFG.h1st}\ns_mul_i32 s{T0}, s{sC16}, 6144\ns_add_u32 s{T4}, s{T4}, s{T0}\ns_add_u32 s{T4}, s{T4}, {WS_H1}")
    w2b = sum([w2dyn(8, 12, k == 8) for k in range(8, 20)], [])
    T = 112
    def gelu(X, OUT, pk):
        b = []
        if pk:
            for r in range(0, 16, 2): b.append(f"v_pk_mul_f32 {v(T+r,2)}, {v(X+r,2)}, {v(X+r,2)}")
            for r in range(0, 16, 2): b.append(f"v_pk_fma_f32 {v(T+r,2)}, {v(T+r,2)}, {v(KK,2)}, {v(KK,2)} op_sel:[0,0,1] op_sel_hi:[1,0,1]")
            for r in range(0, 16, 2): b.append(f"v_pk_mul_f32 {v(T+r,2)}, {v(T+r,2)}, {v(X+r,2)}")
            for r in range(16): b.append(f"v_exp_f32 v{T+r}, v{T+r}")
            for r in range(0, 16, 2): b.append(f"v_pk_fma_f32 {v(T+r,2)}, {v(T+r,2)}, {v(SD,2)}, {v(SD,2)} op_sel_hi:[1,0,0]")
            for r in range(16): b.append(f"v_rcp_f32 v{T+r}, v{T+r}")
            for r in range(0, 16, 2): b.append(f"v_pk_mul_f32 {v(X+r,2)}, {v(X+r,2)}, {v(T+r,2)}")
            for r in range(8): b.append(f"v_cvt_pk_bf16_f32 v{OUT+r}, v{X+2*r}, v{X+2*r+1}")
        else:
            st = [lambda r: f"v_mul_f32 v{T+r}, v{X+r}, v{X+r}",
                  lambda r: f"v_fma_f32 v{T+r}, v{T+r}, v{KK}, v{KK+1}",
                  lambda r: f"v_mul_f32 v{T+r}, v{T+r}, v{X+r}",
                  lambda r: f"v_exp_f32 v{T+r}, v{T+r}",
                  lambda r: f"v_fma_f32 v{T+r}, v{T+r}, v{SD}, v{SD}",
                  lambda r: f"v_rcp_f32 v{T+r}, v{T+r}",
                  lambda r: f"v_mul_f32 v{X+r}, v{X+r}, v{T+r}"]
            for step in range(8 + 7):
                for sidx in range(7, -1, -1):
                    g = step - sidx
                    if 0 <= g < 8:
                        if sidx == 7: b.append(f"v_cvt_pk_bf16_f32 v{OUT+g}, v{X+2*g}, v{X+2*g+1}")
                        else:
                            b.append(st[sidx](2*g)); b.append(st[sidx](2*g+1))
        return b
    def h1store(nt, OUT):
        lab = f"P3_NOST{nt}"
        A(f"s_cmp_ge_u32 s{sC16}, {15 if nt == 0 else 14}\ns_cbranch_scc1 {lab}")
        if nt == 2: A(f"s_add_u32 s{T4}, s{T4}, 4096")
        o = (nt & 1) * 2048
        hstore(A, [f"buffer_store_dwordx4 {v(OUT,4)}, v{VL16}, {s(SWS,4)}, s{T4} offen offset:{o}",
                   f"buffer_store_dwordx4 {v(OUT+4,4)}, v{VL16}, {s(SWS,4)}, s{T4} offen offset:{o+1024}"], CFG.h1_sc1)
        A.label(lab)
        stamp(A, f"gelu{nt}")
    if CFG.p3m:
        A("s_barrier")
        rest = [] if CFG.hw2 else w2a[CFG.p3a:] + w2b
        body = gelu(ACC3[0], 24, 1) + ["ST0"] + gelu(ACC3[1], 32, 1) + ["ST1"] + gelu(ACC3[2], 44, 1) + ["ST2"]
        span = (len(body) * 5) // 6
        nd = 0
        for i, b_ in enumerate(body):
            if b_.startswith("ST"): h1store(int(b_[2]), (24, 32, 44)[int(b_[2])])
            else: A(b_)
            if rest and nd < CFG.p3g and i >= nd * span // CFG.p3g:
                A(rest[nd]); nd += 1
        w2b = [None]*8 + rest[nd:]
    else:
        body = gelu(ACC3[0], 24, CFG.gpk) + ["ST0"] + gelu(ACC3[1], 32, CFG.gpk) + ["ST1"]
        F2 = [60, 40]
        pos = 0
        for k in range(32):
            if k < 31: w1reads(k + 1, (2,), F2[(k+1)&1])
            A(f"s_waitcnt lgkmcnt({2 if k < 31 else 0})")
            mfma(A, ACC3[2], F2[k&1], AF+4*k, ACC3[2])
            if k % 2 == 0: A(w2a[k // 2])
            end = len(body) if k == 31 else (len(body) * (k + 1)) // 33
            for b_ in body[pos:end]:
                if b_ == "ST0": h1store(0, 24)
                elif b_ == "ST1": h1store(1, 32)
                else: A(b_)
            pos = end
        A("s_barrier")
        body = gelu(ACC3[2], 44, 1)
        for i, b_ in enumerate(body):
            A(b_)
            if i % 10 == 0 and i // 10 < 8: A(w2b[i // 10])
        h1store(2, 44)
    for o in (w2b[8:16] if not CFG.p3o else []): A(o)
    srd(A, SX_, PTR(11), 64*CFG.h1st, add=WS_H1)
    srd(A, ST0, PTR(8), 1024)
    srd(A, ST1, PTR(9), 2097152)
    A(f"s_lshl_b32 s{T3}, s{sRT}, 6\ns_lshl_b32 s{T0}, s{sC16}, 2\ns_add_u32 s{T3}, s{T3}, s{T0}\ns_add_u32 s{T3}, s{T3}, {WS_F3}")
    TA2, TA3, VO, VB2 = 14, 15, 16, 17
    A(f"s_lshl_b32 s{T0}, s{sW}, 13\ns_add_u32 s{T0}, s{T0}, 65536\nv_add_u32 v{TA2}, s{T0}, v{TA0}\nv_add_u32 v{TA3}, s{T0}, v{TA1}")
    A(f"v_lshlrev_b32 v{VO}, 10, v{ROW}\nv_lshl_add_u32 v{VO}, v{HALF}, 4, v{VO}\nv_lshlrev_b32 v{VB2}, 3, v{HALF}")
    lo = [0, 3, 7, 11]; hi = [3, 7, 10, 14]
    msk = [(((1 << (hi[w]+1)) - (1 << lo[w])) * 0x10001) for w in range(4)]
    A(f"s_mov_b32 s{sMASK}, {msk[0]}\ns_cmp_eq_u32 s{sW}, 1\ns_cselect_b32 s{sMASK}, {msk[1]}, s{sMASK}\ns_cmp_eq_u32 s{sW}, 2\ns_cselect_b32 s{sMASK}, {msk[2]}, s{sMASK}")
    A(f"s_cmp_eq_u32 s{sW}, 3\ns_cselect_b32 s{sMASK}, {msk[3]}, s{sMASK}\ns_mov_b32 s{sMASK+1}, 0")
    A(f"s_lshl_b32 s{T5}, s{sRB}, 7\ns_add_u32 s{T5}, s{T5}, {WS_F3}\nv_lshlrev_b32 v60, 2, v0\nv_and_b32 v60, 127, v60")
    A("s_waitcnt vmcnt(0)")
    A(f"s_cmp_eq_u32 s{sC16}, 15\ns_cbranch_scc1 P3_NOFL")
    flag_store(A, 62, T3)
    A.label("P3_NOFL")
    for o in (w2b[16:] if not CFG.p3o else w2b[8:]): A(o)
    stamp(A, "P3fl")
    HR, B2R = 20, 28
    A(f"s_lshl_b32 s{T3}, s{sC8}, 7\ns_lshl_b32 s{T0}, s{sHH}, 6\ns_add_u32 s{T3}, s{T3}, s{T0}")
    for t in range(2):
        A(f"buffer_load_dwordx4 {v(HR+4*t,4)}, v{VL16}, {s(SWS,4)}, s{sHO} offen offset:{t*1024} sc1")
    for q in range(4):
        A(f"buffer_load_dwordx2 {v(B2R+2*q,2)}, v{VB2}, {s(ST0,4)}, s{T3} offen offset:{q*16}")
    sOUT = sHO
    poll(A, 61, 60, f"s{T5}", f"s{sNONCE}", s(sMASK, 2))
    stamp(A, "hop3")
    A(f"s_lshl_b32 s{sOUT}, s{sRB}, 16\ns_lshl_b32 s{T0}, s{sRH}, 15\ns_add_u32 s{sOUT}, s{sOUT}, s{T0}\ns_add_u32 s{sOUT}, s{sOUT}, s{T3}")
    A(f"s_mul_i32 s{T4}, s{sRB}, {2*CFG.h1st}\ns_mul_i32 s{T0}, s{sW}, {22*1024}\ns_add_u32 s{T4}, s{T4}, s{T0}\ns_mul_i32 s{T0}, s{sRH}, {CFG.h1st}\ns_add_u32 s{T5}, s{T4}, {CFG.h1st}\ns_sub_u32 s{T5}, s{T5}, s{T0}\ns_add_u32 s{T4}, s{T4}, s{T0}")
    NR = 16
    assert CFG.p4D <= 30
    AFR = lambda k: 64 + (k % NR) * 8
    A(f"s_cmp_eq_u32 s{sW}, 3\ns_cselect_b32 s{sK1}, 20, 99\ns_mov_b32 s{sK2}, s{sROT}")
    def h1load(k):
        return [f"s_lshl_b32 s{T3}, s{sK2}, 10\ns_cmp_ge_u32 s{sK2}, s{sK1}\ns_cselect_b32 s{T3}, 0x40000000, s{T3}\ns_add_u32 s{T0}, s{T4}, s{T3}\nbuffer_load_dwordx4 {v(AFR(k),4)}, v{VL16}, {s(SX_,4)}, s{T0} offen sc1",
                f"s_add_u32 s{T0}, s{T5}, s{T3}\nbuffer_load_dwordx4 {v(AFR(k)+4,4)}, v{VL16}, {s(SX_,4)}, s{T0} offen sc1\ns_add_u32 s{sK2}, s{sK2}, 1\ns_cmp_eq_u32 s{sK2}, 22\ns_cselect_b32 s{sK2}, 0, s{sK2}"]
    order = []
    for k in range(22):
        for o in h1load(k): order.append((("h", k), o))
        if k == 9:
            for kk in (20, 21):
                for o in w2load(kk): order.append((("w", kk), o))
    D = CFG.p4D
    if CFG.p4x & 1: order = [(t, o.replace(' sc1', '')) for t, o in order]
    for _, o in order[:D]: A(o)
    issued = D
    WF = [36, 44]
    def w2reads(k):
        sl = k % 20
        if CFG.p4x & 2: return
        for nt in range(2):
            for t in range(2):
                if sl < 8:
                    A(f"ds_read_b64_tr_b16 {v(WF[k&1]+4*nt+2*t,2)}, v{TA0+nt} offset:{sl*2048+t*1024}")
                else:
                    A(f"ds_read_b64_tr_b16 {v(WF[k&1]+4*nt+2*t,2)}, v{TA2+nt} offset:{(sl-8)*2048+t*1024}")
    def last_idx(tag):
        return max(i for i, (t, _) in enumerate(order) if t == tag)
    stamp(A, "p4i")
    if CFG.hw2: A("s_barrier")
    w2reads(0)
    for k in range(22):
        if k < 21:
            if k + 1 >= 20:
                A(f"s_waitcnt vmcnt({issued - 1 - last_idx(('w', k+1))})")
            w2reads(k + 1)
        A(f"s_waitcnt vmcnt({issued - 1 - last_idx(('h', k))}) lgkmcnt({4 if k < 21 else 0})")
        stamp(A, f"p4k{k}")
        new = order[issued:issued + 2]
        issued += len(new)
        j = 0
        for rt, nt in ((1, 0), (0, 1), (1, 1), (0, 0)):
            if True:
                if not (CFG.p4x & 4) or k == 0: mfma(A, ACC(nt, rt), WF[k&1]+4*nt, AFR(k)+4*rt, None if k == 0 else ACC(nt, rt))
                if j < len(new): A(new[j][1])
                j += 1
    assert issued >= len(order)
    stamp(A, "P4lp")
    R = reduce4(A, "P4", 192, 96)
    stamp(A, "P4red")
    for r in range(8):
        A(f"v_lshlrev_b32 v36, 16, v{HR+r}\nv_and_b32 v37, 0xffff0000, v{HR+r}\nv_lshlrev_b32 v38, 16, v{B2R+r}\nv_and_b32 v39, 0xffff0000, v{B2R+r}")
        A(f"v_pk_add_f32 {v(R+2*r,2)}, {v(R+2*r,2)}, v[38:39]")
        A(f"v_pk_add_f32 {v(R+2*r,2)}, {v(R+2*r,2)}, v[36:37]")
        A(f"v_cvt_pk_bf16_f32 v{48+r}, v{R+2*r}, v{R+2*r+1}")
    for p in range(2):
        A(f"v_permlane32_swap_b32 v{48+4*p}, v{50+4*p}\nv_permlane32_swap_b32 v{49+4*p}, v{51+4*p}")
        A(f"buffer_store_dwordx4 {v(48+4*p,4)}, v{VO}, {s(ST1,4)}, s{sOUT} offen offset:{p*32}" + (" sc1" if CFG.out_sc1 else ""))
    A(f"s_or_b32 s{T0}, s2, s{sW}\ns_cmp_lg_u32 s{T0}, 0\ns_cbranch_scc1 C_NOEP")
    A(f"v_mov_b32 v60, s{sNONCE}\nv_mov_b32 v61, 0\ns_mov_b32 s{T0}, {WS_EPOCH}\ns_mov_b64 exec, 1")
    A(f"buffer_store_dword v60, v61, {s(SWS,4)}, s{T0} offen sc1\ns_mov_b64 exec, -1")
    if CFG.spin_us:
        A(f"s_add_u32 s80, s80, {CFG.spin_us*100}")
        A.label("C_SPIN")
        A(f"s_memrealtime s[{T0}:{T1}]\ns_waitcnt lgkmcnt(0)\ns_sub_u32 s{T2}, s80, s{T0}\ns_cmp_gt_i32 s{T2}, 0\ns_cbranch_scc0 C_NOEP\ns_cmp_lt_i32 s{T2}, 20000\ns_cbranch_scc1 C_SPIN")
    A.label("C_NOEP")
    stamp_out(A, 0)
    A("s_endpgm")

def main(out, **kw):
    for k_, v_ in kw.items(): setattr(CFG, k_, v_)
    nstamp[0] = 0
    A = Asm()
    gen(A)
    A.pad()
    kernel_desc(A, KN, 256, sgpr=102)
    head = open("cdna_kernels/" + NAME + ".s.ref").read().split("; Override")[0]
    if CFG.stamp: head += "; stamps: " + " ".join(STAMPSETS[CFG.stamp][1:]) + "\n"
    head += f"; @launch grid=(256,1,1) block=(512,1,1) lds=163840\n"
    head += '.amdgcn_target "amdgcn-amd-amdhsa--gfx950"\n'
    open(out, "w").write(head + A.text())

if __name__ == "__main__":
    kw = {}
    for a_ in sys.argv[2:]:
        k_, v_ = a_.split("=", 1)
        kw[k_] = v_ if k_ in ('tl', 'pace', 't2') else int(v_)
    main(sys.argv[1], **kw)
```

```python
import sys, struct
from asmlib import *

NAME = "sequential_preLN__linear_kernel_hedgehog__dense_activation_gelu__prompt"
KN = NAME + "_kernel"
WS_O = 0
WS_PA = 6 << 20
GST = 640
PSTR = 3*1024
WS_PB = 14 << 20
WS_PC = 4 << 20
WS_F1X = 5 << 20
WS_KVS = 13 << 20
KVSTR = 2304
WS_EPOCH = (4 << 20) + (532 << 10)
WS_REG = (4 << 20) + (528 << 10)
WS_F1 = (4 << 20) + (512 << 10)
WS_FW = WS_F1 + 4096
WS_F2 = WS_FW + 4096
WS_F3 = WS_F2 + 4096
WS_ST = (4 << 20) + (640 << 10)
WS_H = 17 << 20
WS_H1 = 20 << 20
H1_BYTES = 64 * 86 * 1024
WS_STAMP = 16 << 20
WS_SIZE = 32 << 20
LOG2E = 1.4426950408889634
def fbits(x): return "0x%08x" % struct.unpack("<I", struct.pack("<f", x))[0]

class Cfg:
    stamp = 0
    rot = 2
    fast = 1
    pd = 3
    p4D = 12
    p4x = 0
    ost = 32768
    hst = 32768
    h1st = 88064
    diag = 0
    pa_sc1 = 0
    pc_sc1 = 0
    o_sc1 = 1
    h_sc1 = 1
    h1_sc1 = 1
    prepoll1 = 1
    w1late = 1
    hprio = 0
    regat = 3
    w2t = 1
    ddw = 0
    p3m = 1
    p3a = 8
    p3g = 20
    hw2 = 1
    p3r = 1
    p3bk = 22
    spread = 1
    ddn = 6
    p3o = 1
    gpk = 0
    arot = 0
    ctouch = 1
    m42 = 0
    kvm = 1
    fdst = 1
    dwait = 0
    hw2t = 0
    spin_us = 0
    f1sleep = 2
    srvt = 0
    s1sleep = 1
    pa_fast = 0
    w1in = 0
    w1c = 0
    wqlate = 1
    p3D = 26
    out_sc1 = 0
    prepoll2 = 1
    prepoll3 = 0
    tl = "fl,pa1,pbx,wq,wo,w1"
    pace = "0,0,0,0,99,0,0,0,0"
    tthr = 2
    t2 = ""
    pa_full = 0
    psleep = 2
    wrot = 1
    dthr = 8
    w2thr = 9
    p3s = 1
CFG = Cfg()

SX_, SW_, SWS, SDBG, ST0, ST1 = 8, 12, 16, 20, 24, 28
PTR = lambda i: 36 + 2*i
sXCD, sJ, sRB, sC8, sRBK, sC16, sW, sRH, sHH, sNONCE = 60, 61, 62, 63, 64, 65, 66, 67, 68, 69
sFAST, sSPIN, sROT = 4, 5, 6
sRB1, sHQ, sRL1, sPX = 20, 21, 22, 23
sGB = 44
T0, T1, T2, T3, T4, T5, T6, T7 = 70, 71, 72, 73, 74, 75, 76, 77
sMASK = 78
sK1, sK2, sK3 = 32, 33, 34

nstamp = [0]
SREG = lambda i: 82 + 2*i if i < 10 else 56
STAMPSETS = {
 1: ["start","B0","loop","atom","arrv","syncA","hop1","P2end","hop2","P3lp","hop3"],
 2: ["start","B0","B2","B4","loop","E1","smdone","E2","atom","qgemm","arrv"],
 3: ["start","syncA","kvld","ostore","hop1","P2lp","P2red","P2st","P2fl","P2end","hop2"],
 5: ["start","hop2","p3i","p3k0","p3k1","p3k5","p3k8","p3k16","p3k24","P3lp","hop3"],
 6: ["start","hop3","p4i","p4k0","p4k4","p4k8","p4k12","p4k16","p4k20","P4lp","P4red"],
 7: ["start","loop","E1","sm0","sm1","smdone","kvw","kvadd","E2","pag","atom"],
 4: ["start","hop2","P3lp","gelu0","gelu1","gelu2","P3fl","hop3","P4lp","P4red","qgemm"],
}
def stamp(A, name):
    if CFG.stamp and name in STAMPSETS[CFG.stamp]:
        i = STAMPSETS[CFG.stamp].index(name); nstamp[0] = 11
        assert i < 11
        b = SREG(i)
        A(f"s_memtime s[{b}:{b+1}]")

def mfma(A, d, x, y, c=None):
    cc = "0" if c is None else v(c, 16)
    A(f"v_mfma_f32_32x32x16_bf16 {v(d,16)}, {v(x,4)}, {v(y,4)}, {cc}")
def m16(A, d, x, y, c=None):
    cc = "0" if c is None else v(c, 4)
    A(f"v_mfma_f32_16x16x32_bf16 {v(d,4)}, {v(x,4)}, {v(y,4)}, {cc}")

def swap_reduce(A, x, y, op):
    A(f"v_permlane32_swap_b32 v{x}, v{y}")
    A(f"{op} v{x}, v{x}, v{y}")
    A(f"v_mov_b32 v{y}, v{x}")
    A(f"v_permlane32_swap_b32 v{x}, v{y}")

def softmax_tile(A, P, out, tm):
    M = tm
    A(f"v_max3_f32 v{M}, v{P}, v{P+1}, v{P+2}")
    A(f"v_max3_f32 v{M+1}, v{P+8}, v{P+9}, v{P+10}")
    A(f"v_max3_f32 v{M}, v{M}, v{P+3}, v{P+4}")
    A(f"v_max3_f32 v{M+1}, v{M+1}, v{P+11}, v{P+12}")
    A(f"v_max3_f32 v{M}, v{M}, v{P+5}, v{P+6}")
    A(f"v_max3_f32 v{M+1}, v{M+1}, v{P+13}, v{P+14}")
    A(f"v_max_f32 v{M}, v{M}, v{P+7}")
    A(f"v_max_f32 v{M+1}, v{M+1}, v{P+15}")
    swap_reduce(A, M, M+1, "v_max_f32")
    for i in range(0, 8, 2):
        A(f"v_pk_add_f32 {v(P+i,2)}, {v(P+i,2)}, {v(M,2)} op_sel_hi:[1,0] neg_lo:[0,1] neg_hi:[0,1]")
    for i in range(8, 16, 2):
        A(f"v_pk_add_f32 {v(P+i,2)}, {v(P+i,2)}, {v(M,2)} op_sel:[0,1] op_sel_hi:[1,1] neg_lo:[0,1] neg_hi:[0,1]")
    for i in range(16):
        A(f"v_exp_f32 v{P+i}, v{P+i}")
    T = tm + 2
    for g in range(2):
        b = P + 8*g
        A(f"v_pk_add_f32 {v(T,2)}, {v(b,2)}, {v(b+2,2)}")
        A(f"v_pk_add_f32 {v(T+2,2)}, {v(b+4,2)}, {v(b+6,2)}")
        A(f"v_pk_add_f32 {v(T,2)}, {v(T,2)}, {v(T+2,2)}")
        A(f"v_add_f32 v{M+g}, v{T}, v{T+1}")
    swap_reduce(A, M, M+1, "v_add_f32")
    A(f"v_rcp_f32 v{M}, v{M}")
    A(f"v_rcp_f32 v{M+1}, v{M+1}")
    for i in range(0, 8, 2):
        A(f"v_pk_mul_f32 {v(P+i,2)}, {v(P+i,2)}, {v(M,2)} op_sel_hi:[1,0]")
    for i in range(8, 16, 2):
        A(f"v_pk_mul_f32 {v(P+i,2)}, {v(P+i,2)}, {v(M,2)} op_sel:[0,1] op_sel_hi:[1,1]")
    for i in range(8):
        A(f"v_cvt_pk_bf16_f32 v{out+i}, v{P+2*i}, v{P+2*i+1}")

_uid = [0]
def uid(p):
    _uid[0] += 1
    return f"{p}{_uid[0]}"

def hstore(A, ins, force=0):
    if not CFG.fast or force:
        for s_ in ins: A(s_ + " sc1")
        return
    l1, l2 = uid("HS"), uid("HE")
    A(f"s_cmp_eq_u32 s{sFAST}, 1\ns_cbranch_scc1 {l1}")
    for s_ in ins: A(s_ + " sc1")
    A(f"s_branch {l2}")
    A.label(l1)
    for s_ in ins: A(s_)
    A.label(l2)

def flag_store(A, vtmp, soff, force=0):
    A(f"v_mov_b32 v{vtmp}, s{sNONCE}\nv_mov_b32 v{vtmp+1}, 0\ns_mov_b64 exec, 1")
    hstore(A, [f"buffer_store_dword v{vtmp}, v{vtmp+1}, {s(SWS,4)}, s{soff} offen"], force)
    A("s_mov_b64 exec, -1")

def poll(A, vdst, vaddr, soff, want, mask, sleep=0):
    l, le = uid("PL"), uid("PE")
    A.label(l)
    A(f"buffer_load_dword v{vdst}, v{vaddr}, {s(SWS,4)}, {soff} offen sc1")
    A(f"s_sub_u32 s{sSPIN}, s{sSPIN}, 1\ns_cmp_lt_i32 s{sSPIN}, 0\ns_cbranch_scc1 {le}")
    A("s_waitcnt vmcnt(0)")
    A(f"v_cmp_ne_u32 vcc, {want}, v{vdst}")
    A(f"s_and_b64 vcc, vcc, {mask}")
    if sleep:
        A(f"s_cbranch_scc0 {le}\ns_sleep {sleep}\ns_branch {l}")
    else:
        A(f"s_cbranch_scc1 {l}")
    A.label(le)

XL, RING, RL = 0, 65536, 131072

def stamp_out(A, wadd):
    if not CFG.stamp: return
    A("s_mov_b64 exec, -1\ns_waitcnt vmcnt(0)")
    A(f"s_memtime s[{T0}:{T1}]\ns_memrealtime s[{T2}:{T3}]\ns_waitcnt lgkmcnt(0)")
    A(f"v_mov_b32 v0, s80\nv_mov_b32 v1, s{T2}\nv_mov_b32 v2, s{sFAST}\ns_sub_u32 s{T0}, s{T0}, s82\nv_mov_b32 v3, s{T0}")
    for i in range(1, 11):
        A(f"s_sub_u32 s{T0}, s{SREG(i)}, s82\nv_mov_b32 v{3+i}, s{T0}")
    A(f"s_getreg_b32 s{T0}, hwreg(HW_REG_XCC_ID)\nv_mov_b32 v14, s{T0}\nv_mov_b32 v15, s{sSPIN}")
    A(f"s_lshl_b32 s{T0}, s2, 3\ns_add_u32 s{T0}, s{T0}, s{sW}\ns_add_u32 s{T0}, s{T0}, {wadd}\ns_lshl_b32 s{T0}, s{T0}, 6\ns_add_u32 s{T0}, s{T0}, {WS_STAMP}")
    A("v_mov_b32 v16, 0\ns_mov_b64 exec, 1")
    for i in range(4):
        A(f"buffer_store_dwordx4 {v(4*i,4)}, v16, {s(SWS,4)}, s{T0} offen offset:{16*i}")

HSET = ["start", "h1", "h2", "h3", "h4", "h5", "h6", "h7", "h8", "h9", "h10"]
def hstamp(A, i):
    if CFG.stamp:
        b = SREG(i)
        A(f"s_memtime s[{b}:{b+1}]")

def gen(A):
    kernel_head(A, KN)
    A("s_cmp_ge_u32 s2, 256\ns_cbranch_scc1 L_END")
    if CFG.stamp or CFG.spin_us:
        A("s_memrealtime s[80:81]")
    stamp(A, "start")
    A("s_load_dwordx16 s[36:51], s[0:1], 0")
    A("s_load_dwordx8 s[52:59], s[0:1], 64")
    A(f"s_and_b32 s{sXCD}, s2, 7\ns_lshr_b32 s{sJ}, s2, 3")
    A(f"s_lshl_b32 s{sRB}, s{sXCD}, 2\ns_lshr_b32 s{T0}, s{sJ}, 3\ns_add_u32 s{sRB}, s{sRB}, s{T0}\ns_and_b32 s{sC8}, s{sJ}, 7")
    A(f"s_lshr_b32 s{sRBK}, s{sRB}, 1\ns_and_b32 s{sC16}, s{sJ}, 15")
    if CFG.m42:
        A(f"s_lshr_b32 s{sPX}, s{sXCD}, 1\ns_lshr_b32 s{sRL1}, s{sJ}, 2\ns_lshl_b32 s{sRB1}, s{sPX}, 3\ns_add_u32 s{sRB1}, s{sRB1}, s{sRL1}")
        A(f"s_and_b32 s{T1}, s{sJ}, 3\ns_and_b32 s{sHQ}, s{sXCD}, 1\ns_lshl_b32 s{sHQ}, s{sHQ}, 2\ns_add_u32 s{sHQ}, s{sHQ}, s{T1}")
        A(f"s_lshl_b32 s{sROT}, s{T1}, 1\ns_add_u32 s{sROT}, s{sROT}, s{sRL1}\ns_add_u32 s{sROT}, s{sROT}, s{sPX}\ns_lshl_b32 s{T1}, s{T1}, 3")
    else:
        A(f"s_mov_b32 s{sPX}, s{sXCD}\ns_mov_b32 s{sRL1}, s{T0}\ns_mov_b32 s{sRB1}, s{sRB}\ns_mov_b32 s{sHQ}, s{sC8}")
        A(f"s_lshl_b32 s{sROT}, s{T0}, 1\ns_add_u32 s{sROT}, s{sROT}, s{sC8}\ns_add_u32 s{sROT}, s{sROT}, s{sXCD}\ns_lshl_b32 s{T1}, s{sC8}, 2")
    A(f"s_and_b32 s{sROT}, s{sROT}, {7 if CFG.rot == 1 else (6 if CFG.rot == 2 else 0)}\ns_lshl_b32 s3, s{sXCD}, 5\ns_add_u32 s3, s3, s{T1}")
    A(f"v_lshrrev_b32 v1, 6, v0\nv_and_b32 v0, 63, v0\nv_readfirstlane_b32 s{sW}, v1")
    A(f"s_mov_b32 s{sSPIN}, 0x80000")
    A(f"v_lshlrev_b32 v4, 4, v0")
    A(f"s_cmp_lt_u32 s{sW}, 4\ns_cbranch_scc1 L_COMPUTE")
    helper(A)
    A.label("L_COMPUTE")
    compute(A)
    A.label("L_END")
    A("s_endpgm")

VL16 = 4

def load_nonce(A):
    A(f"s_mov_b32 s{sGB}, s3")
    A(f"s_add_u32 s{T0}, s{PTR(11)}, {WS_EPOCH}\ns_addc_u32 s{T1}, s{PTR(11)+1}, 0\ns_load_dword s{sNONCE}, s[{T0}:{T1}], 0")
def fin_nonce(A):
    A(f"s_waitcnt lgkmcnt(0)\ns_add_u32 s{sNONCE}, s{sNONCE}, 16\ns_and_b32 s{sNONCE}, s{sNONCE}, -16\ns_or_b32 s{sNONCE}, s{sNONCE}, 8")

def common_srds(A):
    A("s_waitcnt lgkmcnt(0)")
    load_nonce(A)
    srd(A, SX_, PTR(0), 2097152)
    srd(A, SWS, PTR(11), WS_SIZE)
    fin_nonce(A)

def wide_pattern(A, dst, stride, t1=1, t2=2, t3=3):
    A(f"v_lshrrev_b32 v{t1}, 3, v0\nv_and_b32 v{t2}, 7, v0\nv_bfe_u32 v{t3}, v0, 4, 1\nv_lshlrev_b32 v{t3}, 2, v{t3}\nv_xor_b32 v{t2}, v{t2}, v{t3}\nv_lshlrev_b32 v{t2}, 4, v{t2}")
    A(f"v_mul_u32_u24 v{t1}, {stride}, v{t1}\nv_add_u32 v{dst}, v{t1}, v{t2}")


GMASK = "0x1ffff"
QW = [156672 + 320, 162816 + 64]
VERD = 3072

C_QW, C_E1, C_QT, C_E2, C_NON, C_WQ, C_SV = 0, 4, 8, 12, 16, 24, 28
C_FULL, C_KV, C_FREE = 32, 40, 48
def ctl_setup(A, vadr, vone, t):
    A(f"v_mov_b32 v{vone}, 1\nv_mov_b32 v{vadr}, {QW[0]}\nv_mov_b32 v{t}, {QW[1]}\nv_cmp_eq_u32 vcc, 0, v0\nv_cndmask_b32 v{vadr}, v{t}, v{vadr}, vcc")
def ctl_add(A, vadr, vone, off, restore="-1"):
    A(f"s_mov_b64 exec, 3\nds_add_u32 v{vadr}, v{vone} offset:{off}\ns_mov_b64 exec, {restore}")
def ctl_wait(A, vadr, vt, off, thr, sleep=0):
    l, le = uid("CW"), uid("CE")
    A.label(l)
    A(f"ds_read_b32 v{vt}, v{vadr} offset:{off}\ns_sub_u32 s{sSPIN}, s{sSPIN}, 1\ns_cmp_lt_i32 s{sSPIN}, 0\ns_cbranch_scc1 {le}")
    A(f"s_waitcnt lgkmcnt(0)\nv_readfirstlane_b32 s3, v{vt}\ns_cmp_lt_u32 s3, {thr}")
    if sleep:
        A(f"s_cbranch_scc0 {le}\ns_sleep {sleep}\ns_branch {l}")
    else:
        A(f"s_cbranch_scc1 {l}")
    A.label(le)

def free_wait(A, vadr, vt, thr, sleep=1):
    l, le = uid("FW"), uid("FE")
    A.label(l)
    A(f"ds_read_b128 {v(vt,4)}, v{vadr} offset:{C_FREE}\ns_sub_u32 s{sSPIN}, s{sSPIN}, 1\ns_cmp_lt_i32 s{sSPIN}, 0\ns_cbranch_scc1 {le}")
    A(f"s_waitcnt lgkmcnt(0)\nv_min3_u32 v{vt}, v{vt}, v{vt+1}, v{vt+2}\nv_min_u32 v{vt}, v{vt}, v{vt+3}\nv_readfirstlane_b32 s3, v{vt}\ns_cmp_lt_u32 s3, {thr}")
    A(f"s_cbranch_scc0 {le}\ns_sleep {sleep}\ns_branch {l}")
    A.label(le)

def set_gexec(A):
    A(f"s_mov_b32 exec_lo, {GMASK}\ns_mov_b32 exec_hi, {GMASK}")

def slot_addr(A, dst, t):
    A(f"v_and_b32 v{t}, 31, v0\nv_min_u32 v{t}, 16, v{t}\nv_lshrrev_b32 v{dst}, 5, v0\nv_mul_u32_u24 v{dst}, 17, v{dst}\nv_add_lshl_u32 v{dst}, v{dst}, v{t}, 4")

def gval(G, r):
    return G + 4*(r // 3) + (r % 3)

def pair_gather(A, va, vz, shl):
    A(f"s_lshr_b32 s{T0}, s{shl}, 1\ns_lshl_b32 s{T0}, s{T0}, 14\ns_and_b32 s{T1}, s{shl}, 1\ns_mul_i32 s{T2}, s{T1}, {4096+256}\ns_add_u32 s{T2}, s{T2}, s{T0}\ns_add_u32 s{T2}, s{T2}, {RL}")
    A(f"v_lshl_add_u32 v{va}, v0, 2, s{T2}")
    A(f"s_mul_i32 s{T2}, s{T1}, {4096-256}\ns_add_u32 s{T2}, s{T2}, s{T0}\ns_add_u32 s{T2}, s{T2}, {RL+256}")
    A(f"v_bfe_u32 v{vz}, v0, 2, 3\nv_lshlrev_b32 v{vz}, 9, v{vz}\nv_and_b32 v3, 3, v0\nv_lshl_add_u32 v{vz}, v3, 2, v{vz}\nv_add_u32 v{vz}, s{T2}, v{vz}")

def pair_gather2(A, G, tmp, va, vz):
    for i in range(8):
        A(f"ds_read2st64_b32 {v(tmp+2*i,2)}, v{va} offset0:{2*i} offset1:{2*i+32}")
    A(f"ds_read2st64_b32 {v(tmp+16,2)}, v{vz} offset0:0 offset1:32")
    for i in range(9):
        A(f"s_waitcnt lgkmcnt({8-i})\nv_add_f32 v{gval(G,i)}, v{tmp+2*i}, v{tmp+2*i+1}")

def set_tags(A, G, n):
    for g in range(n):
        A(f"v_mov_b32 v{G+4*g+3}, s{sNONCE}")

def tagged_poll(A, loads, regs, sleep=0):
    l, le = uid("TP"), uid("TE")
    A.label(l)
    for o in loads: A(o)
    A(f"s_sub_u32 s{sSPIN}, s{sSPIN}, 1\ns_cmp_lt_i32 s{sSPIN}, 0\ns_cbranch_scc1 {le}")
    n = len(regs)
    acc = regs[0]
    A(f"s_waitcnt vmcnt(0)")
    t = TPT
    A(f"v_xor_b32 v{t}, s{sNONCE}, v{regs[0]}")
    for i in range(1, n):
        A(f"v_xor_b32 v{t+1}, s{sNONCE}, v{regs[i]}\nv_or_b32 v{t}, v{t}, v{t+1}")
    A(f"v_cmp_ne_u32 vcc, 0, v{t}")
    if sleep:
        A(f"s_cbranch_vccz {le}\ns_sleep {sleep}\ns_branch {l}")
    else:
        A(f"s_cbranch_vccnz {l}")
    A.label(le)
    A("s_waitcnt vmcnt(0)")
TPT = 62

def w1pat(A, VB):
    for i in range(3):
        A(f"v_add_u32 v1, {64*i}, v0\nv_mul_u32_u24 v2, 43691, v1\nv_lshrrev_b32 v2, 19, v2\nv_mul_u32_u24 v3, 12, v2\nv_sub_u32 v1, v1, v3")
        A(f"v_mul_u32_u24 v2, 2752, v2\nv_lshl_add_u32 v{VB+i}, v1, 4, v2")
def w1base(A, quarter):
    A(f"s_and_b32 s{T4}, s{sC16}, {3 if CFG.arot else 0}\ns_add_u32 s{T4}, s{T4}, {quarter}\ns_and_b32 s{T4}, s{T4}, 3\ns_mul_i32 s{T4}, s{T4}, {128*2752}\ns_mul_i32 s{T0}, s{sC16}, 192\ns_add_u32 s{T4}, s{T4}, s{T0}")
def w1regs(A, base, ngroups, VB):
    for g in range(ngroups):
        A(f"s_add_u32 s{T0}, s{T4}, {g*16*2752}")
        for i in range(3):
            A(f"buffer_load_dwordx4 {v(base+12*g+4*i,4)}, v{VB+i}, {s(ST1,4)}, s{T0} offen")

def helper(A):
    sI = sW
    A(f"s_sub_u32 s{sI}, s{sW}, 4")
    A(f"s_cmp_eq_u32 s{sI}, 2\ns_cbranch_scc1 L_TOUCH\ns_cmp_eq_u32 s{sI}, 3\ns_cbranch_scc1 L_REG")
    if CFG.hprio: A(f"s_setprio {CFG.hprio}")
    VX0, VX1, VW, VW1, VW2 = 5, 6, 7, 8, 9
    A(f"v_lshrrev_b32 v1, 3, v0\nv_and_b32 v2, 7, v0\nv_lshrrev_b32 v3, 4, v0")
    A(f"v_xor_b32 v{VX0}, v2, v3\nv_lshlrev_b32 v{VX0}, 4, v{VX0}\nv_lshl_add_u32 v{VX0}, v1, 10, v{VX0}")
    A(f"v_xor_b32 v{VX1}, 64, v{VX0}\nv_add_u32 v{VX1}, {8192-1024}, v{VX1}")
    wide_pattern(A, VW, 3072)
    A(f"v_add_u32 v{VW1}, {24576-2048}, v{VW}\nv_add_u32 v{VW2}, {24576-1024}, v{VW}")
    sXO, sWO, sXL, sRL = T4, T5, T6, T7
    A(f"s_lshl_b32 s{sXO}, s{sRB1}, 16\ns_lshl_b32 s{T0}, s{sI}, 15\ns_add_u32 s{sXO}, s{sXO}, s{T0}")
    A(f"s_lshl_b32 s{sWO}, s{sHQ}, 7\ns_mul_i32 s{T0}, s{sI}, {32*3072}\ns_add_u32 s{sWO}, s{sWO}, s{T0}")
    A(f"s_lshl_b32 s{sXL}, s{sI}, 12\ns_lshl_b32 s{sRL}, s{sI}, 13\ns_add_u32 s{sRL}, s{sRL}, {RING}")
    A("s_waitcnt lgkmcnt(0)")
    hstamp(A, 1)
    srd(A, SX_, PTR(0), 2097152)
    srd(A, SW_, PTR(1), 1572864)
    def issue(sq):
        if sq < 8:
            A(f"s_add_u32 s{T0}, s{sROT}, {sq}\ns_and_b32 s{T0}, s{T0}, 7")
            A(f"s_lshl_b32 s{T1}, s{T0}, 7\ns_add_u32 s{T1}, s{T1}, s{sXO}")
            A(f"s_mul_i32 s{T2}, s{T0}, {64*3072}\ns_add_u32 s{T2}, s{T2}, s{sWO}\ns_add_u32 s{T2}, s{T2}, 1024")
            for g in range(2):
                A(f"s_add_u32 m0, s{sXL}, {XL + sq*8192 + g*2048}")
                if g: A(f"s_add_u32 s{T1}, s{T1}, 16384")
                A(f"buffer_load_dwordx4 v{VX0}, {s(SX_,4)}, s{T1} offen lds")
                A(f"buffer_load_dwordx4 v{VX1}, {s(SX_,4)}, s{T1} offen offset:1024 lds")
                A(f"s_add_u32 m0, s{sRL}, {(sq & 3)*16384 + g*4096}")
                if g: A(f"s_add_u32 s{T2}, s{T2}, {16*3072}")
                A(f"buffer_load_dwordx4 v{VW}, {s(SW_,4)}, s{T2} offen lds")
                A(f"buffer_load_dwordx4 v{VW}, {s(SW_,4)}, s{T2} offen offset:1024 lds")
                A(f"buffer_load_dwordx4 v{VW1}, {s(SW_,4)}, s{T2} offen offset:2048 lds")
                A(f"buffer_load_dwordx4 v{VW1}, {s(SW_,4)}, s{T2} offen offset:3072 lds")
        else:
            p = sq - 8
            for sh in range(2):
                A(f"s_add_u32 s{T0}, s{sROT}, {2*p+sh}\ns_and_b32 s{T0}, s{T0}, 7")
                A(f"s_mul_i32 s{T2}, s{T0}, {64*3072}\ns_add_u32 s{T2}, s{T2}, s{sWO}")
                for g in range(2):
                    A(f"s_add_u32 m0, s{sXL}, {RING + p*16384 + sh*8192 + g*2048}")
                    if g: A(f"s_add_u32 s{T2}, s{T2}, {16*3072}")
                    A(f"buffer_load_dwordx4 v{VW}, {s(SW_,4)}, s{T2} offen lds")
                    A(f"buffer_load_dwordx4 v{VW2}, {s(SW_,4)}, s{T2} offen offset:1024 lds")
    issue(0)
    hstamp(A, 2)
    srd(A, ST0, PTR(2), 16384)
    A(f"s_lshl_b32 s{T0}, s{sHQ}, 11\ns_lshl_b32 s{T1}, s{sI}, 10\ns_add_u32 s{T0}, s{T0}, s{T1}")
    A(f"s_lshl_b32 s{T1}, s{sI}, 14\ns_add_u32 m0, s{T1}, {RL}")
    A(f"buffer_load_dwordx4 v{VL16}, {s(ST0,4)}, s{T0} offen lds")
    A(f"s_add_u32 m0, s{T1}, {RL+8192}")
    A(f"buffer_load_dwordx4 v{VL16}, {s(ST0,4)}, s{T0} offen lds")
    issue(1)
    hstamp(A, 3)
    load_nonce(A)
    A(f"v_mov_b32 v25, {QW[0]}\ns_cmp_eq_u32 s{sI}, 1\ns_cselect_b32 s{T0}, {QW[1]-QW[0]}, 0\nv_add_u32 v25, s{T0}, v25\nv_mov_b32 v21, 0")
    ctl_setup(A, 11, 10, 12)
    PF = 128
    A(f"v_add_u32 v13, s{sRL}, v{VL16}\nv_add_u32 v14, 24576, v{VW}")
    def issue_reg(sq):
        A(f"s_add_u32 s{T0}, s{sROT}, {sq}\ns_and_b32 s{T0}, s{T0}, 7")
        A(f"s_lshl_b32 s{T1}, s{T0}, 7\ns_add_u32 s{T1}, s{T1}, s{sXO}")
        A(f"s_mul_i32 s{T2}, s{T0}, {64*3072}\ns_add_u32 s{T2}, s{T2}, s{sWO}\ns_add_u32 s{T2}, s{T2}, 1024")
        for g in range(2):
            A(f"s_add_u32 m0, s{sXL}, {XL + sq*8192 + g*2048}")
            if g: A(f"s_add_u32 s{T1}, s{T1}, 16384\ns_add_u32 s{T2}, s{T2}, {16*3072}")
            A(f"buffer_load_dwordx4 v{VX0}, {s(SX_,4)}, s{T1} offen lds")
            A(f"buffer_load_dwordx4 v{VX1}, {s(SX_,4)}, s{T1} offen offset:1024 lds")
            for e in range(2):
                for sg in range(2):
                    r = PF + 32*(sq-4) + 16*g + 8*e + 4*sg
                    A(f"buffer_load_dwordx4 {v(r,4)}, v{14 if e else VW}, {s(SW_,4)}, s{T2} offen offset:{sg*1024}")
    def dump(sq):
        for b_ in range(8):
            A(f"ds_write_b128 v13, {v(PF + 32*(sq-4) + 4*b_,4)} offset:{(sq & 3)*16384 + b_*1024}")
    fin_nonce(A)
    A("s_waitcnt vmcnt(12)")
    hstamp(A, 4)
    A("s_barrier")
    issue(2); issue(3)
    A("s_waitcnt vmcnt(24)\ns_barrier")
    issue_reg(4); issue_reg(5)
    A("s_waitcnt vmcnt(36)\ns_barrier")
    issue_reg(6); issue_reg(7)
    A("s_waitcnt vmcnt(36)")
    dump(4)
    A("s_barrier")
    nq = 0
    for c in range(4, 8):
        if c + 1 < 8:
            A(f"s_waitcnt vmcnt({12*(6-c) + 8*nq})")
            if c == 5: hstamp(A, 2)
            dump(c + 1)
        if c == 5: hstamp(A, 6)
        A("s_waitcnt lgkmcnt(0)")
        if c == 5: hstamp(A, 7)
        A("s_barrier")
        if c == 5: hstamp(A, 8)
        if c >= 5 and not CFG.wqlate:
            issue(8 + c - 5); nq += 1
    if CFG.wqlate:
        issue(8); issue(9); issue(10)
    ctl_wait(A, 25, 26, C_E1, 4, 1)
    issue(11)
    srd(A, SWS, PTR(11), WS_SIZE)
    srd(A, ST0, PTR(3), 524288)
    VO0, VO1 = 16, 17
    wide_pattern(A, VO0, 1024)
    A(f"v_add_u32 v{VO1}, {8192-1024}, v{VO0}")
    srd(A, ST1, PTR(5), 512*2752)
    w1pat(A, 18)
    A("v_subrev_u32 v19, 1024, v19\nv_subrev_u32 v20, 2048, v20")
    A(f"s_lshl_b32 s{T4}, s{sI}, 18\ns_lshl_b32 s{T0}, s{sC8}, 7\ns_add_u32 s{T4}, s{T4}, s{T0}\ns_lshl_b32 s{T6}, s{sI}, 15")
    A(f"s_and_b32 s{T0}, s{sC8}, {1 if CFG.arot else 0}\ns_lshl_b32 s{T0}, s{T0}, 16\ns_sub_u32 s{T5}, s{T4}, s{T0}\ns_add_u32 s{T4}, s{T4}, s{T0}")
    A("s_waitcnt vmcnt(0)")
    ctl_add(A, 11, 10, C_WQ)
    hstamp(A, 5)
    ctl_wait(A, 25, 26, C_QW, 5, 2)
    if CFG.dwait == 1: ctl_wait(A, 25, 26, C_QT, 1, 2)
    hstamp(A, 9)
    for k in range(16):
        A(f"s_add_u32 m0, s{T6}, {k*2048}\ns_add_u32 s{T0}, s{T5 if k & 4 else T4}, {k*16384}")
        A(f"buffer_load_dwordx4 v{VO0}, {s(ST0,4)}, s{T0} offen lds")
        A(f"buffer_load_dwordx4 v{VO1}, {s(ST0,4)}, s{T0} offen offset:1024 lds")
        if CFG.dthr: A(f"s_waitcnt vmcnt({CFG.dthr - 1})")
    A(f"s_lshl_b32 s{T1}, s2, 4\ns_lshl_b32 s{T2}, s{sI}, 3\ns_add_u32 s{T1}, s{T1}, s{T2}\ns_add_u32 s{T1}, s{T1}, {WS_FW}")
    def hw1(c):
        A(f"s_add_u32 s{T0}, s{T6}, {c}\ns_and_b32 s{T0}, s{T0}, 7\ns_mul_i32 s{T0}, s{T0}, {64*2752}\ns_add_u32 s{T0}, s{T0}, s{T4}")
        for g in range(2):
            A(f"s_add_u32 m0, s{T5}, {c*12288 + g*3072}")
            if g: A(f"s_add_u32 s{T0}, s{T0}, {16*2752}")
            for i in range(3):
                off = f" offset:{i*1024}" if i else ""
                A(f"buffer_load_dwordx4 v{18+i}, {s(ST1,4)}, s{T0} offen{off} lds")
            if CFG.dthr: A(f"s_waitcnt vmcnt({CFG.dthr - 1})")
    if not CFG.w1c:
        A(f"s_mul_i32 s{T4}, s{sI}, {32*2752}\ns_mul_i32 s{T0}, s{sC16}, 192\ns_add_u32 s{T4}, s{T4}, s{T0}\ns_mul_i32 s{T5}, s{sI}, 6144\ns_add_u32 s{T5}, s{T5}, 65536")
        A(f"s_and_b32 s{T6}, s{sC16}, {3 if CFG.arot else 0}\ns_lshl_b32 s{T6}, s{T6}, 1")
        if CFG.dwait != 2:
            hw1(0); hw1(1)
    A(f"v_mov_b32 v22, s{sNONCE}\nv_mov_b32 v23, s{sNONCE}\ns_waitcnt vmcnt({0 if (CFG.w1c or CFG.dwait == 2) else 12})\ns_mov_b64 exec, 1")
    A(f"buffer_store_dwordx2 v[22:23], v21, {s(SWS,4)}, s{T1} offen")
    A("s_mov_b64 exec, -1")
    hstamp(A, 10)
    if not CFG.w1c:
        if CFG.dwait in (0, 2, 3): ctl_wait(A, 25, 26, C_QT, 1 if CFG.dwait else 0, 2)
        for c in range(0 if CFG.dwait == 2 else 2, 7): hw1(c)
        A(f"s_waitcnt vmcnt({CFG.ddn})")
        ctl_add(A, 11, 10, C_FULL)
        ctl_wait(A, 25, 26, C_SV, 4, 2)
        hw1(7)
        if CFG.hw2:
            srd(A, ST1, PTR(7), 1376*1024)
            A(f"s_mul_i32 s{T4}, s{sI}, {2*22*16*1024}\ns_lshl_b32 s{T0}, s{sC8}, 7\ns_add_u32 s{T4}, s{T4}, s{T0}")
            A(f"s_mul_i32 s{sROT}, s{sC8}, {3 if CFG.arot else 0}")
        A("s_waitcnt vmcnt(0)")
        if CFG.hw2:
            def hw2batch(lo, n):
                if lo == 0: A(f"s_lshl_b32 s{T5}, s{sI}, 15")
                else: A(f"s_mul_i32 s{T5}, s{sI}, {2*24576}\ns_add_u32 s{T5}, s{T5}, {65536 - 8*2048}")
                A(f"s_and_b32 s{T6}, s{sRB}, 3\ns_mul_i32 s{T6}, s{T6}, {n//4}\ns_add_u32 s{T6}, s{T6}, {lo}")
                for k in range(n):
                    A(f"s_add_u32 s{T2}, s{T6}, s{sROT}\ns_cmp_ge_u32 s{T2}, 22\ns_cselect_b32 s3, 22, 0\ns_sub_u32 s{T2}, s{T2}, s3\ns_lshl_b32 s{T2}, s{T2}, 14\ns_add_u32 s{T2}, s{T2}, s{T4}")
                    A(f"s_lshl_b32 s{T1}, s{T6}, 11\ns_add_u32 s{T1}, s{T1}, s{T5}")
                    for u in range(2):
                        A(f"s_add_u32 m0, s{T1}, {u*(16384 if lo == 0 else 24576)}")
                        if u: A(f"s_add_u32 s{T2}, s{T2}, {22*16*1024}")
                        A(f"buffer_load_dwordx4 v{VO0}, {s(ST1,4)}, s{T2} offen lds")
                        A(f"buffer_load_dwordx4 v{VO1}, {s(ST1,4)}, s{T2} offen offset:1024 lds")
                        if CFG.w2thr and lo: A(f"s_waitcnt vmcnt({CFG.w2thr - 1})")
                    A(f"s_add_u32 s{T6}, s{T6}, 1\ns_cmp_eq_u32 s{T6}, {lo+n}\ns_cselect_b32 s{T6}, {lo}, s{T6}")
            if CFG.hw2t == 2: A("s_barrier")
            if CFG.hw2t == 1: A("s_barrier")
            if CFG.hw2t:
                A(f"s_mul_i32 s{T0}, s{sJ}, 44032\ns_mul_i32 s{T1}, s{sI}, 22016\ns_add_u32 s{T0}, s{T0}, s{T1}\nv_lshlrev_b32 v24, 7, v0")
                for k in range(3):
                    if k == 2: A("s_mov_b32 exec_hi, 0xfff")
                    A(f"buffer_load_dword v250, v24, {s(ST1,4)}, s{T0} offen\ns_add_u32 s{T0}, s{T0}, 8192")
                A("s_mov_b64 exec, -1")
            A("s_barrier\ns_barrier" + ("" if CFG.hw2t == 1 else "\ns_barrier"))
            A("s_barrier")
            hw2batch(0, 8)
            A("s_barrier")
            hw2batch(8, 12)
            A("s_waitcnt vmcnt(0)\ns_barrier")
    A("s_branch L_HEND")

    A.label("L_TOUCH")
    if CFG.ctouch:
        A(f"s_getpc_b64 s[{T4}:{T5}]")
        A.label("L_PC")
        A(f"s_sub_u32 s{T4}, s{T4}, L_PC-{KN}\ns_subb_u32 s{T5}, s{T5}, 0")
        A(f"v_lshlrev_b32 v1, 5, v0\nv_add_u32 v1, s{sJ}, v1\nv_lshlrev_b32 v1, 7, v1\ns_mov_b32 s{T0}, L_END-{KN}\nv_cmp_gt_u32 vcc, s{T0}, v1\ns_and_saveexec_b64 s[{T2}:{T3}], vcc")
        A(f"global_load_dword v251, v1, s[{T4}:{T5}]\ns_mov_b64 exec, -1")
    VT, VA = 5, 6
    A(f"v_lshlrev_b32 v{VT}, 7, v0")
    A("s_waitcnt lgkmcnt(0)")
    srd(A, SWS, PTR(11), WS_SIZE)
    class Rec:
        def __init__(s_): s_.groups = [[]]
        def __call__(s_, t): s_.groups[-1].append(t)
    Aout = A
    A = Rec()
    def touch(sr, soff, nlines, va=VT, step=8192):
        k = 0
        while nlines > 0:
            n = min(64, nlines)
            if n < 64: A(f"s_mov_b64 exec, {hex((1 << n) - 1) if n <= 32 else -1}")
            if 32 < n < 64: A(f"s_mov_b32 exec_hi, {hex((1 << (n-32)) - 1)}")
            A(f"s_add_u32 s{T3}, s{soff}, {k*step}")
            A(f"buffer_load_dword v250, v{va}, {s(sr,4)}, s{T3} offen")
            if n < 64: A("s_mov_b64 exec, -1")
            if n > 16: A.groups.append([])
            nlines -= n; k += 1
    def do(what):
        if what == "p1":
            srd(A, ST0, PTR(0), 2097152); srd(A, ST1, PTR(1), 1572864)
            A(f"v_lshrrev_b32 v1, 5, v0\nv_mul_u32_u24 v1, {64*3072}, v1\nv_bfe_u32 v2, v0, 4, 1\nv_mul_u32_u24 v2, 3072, v2\nv_and_b32 v3, 15, v0\nv_lshlrev_b32 v3, 7, v3\nv_add3_u32 v{VA}, v1, v2, v3")
            A(f"s_mul_i32 s{T0}, s{sJ}, 6144\ns_add_u32 s{T0}, s{T0}, {128*3072 + 1024}")
            touch(ST1, T0, 64, VA)
            A(f"v_mul_u32_u24 v1, 43, v0\nv_lshrrev_b32 v1, 8, v1\nv_mul_u32_u24 v2, 6, v1\nv_sub_u32 v2, v0, v2\nv_lshlrev_b32 v2, 7, v2\nv_lshl_add_u32 v7, v1, 10, v2")
            A(f"s_lshl_b32 s{T1}, s{sXCD}, 18\ns_lshl_b32 s{T2}, s{sJ}, 13\ns_add_u32 s{T1}, s{T1}, s{T2}\ns_add_u32 s{T1}, s{T1}, 256")
            touch(ST0, T1, 48, 7)
            A(f"s_add_u32 s{T0}, s{T0}, {128*3072}")
            touch(ST1, T0, 128, VA, 128*3072)
        elif what == "wq":
            srd(A, ST1, PTR(1), 1572864)
            if CFG.m42:
                A(f"v_lshrrev_b32 v1, 2, v0\nv_mul_u32_u24 v1, 3072, v1\nv_and_b32 v2, 3, v0\nv_lshl_add_u32 v{VA}, v2, 7, v1")
                A(f"s_mul_i32 s{T0}, s{sJ}, {16*3072}\ns_and_b32 s{T1}, s{sXCD}, 1\ns_lshl_b32 s{T1}, s{T1}, 9\ns_add_u32 s{T0}, s{T0}, s{T1}")
                touch(ST1, T0, 64, VA)
            else:
                A(f"v_lshrrev_b32 v1, 3, v0\nv_mul_u32_u24 v1, 3072, v1\nv_and_b32 v2, 7, v0\nv_lshl_add_u32 v{VA}, v2, 7, v1")
                A(f"s_mul_i32 s{T0}, s{sJ}, {16*3072}")
                touch(ST1, T0, 128, VA, 8*3072)
        elif what == "wo":
            srd(A, ST0, PTR(3), 524288)
            A(f"s_lshl_b32 s{T0}, s{sJ}, 14"); touch(ST0, T0, 128)
        elif what in ("w1", "w1a", "w1b"):
            srd(A, ST1, PTR(5), 512*2752)
            A(f"s_mul_i32 s{T0}, s{sJ}, 44032")
            if what == "w1b": A(f"s_add_u32 s{T0}, s{T0}, {192*128}")
            touch(ST1, T0, {"w1": 344, "w1a": 192, "w1b": 152}[what])
        elif what == "w2":
            srd(A, ST1, PTR(7), 1376*1024)
            A(f"s_mul_i32 s{T0}, s{sJ}, 44032"); touch(ST1, T0, 344)
        elif what == "fl":
            A(f"s_lshl_b32 s{T0}, s{sRBK}, 8\ns_add_u32 s{T0}, s{T0}, {WS_F1}\nv_and_b32 v1, 1, v0\nv_lshlrev_b32 v1, 7, v1\nv_lshrrev_b32 v2, 1, v0\nv_lshl_add_u32 v{VA}, v2, 12, v1")
            touch(SWS, T0, 8, VA)
            A(f"s_lshl_b32 s{T0}, s2, 4\ns_add_u32 s{T0}, s{T0}, {WS_FW}"); touch(SWS, T0, 1)
            if CFG.m42:
                A(f"s_lshl_b32 s{T0}, s{sRB}, 12\ns_lshl_b32 s{T1}, s{sC8}, 9\ns_add_u32 s{T0}, s{T0}, s{T1}\ns_add_u32 s{T0}, s{T0}, {WS_F1X}"); touch(SWS, T0, 4)
        elif what in ("pa", "pal", "pa1", "pa24"):
            A(f"s_add_u32 s{T0}, s3, s{sRL1}\ns_mul_i32 s{T0}, s{T0}, {4*PSTR}\ns_add_u32 s{T0}, s{T0}, {WS_PA}")
            if what == "pa":
                A(f"v_lshrrev_b32 v1, 5, v0\nv_mul_u32_u24 v1, {PSTR}, v1\nv_and_b32 v2, 31, v0\nv_min_u32 v2, 29, v2\nv_lshl_add_u32 v{VA}, v2, 7, v1")
                touch(SWS, T0, 128, VA, 2*PSTR)
            elif what == "pa24":
                touch(SWS, T0, 96)
            elif what == "pa1":
                A(f"v_mul_u32_u24 v{VA}, {PSTR}, v0\ns_add_u32 s{T0}, s{T0}, {2*1024}")
                touch(SWS, T0, 4, VA)
            else:
                A(f"v_lshrrev_b32 v1, 3, v0\nv_mul_u32_u24 v1, {PSTR}, v1\nv_and_b32 v2, 7, v0\nv_min_u32 v2, 4, v2\nv_lshl_add_u32 v{VA}, v2, 7, v1\ns_add_u32 s{T0}, s{T0}, {5*GST}")
                touch(SWS, T0, 32, VA)
        elif what == "pc":
            A(f"s_lshl_b32 s{T0}, s{sXCD}, 5\ns_lshl_b32 s{T1}, s{sC8}, 2\ns_add_u32 s{T0}, s{T0}, s{T1}\ns_and_b32 s{T2}, s{sRB}, 3\ns_add_u32 s{T0}, s{T0}, s{T2}\ns_lshl_b32 s{T0}, s{T0}, 11\ns_add_u32 s{T0}, s{T0}, {WS_PC}")
            touch(SWS, T0, 15)
        elif what == "pbx":
            A(f"s_lshl_b32 s{T0}, s{sHQ}, 2\ns_and_b32 s{T2}, s{sRL1}, 3\ns_add_u32 s{T0}, s{T0}, s{T2}\ns_mul_i32 s{T0}, s{T0}, {8*PSTR}\ns_lshl_b32 s{T2}, s{sPX}, 7\ns_add_u32 s{T0}, s{T0}, s{T2}\ns_add_u32 s{T0}, s{T0}, {WS_PB + 2*1024}\nv_mul_u32_u24 v{VA}, {PSTR}, v0")
            touch(SWS, T0, 8, VA)
        elif what == "pb1":
            A(f"s_lshl_b32 s{T0}, s{sHQ}, 2\ns_and_b32 s{T2}, s{sRL1}, 3\ns_add_u32 s{T0}, s{T0}, s{T2}\ns_lshl_b32 s{T0}, s{T0}, 3\ns_add_u32 s{T0}, s{T0}, s{sPX}\ns_mul_i32 s{T0}, s{T0}, {PSTR}\ns_add_u32 s{T0}, s{T0}, {WS_PB + 2*1024}")
            touch(SWS, T0, 1)
        elif what in ("o", "h", "h1"):
            st = {"o": CFG.ost, "h": CFG.hst, "h1": CFG.h1st}[what]
            base = {"o": WS_O, "h": WS_H, "h1": WS_H1}[what]
            A(f"s_mul_i32 s{T0}, s{sXCD}, {8*st}\ns_mul_i32 s{T1}, s{sJ}, {st//4}\ns_add_u32 s{T0}, s{T0}, s{T1}\ns_add_u32 s{T0}, s{T0}, {base}")
            touch(SWS, T0, st // 512)
        elif what == "st":
            A(f"s_lshl_b32 s{T0}, s{sXCD}, 15\ns_lshl_b32 s{T1}, s{sJ}, 10\ns_add_u32 s{T0}, s{T0}, s{T1}\ns_add_u32 s{T0}, s{T0}, {WS_ST}")
            touch(SWS, T0, 8)
        elif what == "wait":
            A("s_waitcnt vmcnt(0)")
        elif what.startswith("nop"):
            for _ in range(int(what[3:])): A("s_nop 15")
        else:
            raise ValueError(what)
    for w_ in CFG.tl.split(","):
        if w_: do(w_)
    g1 = [g for g in A.groups if g]
    A.groups = [[]]
    for w_ in CFG.t2.split(","):
        if w_: do(w_)
    g2 = [g for g in A.groups if g]
    A = Aout
    pace = [int(x) for x in CFG.pace.split(",")]
    def emit(n):
        for _ in range(n):
            if g1:
                for t in g1.pop(0): A(t)
    emit(pace[0])
    for c in range(8):
        A("s_barrier")
        emit(pace[c+1])
    emit(99)
    hstamp(A, 5)
    A("s_branch L_HEND")

    A.label("L_REG")
    ctl_setup(A, 11, 10, 12)
    A("v_mov_b32 v12, 0\nv_mov_b32 v13, 0\nv_mov_b32 v14, 0\nv_mov_b32 v15, 0\ns_mov_b64 exec, 3")
    for i in range(4):
        A(f"ds_write_b128 v11, v[12:15] offset:{16*i}")
    A(f"s_mov_b64 exec, -1\nv_mov_b32 v6, {QW[0]}")
    A("s_waitcnt lgkmcnt(0)")
    load_nonce(A)
    srd(A, SWS, PTR(11), WS_SIZE)
    A("v_mov_b32 v21, 0")
    sXCC, sRBL = T6, T7
    A(f"s_getreg_b32 s{sXCC}, hwreg(HW_REG_XCC_ID)\ns_and_b32 s{sXCC}, s{sXCC}, 7\ns_mov_b32 s{sRBL}, s{sRL1}")
    fin_nonce(A)
    A(f"s_or_b32 s{T5}, s{sNONCE}, s{sXCC}\nv_mov_b32 v22, s{T5}\ns_lshl_b32 s{T4}, s{sXCD}, 7\ns_add_u32 s{T4}, s{T4}, {WS_REG}\ns_lshl_b32 s{T0}, s{sJ}, 2\ns_add_u32 s{T0}, s{T0}, s{T4}\ns_mov_b64 exec, 1")
    A(f"buffer_store_dword v22, v21, {s(SWS,4)}, s{T0} offen sc1\ns_mov_b64 exec, -1")
    if CFG.kvm:
        A(f"s_lshl_b32 s7, s{sHQ}, 2\ns_and_b32 s{T0}, s{sRBL}, 3\ns_add_u32 s7, s7, s{T0}\ns_mul_i32 s7, s7, {KVSTR}\ns_add_u32 s7, s7, {WS_KVS}")
        A(f"s_cmp_lg_u32 s{sPX}, 0\ns_cbranch_scc1 S_NOZ\ns_cmp_ge_u32 s{sRBL}, 4\ns_cbranch_scc1 S_NOZ")
        A(f"buffer_store_dwordx4 v[12:15], v{VL16}, {s(SWS,4)}, s7 offen sc1\nbuffer_store_dwordx4 v[12:15], v{VL16}, {s(SWS,4)}, s7 offen offset:1024 sc1\ns_mov_b64 exec, 0xff")
        A(f"buffer_store_dwordx4 v[12:15], v{VL16}, {s(SWS,4)}, s7 offen offset:2048 sc1\nv_mov_b32 v12, s{sNONCE}\ns_waitcnt vmcnt(0)")
        A(f"buffer_store_dwordx4 v[12:15], v{VL16}, {s(SWS,4)}, s7 offen offset:2176 sc1\ns_mov_b64 exec, -1")
        A.label("S_NOZ")
    A("v_lshlrev_b32 v20, 2, v0\nv_and_b32 v20, 127, v20")
    n1 = CFG.regat
    A("\n".join(["s_barrier"] * n1))
    A(f"buffer_load_dword v24, v20, {s(SWS,4)}, s{T4} offen sc1")
    A("\n".join(["s_barrier"] * (8 - n1)))
    A.label("S_RP")
    A(f"s_waitcnt vmcnt(0)\nv_and_b32 v25, -8, v24\nv_cmp_ne_u32 vcc, s{sNONCE}, v25\ns_cbranch_vccz S_ROK")
    A(f"buffer_load_dword v24, v20, {s(SWS,4)}, s{T4} offen sc1\ns_sub_u32 s{sSPIN}, s{sSPIN}, 1\ns_cmp_lt_i32 s{sSPIN}, 0\ns_cbranch_scc0 S_RP")
    A.label("S_ROK")
    A(f"s_waitcnt vmcnt(0)\nv_cmp_ne_u32 vcc, s{T5}, v24\ns_cmp_eq_u64 vcc, 0\ns_cselect_b32 s{sFAST}, {1 if CFG.fast else 0}, 0")
    A(f"v_mov_b32 v23, s{sFAST}\ns_mov_b64 exec, 3\nds_write_b32 v11, v23 offset:{C_NON+4}\ns_mov_b64 exec, -1")
    G, TMP, L = 32, 64, 64
    NSRC = 8 if CFG.m42 else 4
    A(f"s_cmp_lt_u32 s{sRBL}, 4\ns_cbranch_scc1 S_SERVE")
    ctl_add(A, 11, 10, C_QW)
    ctl_add(A, 11, 10, C_QT)
    A("s_branch L_HEND")
    A.label("S_SERVE")
    pair_gather(A, 9, 7, sRBL)
    A(f"s_lshl_b32 s{T4}, s{sGB}, 2\ns_add_u32 s{T4}, s{T4}, s{sRBL}\ns_mul_i32 s{T4}, s{T4}, {PSTR}\ns_add_u32 s{T4}, s{T4}, {WS_PA}")
    for k in range(1, NSRC):
        A(f"s_xor_b32 s{T0}, s{sRBL}, {k}\ns_mul_i32 s{T0}, s{T0}, {4*PSTR}\ns_add_u32 s{8+k}, s{T4}, s{T0}")
    A(f"s_lshl_b32 s{T0}, s{sHQ}, 2\ns_add_u32 s{T0}, s{T0}, s{sRBL}\ns_lshl_b32 s{T0}, s{T0}, 3\ns_add_u32 s{T0}, s{T0}, s{sPX}\ns_mul_i32 s{T0}, s{T0}, {PSTR}\ns_add_u32 s8, s{T0}, {WS_PB}")
    if CFG.kvm:
        A.label("S_ZP")
        A(f"buffer_load_dword v24, v21, {s(SWS,4)}, s7 offen offset:2176 sc1\ns_sub_u32 s{sSPIN}, s{sSPIN}, 1\ns_cmp_lt_i32 s{sSPIN}, 0\ns_cbranch_scc1 S_ZOK")
        A(f"s_waitcnt vmcnt(0)\nv_readfirstlane_b32 s{T0}, v24\ns_sub_u32 s{T0}, s{T0}, s{sNONCE}\ns_cmp_ge_u32 s{T0}, 8\ns_cbranch_scc1 S_ZP")
        A.label("S_ZOK")
        A("v_lshlrev_b32 v6, 2, v0")
    A("s_setprio 3")
    ctl_wait(A, 11, 26, C_E2, 4, 1)
    pair_gather2(A, G, TMP, 9, 7)
    ctl_add(A, 11, 10, C_QW)
    def level(srcs, pre):
        loads = []; tags = []
        for k, sr in enumerate(srcs):
            for g in range(3):
                loads.append(f"buffer_load_dwordx4 {v(L+12*k+4*g,4)}, v{VL16}, {s(SWS,4)}, s{sr} offen offset:{g*1024} sc1")
                tags.append(L+12*k+4*g+3)
        if pre:
            A("s_mov_b64 exec, 1")
            tagged_poll(A, loads[2::3], tags[2::3], CFG.s1sleep)
            A("s_mov_b64 exec, -1")
            hstamp(A, pre)
        tagged_poll(A, loads, tags)
        for k in range(len(srcs)):
            for r in range(0, 12, 2):
                A(f"v_pk_add_f32 {v(G+r,2)}, {v(G+r,2)}, {v(L+12*k+r,2)}")
    level(list(range(9, 8 + NSRC)), 1 if (CFG.prepoll1 and not CFG.pa_fast) else 0)
    hstamp(A, 6)
    if CFG.kvm:
        for i in range(9):
            if i == 8: A("s_mov_b64 exec, 0xffffffff")
            A(f"buffer_atomic_add_f32 v{gval(G,i)}, v6, {s(SWS,4)}, s7 offen offset:{i*256}")
        A(f"s_mov_b64 exec, {-1 if CFG.fdst else 0xff}\nv_mov_b32 v15, s{sNONCE}\ns_waitcnt vmcnt(0)")
        hstamp(A, 7)
        A(f"buffer_store_dwordx4 v[12:15], v{VL16}, {s(SWS,4)}, s8 offen offset:2048 sc1\ns_mov_b64 exec, -1")
    else:
        set_tags(A, G, 3)
        for g in range(3):
            A(f"buffer_store_dwordx4 {v(G+4*g,4)}, v{VL16}, {s(SWS,4)}, s8 offen offset:{g*1024} sc1")
    if CFG.srvt:
        A("v_lshlrev_b32 v6, 7, v0")
        for bit, st, base in ((1, CFG.ost, WS_O), (2, CFG.hst, WS_H)):
            if CFG.srvt & bit:
                A(f"s_mul_i32 s{T0}, s{sXCD}, {8*st}\ns_mul_i32 s{T1}, s{sJ}, {st//4}\ns_add_u32 s{T0}, s{T0}, s{T1}\ns_add_u32 s{T0}, s{T0}, {base}")
                A(f"buffer_load_dword v250, v6, {s(SWS,4)}, s{T0} offen")
        if CFG.srvt & 2:
            A(f"s_lshl_b32 s{T0}, s{sXCD}, 15\ns_lshl_b32 s{T1}, s{sJ}, 10\ns_add_u32 s{T0}, s{T0}, s{T1}\ns_add_u32 s{T0}, s{T0}, {WS_ST}\ns_mov_b64 exec, 0xff")
            A(f"buffer_load_dword v250, v6, {s(SWS,4)}, s{T0} offen\ns_mov_b64 exec, -1")
    if CFG.w2t == 2:
        srd(A, ST1, PTR(7), 1376*1024)
        A(f"s_mul_i32 s{T0}, s{sJ}, 44032\nv_lshlrev_b32 v6, 7, v0\ns_mov_b64 exec, 1")
        for k in range(7):
            A(f"buffer_load_dwordx4 {v(L+4*k,4)}, v{VL16}, {s(SWS,4)}, s{9+k} offen offset:2048 sc1")
        A(f"s_waitcnt vmcnt(0)\nv_xor_b32 v62, s{sNONCE}, v{L+3}")
        for k in range(1, 7):
            A(f"v_xor_b32 v63, s{sNONCE}, v{L+4*k+3}\nv_or_b32 v62, v62, v63")
        A("v_cmp_ne_u32 vcc, 0, v62\ns_mov_b64 exec, -1\ns_cbranch_vccz S_NOW2")
        for k in range(6):
            if k == 5: A("s_mov_b64 exec, 0xffffff")
            A(f"buffer_load_dword v250, v6, {s(ST1,4)}, s{T0} offen\ns_add_u32 s{T0}, s{T0}, 8192")
        A("s_mov_b64 exec, -1")
        A.label("S_NOW2")
    hstamp(A, 8)
    if CFG.dwait:
        A("s_waitcnt vmcnt(0)")
        ctl_add(A, 11, 10, C_QT)
    A.label("L_HEND")
    stamp_out(A, 4)
    A("s_endpgm")

def reduce4(A, pfx, ACCB, tmp, pre=(), post=()):
    aw = tmp + 64
    A(f"s_lshl_b32 s{T0}, s{sW}, 14\nv_add_u32 v{aw}, s{T0}, v{VL16}")
    for k in range(1, 4):
        A(f"s_xor_b32 s{T0}, s{sW}, {k}\ns_lshl_b32 s{T0}, s{T0}, 14\nv_add_u32 v{aw+k}, s{T0}, v{VL16}")
    for j in (1, 2, 3):
        for q in range(4):
            A(f"ds_write_b128 v{aw}, {v(ACCB+16*j+4*q,4)} offset:{j*4096+q*1024}")
            if pre: A(pre[0]); pre = pre[1:]
    A("s_waitcnt lgkmcnt(0)\ns_barrier")
    for k in range(1, 4):
        for q in range(4):
            A(f"ds_read_b128 {v(tmp+16*k+4*q,4)}, v{aw+k} offset:{k*4096+q*1024}")
    late = list(pre) + list(post)
    for k in range(1, 4):
        for q in range(4):
            if late: A(late.pop(0))
            A(f"s_waitcnt lgkmcnt({11 - 4*(k-1) - q})")
            for r in range(4*q, 4*q+4, 2):
                A(f"v_pk_add_f32 {v(ACCB+r,2)}, {v(ACCB+r,2)}, {v(tmp+16*k+r,2)}")
    for o in late: A(o)
    return ACCB

def finish_stats(A, sx, sxx, nm, rstd, t):
    A(f"v_mul_f32 v{nm}, s{sK1}, v{sx}")
    A(f"v_mul_f32 v{t}, v{nm}, v{nm}")
    A(f"v_fma_f32 v{t}, v{sxx}, s{sK1}, -v{t}")
    A(f"v_max_f32 v{t}, 0, v{t}")
    A(f"v_add_f32 v{t}, s{sK2}, v{t}")
    A(f"v_rsq_f32 v{rstd}, v{t}")
    A(f"v_sub_f32 v{nm}, 0, v{nm}")

def compute(A):
    A(f"s_and_b32 s{sRH}, s{sW}, 1\ns_lshr_b32 s{sHH}, s{sW}, 1")
    ROW, HALF = 1, 2
    XA, WA, QA = 8, 12, 16
    SEL = 20
    ONES, SXX = 5, 6
    RSA, CSK, CSV = 24, 28, 32
    FX = [36, 40]; FW = [44, 52]
    AK, AV = 64, 80
    ID, PW = 112, 120
    A(f"v_and_b32 v{ROW}, 31, v0\nv_lshrrev_b32 v{HALF}, 5, v0")
    A(f"v_lshrrev_b32 v3, 1, v{ROW}\nv_and_b32 v3, 7, v3\nv_xor_b32 v3, v3, v{HALF}\nv_lshlrev_b32 v3, 4, v3")
    A(f"v_lshl_add_u32 v3, v{ROW}, 7, v3\ns_lshl_b32 s{T0}, s{sRH}, 12\nv_add_u32 v3, s{T0}, v3")
    for k in range(4):
        A(f"s_xor_b32 s{T0}, s{sW}, {k}\ns_lshl_b32 s{T0}, s{T0}, 5\nv_xor_b32 v{XA+k}, s{T0}, v3")
    A(f"v_bfe_u32 v3, v0, 2, 2\nv_lshlrev_b32 v7, 7, v3\nv_lshrrev_b32 v3, 1, v3\nv_xor_b32 v3, s{sHH}, v3\nv_lshl_add_u32 v7, v3, 6, v7")
    A(f"v_bfe_u32 v3, v0, 4, 1\nv_lshl_add_u32 v7, v3, 5, v7\nv_and_b32 v3, 3, v0\nv_lshl_add_u32 v7, v3, 3, v7\nv_add_u32 v7, {RING}, v7")
    A(f"v_lshl_add_u32 v60, v{HALF}, 11, v7\nv_lshl_add_u32 v61, v{HALF}, 10, v7")
    for k in range(4):
        A(f"s_xor_b32 s{T0}, s{sW}, {k}\ns_lshl_b32 s{T1}, s{T0}, 12\nv_add_u32 v{WA+k}, s{T1}, v60\ns_lshl_b32 s{T1}, s{T0}, 11\nv_add_u32 v{QA+k}, s{T1}, v61")
    A(f"v_mov_b32 v{ONES}, 0x3f803f80\nv_mov_b32 v{SXX}, 0")
    A(f"v_lshrrev_b32 v3, 2, v0\nv_xor_b32 v3, v3, v0\nv_and_b32 v3, 4, v3\nv_and_b32 v7, 3, v0\nv_or_b32 v3, v3, v7\nv_cmp_eq_u32 vcc, 0, v3")
    for i in range(4):
        A(f"v_cndmask_b32 v{SEL+i}, 0, v{ONES}, vcc")
    A(f"s_mov_b32 s{sK1}, {fbits(1/512)}\ns_mov_b32 s{sK2}, {fbits(1e-5)}\ns_mov_b32 s{sK3}, {fbits(LOG2E)}")
    A(f"v_and_b32 v60, 1, v0\nv_cmp_eq_u32 vcc, 1, v60\nv_mov_b32 v61, 0x3f80\nv_mov_b32 v62, 0x3f800000\nv_cndmask_b32 v61, v61, v62, vcc")
    A(f"v_bfe_u32 v60, v0, 2, 1\nv_cmp_eq_u32 vcc, v60, v{HALF}\nv_cndmask_b32 v61, 0, v61, vcc")
    A("v_bfe_u32 v60, v0, 3, 2\nv_lshlrev_b32 v60, 1, v60\nv_bfe_u32 v62, v0, 1, 1\nv_or_b32 v60, v60, v62")
    for r in range(8):
        A(f"v_cmp_eq_u32 vcc, {r}, v60\nv_cndmask_b32 v{ID+r}, 0, v61, vcc")
    A(f"v_bfe_u32 v60, v0, 2, 2\nv_lshl_add_u32 v60, v{HALF}, 2, v60\nv_lshlrev_b32 v60, 5, v60\nv_and_b32 v61, 3, v0\nv_lshl_add_u32 v60, v61, 3, v60")
    A(f"s_lshl_b32 s{T0}, s{sW}, 13\ns_add_u32 s{T0}, s{T0}, {RL}\nv_add_u32 v60, s{T0}, v60")
    A("v_bfe_u32 v61, v0, 4, 1\nv_mul_u32_u24 v61, 0x8000, v61\nv_lshl_or_b32 v61, v61, 16, v61")
    ctl_setup(A, 110, 111, 62)
    common_srds(A)

    def reads(sq, sg_, b):
        A(f"ds_read_b128 {v(FX[b],4)}, v{XA+sg_} offset:{XL + sq*8192}")
        for sg in range(2):
            for t in range(2):
                A(f"ds_read_b64_tr_b16 {v(FW[b]+4*sg+2*t,2)}, v{WA+sg_} offset:{(sq&3)*16384 + sg*1024 + t*512}")
    for c in range(8):
        A("s_barrier")
        if c in (2, 4): stamp(A, f"B{c}")
        if c == 0:
            stamp(A, "B0")
            for e in range(2):
                for t in range(2):
                    A(f"ds_read_b64_tr_b16 {v(PW+4*e+2*t,2)}, v60 offset:{e*512+t*256}")
        reads(c, 0, 0)
        for k in range(4):
            b = k & 1
            if k < 3: reads(c, k + 1, b ^ 1)
            A(f"s_waitcnt lgkmcnt({5 if k < 3 else 0})")
            if c == 0 and k == 0:
                for i in range(8):
                    A(f"v_xor_b32 v{PW+i}, v{PW+i}, v61")
            first = (c == 0 and k == 0)
            X = FX[b]; W = FW[b]
            mfma(A, AK, W, X, None if first else AK)
            if k in (0, 3):
                m16(A, CSK, SEL, W, None if first else CSK)
            else:
                m16(A, RSA, SEL, X, None if (c == 0 and k == 1) else RSA)
            mfma(A, AV, X, W+4, None if first else AV)
            if k in (0, 3):
                m16(A, CSV, SEL, W+4, None if first else CSV)
            else:
                for i in range(4):
                    A(f"v_dot2c_f32_bf16 v{SXX}, v{X+i}, v{X+i}")
    stamp(A, "loop")
    A(f"s_xor_b32 s{T0}, s{sW}, 1\ns_lshl_b32 s{T0}, s{T0}, 13\ns_add_u32 s{T0}, s{T0}, {RL+4096}\nv_lshl_add_u32 v36, v0, 2, s{T0}")
    A(f"s_xor_b32 s{T0}, s{sW}, 2\ns_lshl_b32 s{T0}, s{T0}, 13\ns_add_u32 s{T0}, s{T0}, {RL+4096}\nv_lshl_add_u32 v37, v0, 2, s{T0}")
    A(f"s_lshl_b32 s{T0}, s{sW}, 13\ns_add_u32 s{T0}, s{T0}, {RL+4096}\nv_lshl_add_u32 v38, v0, 2, s{T0}")
    A(f"ds_write_b32 v37, v{SXX} offset:768")
    A(f"ds_write_b32 v37, v{RSA} offset:512")
    A(f"ds_write_b32 v36, v{CSK}")
    A(f"ds_write_b32 v36, v{CSV} offset:256")
    A(f"s_add_u32 s{T0}, s{T0}, 1024\nv_lshl_add_u32 v39, v{ROW}, 2, s{T0}\nv_lshl_add_u32 v40, v{HALF}, 4, s{T0}")
    ctl_add(A, 110, 111, C_E1)
    ctl_wait(A, 110, 62, C_E1, 4)
    stamp(A, "E1")
    A(f"ds_read2st64_b32 v[44:45], v38 offset0:2 offset1:3")
    A(f"ds_read2st64_b32 v[46:47], v38 offset0:0 offset1:1")
    A("v_cmp_gt_u32 vcc, 32, v0")
    A("s_waitcnt lgkmcnt(1)")
    NM, RSTD = 48, 49
    A(f"v_add_f32 v{RSA}, v{RSA}, v44\nv_add_f32 v{SXX}, v{SXX}, v45\nv_mov_b32 v50, v{SXX}")
    A(f"v_permlane32_swap_b32 v{SXX}, v50\nv_add_f32 v{SXX}, v{SXX}, v50")
    finish_stats(A, RSA, SXX, NM, RSTD, 50)
    A(f"ds_write_b32 v39, v{RSTD}")
    NF = 104
    A(f"v_cvt_pk_bf16_f32 v{NF+1}, v{NM}, 0\nv_lshlrev_b32 v50, 16, v{NF+1}\nv_sub_f32 v50, v{NM}, v50\nv_cvt_pk_bf16_f32 v{NF}, v{NM}, v50")
    A(f"v_mov_b32 v{NF+2}, 0\nv_mov_b32 v{NF+3}, 0")
    RS = 128
    A("s_waitcnt lgkmcnt(0)")
    for q in range(4):
        A(f"ds_read_b128 {v(RS+4*q,4)}, v40 offset:{q*32}")
    def cs_frag(cs, F):
        A(f"v_cndmask_b32 v{cs}, 0, v{cs}, vcc")
        A(f"v_cvt_pk_bf16_f32 v{F}, v{cs}, v{cs}\nv_lshlrev_b32 v50, 16, v{F}\nv_sub_f32 v50, v{cs}, v50")
        A(f"v_cvt_pk_bf16_f32 v{F+1}, v50, 0\nv_mov_b32 v{F+2}, 0\nv_mov_b32 v{F+3}, 0")
    A(f"v_add_f32 v{CSK}, v{CSK}, v46")
    cs_frag(CSK, 52)
    mfma(A, AK, 52, NF, AK)
    A(f"v_add_f32 v{CSV}, v{CSV}, v47")
    cs_frag(CSV, 56)
    mfma(A, AV, NF, 56, AV)
    CK = 108
    A(f"v_mul_f32 v{CK}, s{sK3}, v{RSTD}")
    def scale_pack(acc, outb):
        for i in range(0, 16, 2):
            A(f"v_pk_mul_f32 {v(acc+i,2)}, {v(acc+i,2)}, {v(CK,2)} op_sel_hi:[1,0]")
        for i in range(8):
            A(f"v_cvt_pk_bf16_f32 v{outb+i}, v{acc+2*i}, v{acc+2*i+1}")
    KB = 36
    P = [144, 160]
    scale_pack(AK, KB)
    mfma(A, P[0], PW, KB)
    mfma(A, P[1], PW+4, KB+4)
    A("s_waitcnt lgkmcnt(0)")
    VB, V0, V1 = 44, 52, 176
    for i in range(0, 16, 2):
        A(f"v_pk_mul_f32 {v(AV+i,2)}, {v(AV+i,2)}, {v(RS+i,2)}")
    for i in range(8):
        A(f"v_cvt_pk_bf16_f32 v{VB+i}, v{AV+2*i}, v{AV+2*i+1}")
    A("v_and_b32 v60, 16, v0\nv_cmp_eq_u32 vcc, 0, v60")
    for i in range(8):
        A(f"v_cndmask_b32 v{V0+i}, v{ONES}, v{VB+i}, vcc")
    for i in range(8):
        A(f"v_cndmask_b32 v{V1+i}, v{VB+i}, v{ONES}, vcc")
    TM = 184; PK = [192, 200]; T = [64, 80]; TB = [36, 44]; KV = [208, 224]
    softmax_tile(A, P[0], PK[0], TM)
    stamp(A, "sm0")
    mfma(A, T[0], PK[0], ID); mfma(A, T[0], PK[0]+4, ID+4, T[0])
    softmax_tile(A, P[1], PK[1], TM)
    stamp(A, "sm1")
    mfma(A, T[1], PK[1], ID); mfma(A, T[1], PK[1]+4, ID+4, T[1])
    A(f"s_lshl_b32 s{T0}, s{sW}, 13\ns_add_u32 s{T0}, s{T0}, {RL}\nv_add_u32 v60, s{T0}, v{VL16}")
    if CFG.pa_fast:
        A(f"ds_read_b32 v62, v110 offset:{C_NON+4}\ns_waitcnt lgkmcnt(0)\nv_readfirstlane_b32 s{sFAST}, v62")
    else:
        A(f"s_mov_b32 s{sFAST}, 0")
    pair_gather(A, 61, 101, sW)
    for e in range(2):
        for i in range(8):
            A(f"v_cvt_pk_bf16_f32 v{TB[e]+i}, v{T[e]+2*i}, v{T[e]+2*i+1}")
        Ve = V0 if e == 0 else V1
        mfma(A, KV[e], TB[e], Ve); mfma(A, KV[e], TB[e]+4, Ve+4, KV[e])
    stamp(A, "smdone")
    A(f"s_mov_b32 s{T6}, s{sRL1}\ns_add_u32 s{T0}, s{sGB}, s{T6}\ns_lshl_b32 s{T0}, s{T0}, 2\ns_add_u32 s{T0}, s{T0}, s{sW}\ns_mul_i32 s{T7}, s{T0}, {PSTR}\ns_add_u32 s{T7}, s{T7}, {WS_PA}")
    G = 64
    set_tags(A, G, 3)
    for e in range(2):
        m_ = GMASK if e == 0 else "0xffff0001"
        A(f"s_mov_b32 exec_lo, {m_}\ns_mov_b32 exec_hi, {m_}")
        for q in range(4):
            A(f"ds_write_b128 v60, {v(KV[e]+4*q,4)} offset:{e*4096+q*1024}")
    stamp(A, "kvw")
    ctl_add(A, 110, 111, C_E2)
    if CFG.stamp == 7:
        A("s_waitcnt lgkmcnt(0)")
        stamp(A, "kvadd")
    ctl_wait(A, 110, 62, C_E2, 4)
    stamp(A, "E2")
    A(f"s_cmp_eq_u32 s{T6}, s{sW}\ns_cbranch_scc1 C_NOPA")
    pair_gather2(A, G, 144, 61, 101)
    stamp(A, "pag")
    hstore(A, [f"buffer_store_dwordx4 {v(G+4*g,4)}, v{VL16}, {s(SWS,4)}, s{T7} offen offset:{g*1024}" for g in range(3)], not CFG.pa_fast)
    A.label("C_NOPA")
    stamp(A, "atom")
    ctl_wait(A, 110, 62, C_WQ, 2)
    AQ = 128; CSQ = 28
    def qreads(n, b):
        sq, k = n >> 2, n & 3
        A(f"ds_read_b128 {v(FX[b],4)}, v{XA+k} offset:{XL + sq*8192}")
        for t in range(2):
            A(f"ds_read_b64_tr_b16 {v(FW[b]+2*t,2)}, v{QA+k} offset:{sq*8192 + t*512}")
    FW[0], FW[1] = 44, 48
    FX3 = [36, 40, 52]; FW3 = [44, 48, 56]
    def qreads3(n):
        sq, k = n >> 2, n & 3
        b = n % 3
        A(f"ds_read_b128 {v(FX3[b],4)}, v{XA+k} offset:{XL + sq*8192}")
        for t in range(2):
            A(f"ds_read_b64_tr_b16 {v(FW3[b]+2*t,2)}, v{QA+k} offset:{sq*8192 + t*512}")
    qreads3(0); qreads3(1)
    for n in range(32):
        if n + 2 < 32: qreads3(n + 2)
        A(f"s_waitcnt lgkmcnt({3*min(2, 31-n)})")
        mfma(A, AQ, FW3[n % 3], FX3[n % 3], None if n == 0 else AQ)
        m16(A, CSQ, SEL, FW3[n % 3], None if n == 0 else CSQ)
    stamp(A, "qgemm")
    ctl_add(A, 110, 111, C_QW)
    A("v_cmp_gt_u32 vcc, 32, v0")
    cs_frag(CSQ, 52)
    mfma(A, AQ, 52, NF, AQ)
    QB = 36
    scale_pack(AQ, QB)
    mfma(A, P[0], PW, QB)
    mfma(A, P[1], PW+4, QB+4)
    PHQ = 192
    TA0, TA1, VXR = 12, 13, 14
    A(f"v_bfe_u32 v3, v0, 2, 2\nv_lshl_add_u32 v60, v{HALF}, 2, v3\nv_lshlrev_b32 v{TA0}, 7, v60\nv_lshrrev_b32 v3, 1, v3\nv_lshl_add_u32 v{TA0}, v3, 6, v{TA0}")
    A(f"v_bfe_u32 v3, v0, 4, 1\nv_lshl_add_u32 v{TA0}, v3, 5, v{TA0}\nv_and_b32 v3, 3, v0\nv_lshl_add_u32 v{TA0}, v3, 3, v{TA0}")
    A(f"s_lshl_b32 s{T0}, s{sW}, 14\nv_add_u32 v{TA0}, s{T0}, v{TA0}\ns_lshl_b32 s{T0}, s{sHH}, 6\nv_xor_b32 v{TA0}, s{T0}, v{TA0}\nv_xor_b32 v{TA1}, 64, v{TA0}")
    A(f"v_lshlrev_b32 v{VXR}, 10, v{ROW}\nv_lshl_add_u32 v{VXR}, v{HALF}, 3, v{VXR}")
    softmax_tile(A, P[0], PHQ, TM)
    XR = 16
    A(f"s_lshl_b32 s{T0}, s{sRB}, 16\ns_lshl_b32 s{T1}, s{sRH}, 15\ns_add_u32 s{T0}, s{T0}, s{T1}\ns_lshl_b32 s{T1}, s{sC8}, 7\ns_add_u32 s{T0}, s{T0}, s{T1}\ns_lshl_b32 s{T1}, s{sHH}, 6\ns_add_u32 s{T0}, s{T0}, s{T1}")
    for q in range(4):
        A(f"buffer_load_dwordx2 {v(XR+2*q,2)}, v{VXR}, {s(SX_,4)}, s{T0} offen offset:{q*16}")
    softmax_tile(A, P[1], PHQ+8, TM)
    stamp(A, "arrv")
    if CFG.kvm:
        NX = 4 if CFG.m42 else 8
        A(f"s_lshl_b32 s{T6}, s{sHQ}, 2\ns_lshl_b32 s{T0}, s{sHH}, 1\ns_add_u32 s{T6}, s{T6}, s{T0}\ns_mul_i32 s{T5}, s{T6}, {KVSTR}\ns_add_u32 s{T5}, s{T5}, {WS_KVS}")
        A(f"v_lshlrev_b32 v3, 4, v{ROW}\nv_lshl_add_u32 v3, v{HALF}, 8, v3\nv_lshlrev_b32 v60, 4, v{HALF}\nv_add_u32 v60, 2048, v60\nv_cmp_gt_u32 vcc, 16, v{ROW}")
        for q in range(4):
            A(f"v_add_u32 v61, {q*512}, v3\nv_add_u32 v62, {q*32}, v60\nv_cndmask_b32 v{8+q}, v62, v61, vcc")
        A(f"ds_read_b32 v62, v110 offset:{C_NON+4}\ns_waitcnt lgkmcnt(0)\nv_readfirstlane_b32 s{sFAST}, v62")
        ctl_add(A, 110, 111, C_SV)
        msk_ = "0xffff" if NX == 8 else "0xf0f"
        A(f"v_and_b32 v60, 15, v0\nv_mul_u32_u24 v60, {PSTR}, v60\nv_add_u32 v60, 2060, v60\ns_mul_i32 s{T1}, s{T6}, {8*PSTR}\ns_add_u32 s{T1}, s{T1}, {WS_PB}\ns_lshl_b32 s{T0}, s{sPX}, {7 if CFG.fdst else 0}\ns_and_b32 s{T0}, s{T0}, {0x380 if CFG.fdst else 0}\ns_add_u32 s{T1}, s{T1}, s{T0}\ns_mov_b64 exec, {msk_}\ns_mov_b64 s[{sMASK}:{sMASK+1}], {msk_}")
        poll(A, 61, 60, f"s{T1}", f"s{sNONCE}", s(sMASK, 2), CFG.psleep)
        A("s_mov_b64 exec, -1")
        stamp(A, "kvld")
        KVR = 160
        for e in range(2):
            if e: A(f"s_add_u32 s{T5}, s{T5}, {KVSTR}")
            for q in range(4):
                A(f"buffer_load_dwordx4 {v(KVR+16*e+4*q,4)}, v{8+q}, {s(SWS,4)}, s{T5} offen sc1")
    else:
        NX = 4 if CFG.m42 else 8
        A(f"s_lshl_b32 s{T6}, s{sHQ}, 2\ns_add_u32 s{T5}, s{T6}, s{sW}\ns_mul_i32 s{T5}, s{T5}, {8*PSTR}\ns_add_u32 s{T5}, s{T5}, {WS_PB}")
        A(f"s_lshl_b32 s{T0}, s{sHH}, 1\ns_add_u32 s{T6}, s{T6}, s{T0}\ns_lshl_b32 s{T1}, s{sRL1}, {0 if CFG.m42 else 1}")
        for k in range(NX):
            A(f"s_add_u32 s{T0}, s{T1}, {k}\ns_and_b32 s{T0}, s{T0}, {NX-1}\ns_mul_i32 s{T0}, s{T0}, {PSTR}\ns_add_u32 s{8+k}, s{T0}, s{T5}")
        L = 64
        SCR = 65536 + 7*12288
        A(f"s_mul_i32 s{T0}, s{sHH}, 5504\ns_add_u32 s{T0}, s{T0}, {SCR}\ns_mul_i32 s{T1}, s{sRH}, 2304\ns_add_u32 s{T1}, s{T1}, s{T0}\nv_lshl_add_u32 v59, v0, 2, s{T1}")
        A(f"v_lshlrev_b32 v3, 4, v{ROW}\nv_lshl_add_u32 v3, v{HALF}, 8, v3\nv_lshlrev_b32 v60, 4, v{HALF}\nv_add_u32 v60, 2048, v60\nv_cmp_gt_u32 vcc, 16, v{ROW}")
        for q in range(4):
            A(f"v_add_u32 v61, {q*512}, v3\nv_add_u32 v62, {q*32}, v60\nv_cndmask_b32 v{8+q}, v62, v61, vcc\nv_add_u32 v{8+q}, s{T0}, v{8+q}")
        A(f"s_lshl_b32 s{T0}, s{sHH}, 2\nv_add_u32 v58, s{T0}, v110\nv_mov_b32 v56, v110\nv_mov_b32 v57, 1")
        ctl_wait(A, 110, 62, C_QW, 5)
        if CFG.ddw and not CFG.w1c: ctl_wait(A, 110, 62, C_FULL, 2, 2)
        A(f"ds_read_b32 v62, v110 offset:{C_NON+4}\ns_waitcnt lgkmcnt(0)\nv_readfirstlane_b32 s{sFAST}, v62")
        loads = []; tags = []
        for k in range(NX):
            for g in range(3):
                loads.append(f"buffer_load_dwordx4 {v(L+12*k+4*g,4)}, v{VL16}, {s(SWS,4)}, s{8+k} offen offset:{g*1024} sc1")
                tags.append(L+12*k+4*g+3)
        A("s_mov_b64 exec, 1")
        tagged_poll(A, loads[2::3], tags[2::3], CFG.psleep)
        A("s_mov_b64 exec, -1")
        stamp(A, "kvld")
        tagged_poll(A, loads, tags)
        for k in range(1, NX):
            for r in range(0, 12, 2):
                A(f"v_pk_add_f32 {v(L+r,2)}, {v(L+r,2)}, {v(L+12*k+r,2)}")
        for i in range(9):
            A(f"ds_write_b32 v59, v{gval(L,i)} offset:{i*256}")
        ctl_add(A, 58, 57, C_KV)
        ctl_wait(A, 58, 62, C_KV, 2)
        KVR = 160
        for e in range(2):
            for q in range(4):
                A(f"ds_read_b128 {v(KVR+16*e+4*q,4)}, v{8+q} offset:{e*2304}")
        stamp(A, "syncA")
    A(f"s_mov_b32 s{sK3}, {fbits(1e-6)}")
    A(f"s_lshl_b32 s{T0}, s{sRB1}, 1\ns_add_u32 s{T0}, s{T0}, s{sRH}\ns_mul_i32 s{T0}, s{T0}, {CFG.ost}\ns_lshl_b32 s{T4}, s{T6}, 10\ns_add_u32 s{T4}, s{T4}, s{T0}")
    KA = 88; O = [128, 144]; OB = 104; RC = 112
    for e in range(2):
        A(f"s_waitcnt {'vm' if CFG.kvm else 'lgkm'}cnt({4*(1-e)})")
        if e == 0 and CFG.kvm: stamp(A, "syncA")
        if e == 1 and not CFG.kvm: ctl_add(A, 56, 57, C_SV)
        for r in range(8):
            A(f"v_cvt_pk_bf16_f32 v{KA+8*e+r}, v{KVR+16*e+2*r}, v{KVR+16*e+2*r+1}")
        mfma(A, O[e], KA+8*e, PHQ+8*e); mfma(A, O[e], KA+8*e+4, PHQ+8*e+4, O[e])
    for e in range(2):
        A(f"v_add_f32 v{RC}, s{sK3}, v{O[e]+8}\nv_rcp_f32 v{RC}, v{RC}")
        for r in range(0, 8, 2):
            A(f"v_pk_mul_f32 {v(O[e]+r,2)}, {v(O[e]+r,2)}, {v(RC,2)} op_sel_hi:[1,0]")
        for r in range(4):
            A(f"v_cvt_pk_bf16_f32 v{OB+4*e+r}, v{O[e]+2*r}, v{O[e]+2*r+1}")
    hstore(A, [f"buffer_store_dwordx4 {v(OB+4*e,4)}, v{VL16}, {s(SWS,4)}, s{T4} offen offset:{e*1024}" for e in range(2)], CFG.o_sc1)
    A(f"s_lshl_b32 s{T3}, s{sRB}, 7\ns_add_u32 s{T3}, s{T3}, {WS_F1}")
    stamp(A, "ostore")
    A(f"s_lshl_b32 s{T0}, s{sHQ}, 4\ns_lshl_b32 s{T1}, s{sW}, 2\ns_add_u32 s{T0}, s{T0}, s{T1}\ns_lshl_b32 s{T2}, s{sRB1}, 7\ns_add_u32 s{T2}, s{T2}, s{T0}")
    A(f"s_lshl_b32 s{T2}, s{T2}, 5\ns_add_u32 s{T2}, s{T2}, {WS_F1X}" if CFG.m42 else f"s_add_u32 s{T2}, s{T2}, {WS_F1}")
    if CFG.m42:
        A(f"s_lshl_b32 s{T0}, s{sRB}, 12\ns_lshl_b32 s{T3}, s{sW}, 10\ns_add_u32 s{T0}, s{T0}, s{T3}\ns_add_u32 s{T0}, s{T0}, {WS_F1X}\nv_lshl_add_u32 v60, v0, 7, s{T0}")
    else:
        A(f"s_lshl_b32 s{T0}, s{sW}, 5\ns_add_u32 s{T0}, s{T0}, s{T3}\nv_lshl_add_u32 v60, v0, 2, s{T0}")
    A(f"s_lshl_b32 s{T0}, s2, 4\ns_add_u32 s{T0}, s{T0}, s{T1}\ns_add_u32 s{T0}, s{T0}, {WS_FW}\nv_mov_b32 v61, s{T0}\nv_cmp_gt_u32 vcc, 8, v0\nv_cndmask_b32 v60, v61, v60, vcc")
    A(f"s_mul_i32 s{T4}, s{sRB}, {2*CFG.ost}\ns_lshl_b32 s{T0}, s{sW}, 13\ns_add_u32 s{T4}, s{T4}, s{T0}")
    A(f"s_mul_i32 s{T0}, s{sRH}, {CFG.ost}\ns_add_u32 s{T5}, s{T4}, {CFG.ost}\ns_sub_u32 s{T5}, s{T5}, s{T0}\ns_add_u32 s{T4}, s{T4}, s{T0}")
    A("s_waitcnt vmcnt(0)")
    flag_store(A, 62, T2, CFG.m42)
    VB = 52
    for i in range(3):
        A(f"v_add_u32 v56, {64*i}, v0\nv_mul_u32_u24 v57, 43691, v56\nv_lshrrev_b32 v57, 19, v57\nv_mul_u32_u24 v3, 12, v57\nv_sub_u32 v56, v56, v3")
        A(f"v_mul_u32_u24 v57, 2752, v57\nv_lshl_add_u32 v{VB+i}, v56, 4, v57")
        if i: A(f"v_subrev_u32 v{VB+i}, {1024*i}, v{VB+i}")
    srd(A, ST1, PTR(5), 512*2752)
    sB1, sB2, sB3 = 8, 9, 10
    A(f"s_mul_i32 s{sB1}, s{sW}, {16*2752}\ns_mul_i32 s{T0}, s{sC16}, 192\ns_add_u32 s{sB1}, s{sB1}, s{T0}\ns_mul_i32 s{sB2}, s{sW}, 3072\ns_add_u32 s{sB2}, s{sB2}, 65536")
    A(f"s_and_b32 s{sB3}, s{sC16}, {3 if CFG.arot else 0}\ns_lshl_b32 s{sB3}, s{sB3}, 1")
    def w1dma(c):
        o_ = []
        for i in range(3):
            pre = f"s_add_u32 s11, s{sB3}, {c}\ns_and_b32 s11, s11, 7\ns_mul_i32 s11, s11, {64*2752}\ns_add_u32 s11, s11, s{sB1}\ns_add_u32 m0, s{sB2}, {c*12288}\n" if i == 0 else ""
            off = f" offset:{i*1024}" if i else ""
            o_.append(pre + f"buffer_load_dwordx4 v{VB+i}, {s(ST1,4)}, s11 offen{off} lds")
        return o_
    w1l = sum([w1dma(c) for c in range(7)], []) if CFG.w1c else []
    A(f"s_mov_b64 s[{sMASK}:{sMASK+1}], 0x1ff")
    poll(A, 61, 60, "0", f"s{sNONCE}", s(sMASK, 2), CFG.f1sleep if CFG.m42 else 0)
    stamp(A, "hop1")
    AF = 64
    for k in range(8):
        for rt in range(2):
            if k % 4 == 0:
                if rt == 0: A(f"s_and_b32 s{T2}, s{sC8}, {1 if CFG.arot else 0}\ns_xor_b32 s{T2}, s{T2}, {k//4}\ns_lshl_b32 s{T2}, s{T2}, 12")
                A(f"s_add_u32 s{T0+rt}, s{T4+rt}, s{T2}")
            A(f"buffer_load_dwordx4 {v(AF+8*k+4*rt,4)}, v{VL16}, {s(SWS,4)}, s{T0+rt} offen offset:{(k%4)*1024} sc1")
    WF = [36, 44]
    ACC = lambda nt, rt: 192 + (2*nt + rt) * 16
    def woreads(k):
        for nt in range(2):
            for t in range(2):
                A(f"ds_read_b64_tr_b16 {v(WF[k&1]+4*nt+2*t,2)}, v{TA0+nt} offset:{k*2048+t*1024}")
    woreads(0)
    nw1 = 0
    for k in range(8):
        if k < 7: woreads(k + 1)
        A(f"s_waitcnt vmcnt({2*(7-k) + nw1}) lgkmcnt({4 if k < 7 else 0})")
        for rt, nt in ((1, 0), (0, 1), (1, 1), (0, 0)):
            mfma(A, ACC(nt, rt), WF[k&1]+4*nt, AF+8*k+4*rt, None if k == 0 else ACC(nt, rt))
            if 4*k + 4 > 32 - CFG.w1in*2 and (rt, nt) in ((1, 0), (1, 1)) and nw1 < CFG.w1in:
                A(w1l[nw1]); nw1 += 1
    stamp(A, "P2lp")
    if CFG.w2t == 1 and not CFG.hw2t:
        srd(A, SW_, PTR(7), 1376*1024)
        A(f"s_mul_i32 s{T0}, s{sJ}, 44032\ns_mul_i32 s{T1}, s{sW}, 11008\ns_add_u32 s{T0}, s{T0}, s{T1}\nv_lshlrev_b32 v60, 7, v0")
        A(f"buffer_load_dword v61, v60, {s(SW_,4)}, s{T0} offen\ns_add_u32 s{T0}, s{T0}, 8192\ns_mov_b64 exec, 0x3fffff")
        A(f"buffer_load_dword v62, v60, {s(SW_,4)}, s{T0} offen\ns_mov_b64 exec, -1")
    R = reduce4(A, "P2", 192, 96, w1l[nw1:], w1dma(7) if CFG.w1c else [])
    stamp(A, "P2red")
    for r in range(8):
        A(f"v_lshlrev_b32 v36, 16, v{XR+r}\nv_and_b32 v37, 0xffff0000, v{XR+r}")
        A(f"v_pk_add_f32 {v(R+2*r,2)}, {v(R+2*r,2)}, v[36:37]")
        A(f"v_cvt_pk_bf16_f32 v{40+r}, v{R+2*r}, v{R+2*r+1}")
    sHO = 7
    A(f"s_lshl_b32 s{T0}, s{sRB}, 1\ns_add_u32 s{T0}, s{T0}, s{sRH}\ns_lshl_b32 s{T1}, s{sC8}, 1\ns_add_u32 s{T1}, s{T1}, s{sHH}")
    A(f"s_mul_i32 s{sHO}, s{T0}, {CFG.hst}\ns_lshl_b32 s{T2}, s{T1}, 11\ns_add_u32 s{sHO}, s{sHO}, s{T2}\ns_add_u32 s{sHO}, s{sHO}, {WS_H}")
    A(f"v_pk_mul_f32 v[38:39], {v(R,2)}, {v(R,2)}\nv_pk_add_f32 v[36:37], {v(R,2)}, {v(R+2,2)}")
    for r in range(2, 16, 2):
        A(f"v_pk_fma_f32 v[38:39], {v(R+r,2)}, {v(R+r,2)}, v[38:39]")
        if r >= 4: A(f"v_pk_add_f32 v[36:37], v[36:37], {v(R+r,2)}")
    A("v_add_f32 v36, v36, v37\nv_add_f32 v38, v38, v39\nv_permlane32_swap_b32 v36, v38\nv_add_f32 v36, v36, v38")
    A(f"s_lshl_b32 s{T2}, s{T0}, 12\ns_lshl_b32 s{T3}, s{T1}, 8\ns_add_u32 s{T2}, s{T2}, s{T3}\ns_add_u32 s{T2}, s{T2}, {WS_ST}\nv_lshlrev_b32 v37, 2, v0")
    hstore(A, [f"buffer_store_dwordx4 v[40:43], v{VL16}, {s(SWS,4)}, s{sHO} offen",
               f"buffer_store_dwordx4 v[44:47], v{VL16}, {s(SWS,4)}, s{sHO} offen offset:1024",
               f"buffer_store_dword v36, v37, {s(SWS,4)}, s{T2} offen"], CFG.h_sc1)
    A(f"s_lshl_b32 s{T6}, s{T0}, 6\ns_lshl_b32 s{T3}, s{T1}, 2\ns_add_u32 s{T6}, s{T6}, s{T3}\ns_add_u32 s{T6}, s{T6}, {WS_F2}")
    W1L = 65536
    stamp(A, "P2st")
    TB0, TB1 = 8, 9
    A(f"v_bfe_u32 v3, v0, 2, 2\nv_lshl_add_u32 v3, v{HALF}, 2, v3\nv_mul_u32_u24 v{TB0}, 192, v3")
    A(f"v_bfe_u32 v3, v0, 4, 1\nv_lshl_add_u32 v{TB0}, v3, 5, v{TB0}\nv_and_b32 v3, 3, v0\nv_lshl_add_u32 v{TB0}, v3, 3, v{TB0}\nv_add_u32 v{TB0}, {W1L}, v{TB0}\nv_add_u32 v{TB1}, {16*3072}, v{TB0}")
    A(f"s_mul_i32 s{T3}, s{sW}, {8*3072}\nv_add_u32 v10, s{T3}, v{TB0}")
    A(f"v_lshrrev_b32 v3, 2, v0\nv_xor_b32 v3, v3, v0\nv_and_b32 v3, 4, v3\nv_and_b32 v7, 3, v0\nv_or_b32 v3, v3, v7\nv_cmp_eq_u32 vcc, 0, v3")
    for i in range(4):
        A(f"v_cndmask_b32 v{SEL+i}, 0, v{ONES}, vcc")
    if CFG.w1c:
        A("s_waitcnt vmcnt(0)")
        flag_store(A, 62, T6)
        stamp(A, "P2fl")
        A("s_barrier")
    CW = 64
    CS1 = 24
    for k in range(8):
        for nt in range(3):
            for t in range(2):
                A(f"ds_read_b64_tr_b16 {v(CW+12*k+4*nt+2*t,2)}, v10 offset:{k*3072 + t*1536 + nt*64}")
        if k == 1 or k == 3 or k == 5 or k == 7:
            A("s_waitcnt lgkmcnt(0)")
            for kk in (k-1, k):
                for nt in range(3):
                    m16(A, CS1+4*nt, SEL, CW+12*kk+4*nt, None if kk == 0 else CS1+4*nt)
        if k == 5 and not CFG.w1c:
            A("s_waitcnt vmcnt(0)")
            flag_store(A, 62, T6)
            stamp(A, "P2fl")
    stamp(A, "P2end")
    srd(A, ST0, PTR(6), 2752)
    srd(A, SW_, PTR(7), 1376*1024)
    B1 = 36
    A(f"v_lshlrev_b32 v3, 1, v{ROW}\ns_mul_i32 s{T0}, s{sC16}, 192")
    for nt in range(3):
        A(f"buffer_load_ushort v{B1+nt}, v3, {s(ST0,4)}, s{T0} offen offset:{nt*64}")
    A(f"s_lshl_b32 s{T0}, s{sW}, 14\nv_lshl_add_u32 v3, v0, 2, s{T0}")
    for nt in range(3):
        A(f"ds_write_b32 v3, v{CS1+4*nt} offset:{nt*256}")
    sRT = 35
    A(f"s_lshl_b32 s{sRT}, s{sRBK}, 2\ns_add_u32 s{sRT}, s{sRT}, s{sW}")
    A(f"s_lshl_b32 s{T5}, s{sRT}, 6\ns_add_u32 s{T5}, s{T5}, {WS_F2}\nv_lshlrev_b32 v60, 2, v0\nv_and_b32 v60, 63, v60")
    A("s_waitcnt lgkmcnt(0)\ns_barrier")
    A("v_lshlrev_b32 v3, 2, v0")
    for w in range(4):
        for nt in range(3):
            A(f"ds_read_b32 v{40+3*w+nt}, v3 offset:{w*16384+nt*256}")
    VO0, VO1 = 10, 11
    wide_pattern(A, VO0, 1024, 60+1, 62, 63)
    A(f"v_add_u32 v{VO1}, {8192-1024}, v{VO0}")
    A("v_cmp_gt_u32 vcc, 32, v0")
    A("s_waitcnt vmcnt(0) lgkmcnt(0)")
    CF = 24
    for nt in range(3):
        A(f"v_add_f32 v52, v{40+nt}, v{43+nt}\nv_add_f32 v53, v{46+nt}, v{49+nt}\nv_add_f32 v52, v52, v53")
        A(f"v_cndmask_b32 v52, 0, v52, vcc\nv_cndmask_b32 v{B1+nt}, 0, v{B1+nt}, vcc")
        A(f"v_cvt_pk_bf16_f32 v{CF+4*nt}, v52, v52\nv_lshlrev_b32 v53, 16, v{CF+4*nt}\nv_sub_f32 v53, v52, v53")
        A(f"v_cvt_pk_bf16_f32 v53, v53, 0\nv_lshl_or_b32 v{CF+4*nt+1}, v{B1+nt}, 16, v53\nv_mov_b32 v{CF+4*nt+2}, v{B1+nt}\nv_mov_b32 v{CF+4*nt+3}, 0")
    A("s_barrier")
    A(f"s_mov_b64 s[{sMASK}:{sMASK+1}], 0xffff")
    poll(A, 61, 60, f"s{T5}", f"s{sNONCE}", s(sMASK, 2))
    stamp(A, "hop2")
    AF = 128; STR = 112
    A(f"s_mul_i32 s{T4}, s{sRT}, {CFG.hst}\ns_add_u32 s{T4}, s{T4}, {WS_H}\ns_lshl_b32 s{T5}, s{sRT}, 12\ns_add_u32 s{T5}, s{T5}, {WS_ST}")
    sW2, sL2 = T6, T7
    A(f"s_mul_i32 s{sW2}, s{sW}, {22*16*1024}\ns_lshl_b32 s{T0}, s{sC8}, 7\ns_add_u32 s{sW2}, s{sW2}, s{T0}")
    def hload(k):
        pre = f"s_lshl_b32 s{T0}, s{sC16}, {13 if CFG.arot else 15}\ns_add_u32 s{T0}, s{T0}, {k*1024}\ns_and_b32 s{T0}, s{T0}, 0x7fff\ns_add_u32 s{T0}, s{T0}, s{T4}\n" if k % 4 == 0 else ""
        return pre + f"buffer_load_dwordx4 {v(AF+4*k,4)}, v{VL16}, {s(SWS,4)}, s{T0} offen offset:{(k%4)*1024} sc1"
    def w2slot(k):
        sl = k % 20
        return (f"s_lshl_b32 s{T1}, s{sW}, 14\ns_add_u32 m0, s{T1}, {sl*2048}" if sl < 8 else
                f"s_mul_i32 s{T1}, s{sW}, 24576\ns_add_u32 m0, s{T1}, {65536 + (sl-8)*2048}")
    sRS = sK3
    A(f"s_mul_i32 s{sROT}, s{sC8}, {3 if CFG.arot else 0}")
    act = lambda src: f"s_add_u32 s{T2}, {src}, s{sROT}\ns_cmp_ge_u32 s{T2}, 22\ns_cselect_b32 s3, 22, 0\ns_sub_u32 s{T2}, s{T2}, s3\ns_lshl_b32 s{T2}, s{T2}, 14\ns_add_u32 s{T2}, s{T2}, s{sW2}\n"
    def w2dyn(lo, n, first):
        pre = ""
        if first:
            pre = (f"s_and_b32 s{sRS}, s{sRB}, 3\ns_mul_i32 s{sRS}, s{sRS}, {n//4}\ns_add_u32 s{sRS}, s{sRS}, {lo}\n" if CFG.wrot else f"s_mov_b32 s{sRS}, {lo}\n")
            pre += (f"s_lshl_b32 s{sL2}, s{sW}, 14\n" if lo == 0 else f"s_mul_i32 s{sL2}, s{sW}, 24576\ns_add_u32 s{sL2}, s{sL2}, {65536 - 8*2048}\n")
        return [pre + f"s_lshl_b32 s{T1}, s{sRS}, 11\ns_add_u32 m0, s{T1}, s{sL2}\n" + act(f"s{sRS}") + f"buffer_load_dwordx4 v{VO0}, {s(SW_,4)}, s{T2} offen lds",
                f"buffer_load_dwordx4 v{VO1}, {s(SW_,4)}, s{T2} offen offset:1024 lds\ns_add_u32 s{sRS}, s{sRS}, 1\ns_cmp_eq_u32 s{sRS}, {lo+n}\ns_cselect_b32 s{sRS}, {lo}, s{sRS}"]
    def w2load(k):
        return [w2slot(k) + "\n" + act(str(k)) + f"buffer_load_dwordx4 v{VO0}, {s(SW_,4)}, s{T2} offen lds",
                f"buffer_load_dwordx4 v{VO1}, {s(SW_,4)}, s{T2} offen offset:1024 lds"]
    seq = [hload(k) for k in range(32)]
    A("v_lshlrev_b32 v7, 2, v0")
    stl = [f"buffer_load_dword v{STR+g}, v7, {s(SWS,4)}, s{T5} offen offset:{g*256} sc1" for g in range(16)]
    w2a = sum([w2dyn(0, 8, k == 0) for k in range(8)], [])
    n0 = 10 if CFG.p3s else 2
    order = seq[:n0] + stl + seq[n0:]
    idx = lambda k: k if k < n0 else k + 16
    D = 8 if CFG.p3s else CFG.p3D
    kst = 10 if CFG.p3s else 3
    for o in order[:D]: A(o)
    issued = D
    FW = [40, 48]
    ACC3 = [64, 80, 96]
    def w1reads(kg, nts, F):
        base = TB0 if kg < 16 else TB1
        for i_, nt in enumerate(nts):
            for t in range(2):
                A(f"ds_read_b64_tr_b16 {v(F+4*i_+2*t,2)}, v{base} offset:{(kg&15)*3072 + t*1536 + nt*64}")
    c0 = -2 * 0.7978845608028654 * LOG2E
    c1 = c0 * 0.044715
    NM, RSTD, SD, NF, KK = 18, 19, 16, (20 if CFG.p3m else 56), 14
    def stats():
        for g in range(3):
            A(f"v_pk_add_f32 {v(STR,2)}, {v(STR,2)}, {v(STR+4*g+4,2)}\nv_pk_add_f32 {v(STR+2,2)}, {v(STR+2,2)}, {v(STR+4*g+6,2)}")
        A(f"v_pk_add_f32 {v(STR,2)}, {v(STR,2)}, {v(STR+2,2)}\nv_add_f32 v{STR}, v{STR}, v{STR+1}\nv_mov_b32 v{STR+1}, v{STR}")
        A(f"v_permlane32_swap_b32 v{STR}, v{STR+1}")
        finish_stats(A, STR, STR+1, NM, RSTD, SD)
        A(f"v_mul_f32 v{SD}, v{SD}, v{RSTD}")
        A(f"v_cvt_pk_bf16_f32 v{NF+1}, v{NM}, v{SD}")
        A(f"v_lshlrev_b32 v60, 16, v{NF+1}\nv_sub_f32 v60, v{NM}, v60\nv_cvt_pk_bf16_f32 v{NF}, v{NM}, v60")
        A(f"v_and_b32 v60, 0xffff0000, v{NF+1}\nv_sub_f32 v60, v{SD}, v60\nv_cvt_pk_bf16_f32 v{NF+2}, v60, 0\nv_mov_b32 v{NF+3}, 0")
        A(f"v_mul_f32 v{KK+1}, {fbits(c0)}, v{RSTD}\nv_mul_f32 v60, v{RSTD}, v{RSTD}\nv_mul_f32 v60, v60, v{RSTD}\nv_mul_f32 v{KK}, {fbits(c1)}, v60")
    if CFG.p3m:
        FW3_ = [36, 48]
        p3a = 0 if CFG.hw2 else CFG.p3a
        order = order + w2a[:p3a]
        nh = len(order) - p3a
        w1reads(0, (0, 1, 2), FW3_[0])
        stamp(A, "p3i")
        for k in range(32):
            if k < 31 and not CFG.spread: w1reads(k + 1, (0, 1, 2), FW3_[(k+1)&1])
            if issued < nh: new = order[issued:min(issued + (3 if (CFG.p3s and k < 9) else CFG.p3r), nh)]
            elif k >= 32 - p3a: new = order[issued:issued + 1]
            else: new = []
            if CFG.hw2 and k == CFG.p3bk: A("s_barrier")
            for nt in range(3):
                if nt == 0:
                    A(f"s_waitcnt vmcnt({issued - 1 - idx(k)}) lgkmcnt({(4 if CFG.spread else 6) if (k < 31 or CFG.spread) else 0})")
                    stamp(A, f"p3k{k}")
                elif CFG.spread:
                    A(f"s_waitcnt lgkmcnt({4 if k < 31 else 4 - 2*nt})")
                mfma(A, ACC3[nt], FW3_[k&1]+4*nt, AF+4*k, None if k == 0 else ACC3[nt])
                if CFG.spread and k < 31: w1reads(k + 1, (nt,), FW3_[(k+1)&1] + 4*nt)
                if nt < len(new): A(new[nt])
            issued += len(new)
            if k == kst: stats()
            if k == kst + 1:
                for nt in range(3): mfma(A, ACC3[nt], CF+4*nt, NF, ACC3[nt])
        assert issued == len(order)
    else:
        w1reads(0, (0, 1), FW[0])
        for k in range(32):
            if k < 31: w1reads(k + 1, (0, 1), FW[(k+1)&1])
            else: w1reads(0, (2,), 60)
            A(f"s_waitcnt vmcnt({issued - 1 - idx(k)}) lgkmcnt({4 if k < 31 else 2})")
            new = order[issued:issued + 2]; issued += len(new)
            for nt in range(2):
                mfma(A, ACC3[nt], FW[k&1]+4*nt, AF+4*k, None if k == 0 else ACC3[nt])
                if nt < len(new): A(new[nt])
            if k == 3: stats()
            if k == 4:
                mfma(A, ACC3[2], CF+8, NF)
                mfma(A, ACC3[0], CF, NF, ACC3[0])
                mfma(A, ACC3[1], CF+4, NF, ACC3[1])
        for o in order[issued:]: A(o)
    stamp(A, "P3lp")
    A(f"s_mul_i32 s{T4}, s{sRT}, {CFG.h1st}\ns_mul_i32 s{T0}, s{sC16}, 6144\ns_add_u32 s{T4}, s{T4}, s{T0}\ns_add_u32 s{T4}, s{T4}, {WS_H1}")
    w2b = sum([w2dyn(8, 12, k == 8) for k in range(8, 20)], [])
    T = 112
    def gelu(X, OUT, pk):
        b = []
        if pk:
            for r in range(0, 16, 2): b.append(f"v_pk_mul_f32 {v(T+r,2)}, {v(X+r,2)}, {v(X+r,2)}")
            for r in range(0, 16, 2): b.append(f"v_pk_fma_f32 {v(T+r,2)}, {v(T+r,2)}, {v(KK,2)}, {v(KK,2)} op_sel:[0,0,1] op_sel_hi:[1,0,1]")
            for r in range(0, 16, 2): b.append(f"v_pk_mul_f32 {v(T+r,2)}, {v(T+r,2)}, {v(X+r,2)}")
            for r in range(16): b.append(f"v_exp_f32 v{T+r}, v{T+r}")
            for r in range(0, 16, 2): b.append(f"v_pk_fma_f32 {v(T+r,2)}, {v(T+r,2)}, {v(SD,2)}, {v(SD,2)} op_sel_hi:[1,0,0]")
            for r in range(16): b.append(f"v_rcp_f32 v{T+r}, v{T+r}")
            for r in range(0, 16, 2): b.append(f"v_pk_mul_f32 {v(X+r,2)}, {v(X+r,2)}, {v(T+r,2)}")
            for r in range(8): b.append(f"v_cvt_pk_bf16_f32 v{OUT+r}, v{X+2*r}, v{X+2*r+1}")
        else:
            st = [lambda r: f"v_mul_f32 v{T+r}, v{X+r}, v{X+r}",
                  lambda r: f"v_fma_f32 v{T+r}, v{T+r}, v{KK}, v{KK+1}",
                  lambda r: f"v_mul_f32 v{T+r}, v{T+r}, v{X+r}",
                  lambda r: f"v_exp_f32 v{T+r}, v{T+r}",
                  lambda r: f"v_fma_f32 v{T+r}, v{T+r}, v{SD}, v{SD}",
                  lambda r: f"v_rcp_f32 v{T+r}, v{T+r}",
                  lambda r: f"v_mul_f32 v{X+r}, v{X+r}, v{T+r}"]
            for step in range(8 + 7):
                for sidx in range(7, -1, -1):
                    g = step - sidx
                    if 0 <= g < 8:
                        if sidx == 7: b.append(f"v_cvt_pk_bf16_f32 v{OUT+g}, v{X+2*g}, v{X+2*g+1}")
                        else:
                            b.append(st[sidx](2*g)); b.append(st[sidx](2*g+1))
        return b
    def h1store(nt, OUT):
        lab = f"P3_NOST{nt}"
        A(f"s_cmp_ge_u32 s{sC16}, {15 if nt == 0 else 14}\ns_cbranch_scc1 {lab}")
        if nt == 2: A(f"s_add_u32 s{T4}, s{T4}, 4096")
        o = (nt & 1) * 2048
        hstore(A, [f"buffer_store_dwordx4 {v(OUT,4)}, v{VL16}, {s(SWS,4)}, s{T4} offen offset:{o}",
                   f"buffer_store_dwordx4 {v(OUT+4,4)}, v{VL16}, {s(SWS,4)}, s{T4} offen offset:{o+1024}"], CFG.h1_sc1)
        A.label(lab)
        stamp(A, f"gelu{nt}")
    if CFG.p3m:
        A("s_barrier")
        rest = [] if CFG.hw2 else w2a[CFG.p3a:] + w2b
        body = gelu(ACC3[0], 24, 1) + ["ST0"] + gelu(ACC3[1], 32, 1) + ["ST1"] + gelu(ACC3[2], 44, 1) + ["ST2"]
        span = (len(body) * 5) // 6
        nd = 0
        for i, b_ in enumerate(body):
            if b_.startswith("ST"): h1store(int(b_[2]), (24, 32, 44)[int(b_[2])])
            else: A(b_)
            if rest and nd < CFG.p3g and i >= nd * span // CFG.p3g:
                A(rest[nd]); nd += 1
        w2b = [None]*8 + rest[nd:]
    else:
        body = gelu(ACC3[0], 24, CFG.gpk) + ["ST0"] + gelu(ACC3[1], 32, CFG.gpk) + ["ST1"]
        F2 = [60, 40]
        pos = 0
        for k in range(32):
            if k < 31: w1reads(k + 1, (2,), F2[(k+1)&1])
            A(f"s_waitcnt lgkmcnt({2 if k < 31 else 0})")
            mfma(A, ACC3[2], F2[k&1], AF+4*k, ACC3[2])
            if k % 2 == 0: A(w2a[k // 2])
            end = len(body) if k == 31 else (len(body) * (k + 1)) // 33
            for b_ in body[pos:end]:
                if b_ == "ST0": h1store(0, 24)
                elif b_ == "ST1": h1store(1, 32)
                else: A(b_)
            pos = end
        A("s_barrier")
        body = gelu(ACC3[2], 44, 1)
        for i, b_ in enumerate(body):
            A(b_)
            if i % 10 == 0 and i // 10 < 8: A(w2b[i // 10])
        h1store(2, 44)
    for o in (w2b[8:16] if not CFG.p3o else []): A(o)
    srd(A, SX_, PTR(11), 64*CFG.h1st, add=WS_H1)
    srd(A, ST0, PTR(8), 1024)
    srd(A, ST1, PTR(9), 2097152)
    A(f"s_lshl_b32 s{T3}, s{sRT}, 6\ns_lshl_b32 s{T0}, s{sC16}, 2\ns_add_u32 s{T3}, s{T3}, s{T0}\ns_add_u32 s{T3}, s{T3}, {WS_F3}")
    TA2, TA3, VO, VB2 = 14, 15, 16, 17
    A(f"s_lshl_b32 s{T0}, s{sW}, 13\ns_add_u32 s{T0}, s{T0}, 65536\nv_add_u32 v{TA2}, s{T0}, v{TA0}\nv_add_u32 v{TA3}, s{T0}, v{TA1}")
    A(f"v_lshlrev_b32 v{VO}, 10, v{ROW}\nv_lshl_add_u32 v{VO}, v{HALF}, 4, v{VO}\nv_lshlrev_b32 v{VB2}, 3, v{HALF}")
    lo = [0, 3, 7, 11]; hi = [3, 7, 10, 14]
    msk = [(((1 << (hi[w]+1)) - (1 << lo[w])) * 0x10001) for w in range(4)]
    A(f"s_mov_b32 s{sMASK}, {msk[0]}\ns_cmp_eq_u32 s{sW}, 1\ns_cselect_b32 s{sMASK}, {msk[1]}, s{sMASK}\ns_cmp_eq_u32 s{sW}, 2\ns_cselect_b32 s{sMASK}, {msk[2]}, s{sMASK}")
    A(f"s_cmp_eq_u32 s{sW}, 3\ns_cselect_b32 s{sMASK}, {msk[3]}, s{sMASK}\ns_mov_b32 s{sMASK+1}, 0")
    A(f"s_lshl_b32 s{T5}, s{sRB}, 7\ns_add_u32 s{T5}, s{T5}, {WS_F3}\nv_lshlrev_b32 v60, 2, v0\nv_and_b32 v60, 127, v60")
    A("s_waitcnt vmcnt(0)")
    A(f"s_cmp_eq_u32 s{sC16}, 15\ns_cbranch_scc1 P3_NOFL")
    flag_store(A, 62, T3)
    A.label("P3_NOFL")
    for o in (w2b[16:] if not CFG.p3o else w2b[8:]): A(o)
    stamp(A, "P3fl")
    HR, B2R = 20, 28
    A(f"s_lshl_b32 s{T3}, s{sC8}, 7\ns_lshl_b32 s{T0}, s{sHH}, 6\ns_add_u32 s{T3}, s{T3}, s{T0}")
    for t in range(2):
        A(f"buffer_load_dwordx4 {v(HR+4*t,4)}, v{VL16}, {s(SWS,4)}, s{sHO} offen offset:{t*1024} sc1")
    for q in range(4):
        A(f"buffer_load_dwordx2 {v(B2R+2*q,2)}, v{VB2}, {s(ST0,4)}, s{T3} offen offset:{q*16}")
    sOUT = sHO
    poll(A, 61, 60, f"s{T5}", f"s{sNONCE}", s(sMASK, 2))
    stamp(A, "hop3")
    A(f"s_lshl_b32 s{sOUT}, s{sRB}, 16\ns_lshl_b32 s{T0}, s{sRH}, 15\ns_add_u32 s{sOUT}, s{sOUT}, s{T0}\ns_add_u32 s{sOUT}, s{sOUT}, s{T3}")
    A(f"s_mul_i32 s{T4}, s{sRB}, {2*CFG.h1st}\ns_mul_i32 s{T0}, s{sW}, {22*1024}\ns_add_u32 s{T4}, s{T4}, s{T0}\ns_mul_i32 s{T0}, s{sRH}, {CFG.h1st}\ns_add_u32 s{T5}, s{T4}, {CFG.h1st}\ns_sub_u32 s{T5}, s{T5}, s{T0}\ns_add_u32 s{T4}, s{T4}, s{T0}")
    NR = 16
    assert CFG.p4D <= 30
    AFR = lambda k: 64 + (k % NR) * 8
    A(f"s_cmp_eq_u32 s{sW}, 3\ns_cselect_b32 s{sK1}, 20, 99\ns_mov_b32 s{sK2}, s{sROT}")
    def h1load(k):
        return [f"s_lshl_b32 s{T3}, s{sK2}, 10\ns_cmp_ge_u32 s{sK2}, s{sK1}\ns_cselect_b32 s{T3}, 0x40000000, s{T3}\ns_add_u32 s{T0}, s{T4}, s{T3}\nbuffer_load_dwordx4 {v(AFR(k),4)}, v{VL16}, {s(SX_,4)}, s{T0} offen sc1",
                f"s_add_u32 s{T0}, s{T5}, s{T3}\nbuffer_load_dwordx4 {v(AFR(k)+4,4)}, v{VL16}, {s(SX_,4)}, s{T0} offen sc1\ns_add_u32 s{sK2}, s{sK2}, 1\ns_cmp_eq_u32 s{sK2}, 22\ns_cselect_b32 s{sK2}, 0, s{sK2}"]
    order = []
    for k in range(22):
        for o in h1load(k): order.append((("h", k), o))
        if k == 9:
            for kk in (20, 21):
                for o in w2load(kk): order.append((("w", kk), o))
    D = CFG.p4D
    if CFG.p4x & 1: order = [(t, o.replace(' sc1', '')) for t, o in order]
    for _, o in order[:D]: A(o)
    issued = D
    WF = [36, 44]
    def w2reads(k):
        sl = k % 20
        if CFG.p4x & 2: return
        for nt in range(2):
            for t in range(2):
                if sl < 8:
                    A(f"ds_read_b64_tr_b16 {v(WF[k&1]+4*nt+2*t,2)}, v{TA0+nt} offset:{sl*2048+t*1024}")
                else:
                    A(f"ds_read_b64_tr_b16 {v(WF[k&1]+4*nt+2*t,2)}, v{TA2+nt} offset:{(sl-8)*2048+t*1024}")
    def last_idx(tag):
        return max(i for i, (t, _) in enumerate(order) if t == tag)
    stamp(A, "p4i")
    if CFG.hw2: A("s_barrier")
    w2reads(0)
    for k in range(22):
        if k < 21:
            if k + 1 >= 20:
                A(f"s_waitcnt vmcnt({issued - 1 - last_idx(('w', k+1))})")
            w2reads(k + 1)
        A(f"s_waitcnt vmcnt({issued - 1 - last_idx(('h', k))}) lgkmcnt({4 if k < 21 else 0})")
        stamp(A, f"p4k{k}")
        new = order[issued:issued + 2]
        issued += len(new)
        j = 0
        for rt, nt in ((1, 0), (0, 1), (1, 1), (0, 0)):
            if True:
                if not (CFG.p4x & 4) or k == 0: mfma(A, ACC(nt, rt), WF[k&1]+4*nt, AFR(k)+4*rt, None if k == 0 else ACC(nt, rt))
                if j < len(new): A(new[j][1])
                j += 1
    assert issued >= len(order)
    stamp(A, "P4lp")
    R = reduce4(A, "P4", 192, 96)
    stamp(A, "P4red")
    for r in range(8):
        A(f"v_lshlrev_b32 v36, 16, v{HR+r}\nv_and_b32 v37, 0xffff0000, v{HR+r}\nv_lshlrev_b32 v38, 16, v{B2R+r}\nv_and_b32 v39, 0xffff0000, v{B2R+r}")
        A(f"v_pk_add_f32 {v(R+2*r,2)}, {v(R+2*r,2)}, v[38:39]")
        A(f"v_pk_add_f32 {v(R+2*r,2)}, {v(R+2*r,2)}, v[36:37]")
        A(f"v_cvt_pk_bf16_f32 v{48+r}, v{R+2*r}, v{R+2*r+1}")
    for p in range(2):
        A(f"v_permlane32_swap_b32 v{48+4*p}, v{50+4*p}\nv_permlane32_swap_b32 v{49+4*p}, v{51+4*p}")
        A(f"buffer_store_dwordx4 {v(48+4*p,4)}, v{VO}, {s(ST1,4)}, s{sOUT} offen offset:{p*32}" + (" sc1" if CFG.out_sc1 else ""))
    A(f"s_or_b32 s{T0}, s2, s{sW}\ns_cmp_lg_u32 s{T0}, 0\ns_cbranch_scc1 C_NOEP")
    A(f"v_mov_b32 v60, s{sNONCE}\nv_mov_b32 v61, 0\ns_mov_b32 s{T0}, {WS_EPOCH}\ns_mov_b64 exec, 1")
    A(f"buffer_store_dword v60, v61, {s(SWS,4)}, s{T0} offen sc1\ns_mov_b64 exec, -1")
    if CFG.spin_us:
        A(f"s_add_u32 s80, s80, {CFG.spin_us*100}")
        A.label("C_SPIN")
        A(f"s_memrealtime s[{T0}:{T1}]\ns_waitcnt lgkmcnt(0)\ns_sub_u32 s{T2}, s80, s{T0}\ns_cmp_gt_i32 s{T2}, 0\ns_cbranch_scc0 C_NOEP\ns_cmp_lt_i32 s{T2}, 20000\ns_cbranch_scc1 C_SPIN")
    A.label("C_NOEP")
    stamp_out(A, 0)
    A("s_endpgm")

def main(out, **kw):
    for k_, v_ in kw.items(): setattr(CFG, k_, v_)
    nstamp[0] = 0
    A = Asm()
    gen(A)
    A.pad()
    kernel_desc(A, KN, 256, sgpr=102)
    head = open("cdna_kernels/" + NAME + ".s.ref").read().split("; Override")[0]
    if CFG.stamp: head += "; stamps: " + " ".join(STAMPSETS[CFG.stamp][1:]) + "\n"
    head += f"; @launch grid=(256,1,1) block=(512,1,1) lds=163840\n"
    head += '.amdgcn_target "amdgcn-amd-amdhsa--gfx950"\n'
    open(out, "w").write(head + A.text())

if __name__ == "__main__":
    kw = {}
    for a_ in sys.argv[2:]:
        k_, v_ = a_.split("=", 1)
        kw[k_] = v_ if k_ in ('tl', 'pace', 't2') else int(v_)
    main(sys.argv[1], **kw)
```

```python
import sys, struct
from asmlib import *

NAME = "sequential_preLN__linear_kernel_hedgehog__dense_activation_gelu__prompt"
KN = NAME + "_kernel"
WS_O = 0
WS_PA = 6 << 20
GST = 640
PSTR = 3*1024
WS_PB = 14 << 20
WS_PC = 4 << 20
WS_F1X = 5 << 20
WS_KVS = 13 << 20
KVSTR = 2304
WS_EPOCH = (4 << 20) + (532 << 10)
WS_REG = (4 << 20) + (528 << 10)
WS_F1 = (4 << 20) + (512 << 10)
WS_FW = WS_F1 + 4096
WS_F2 = WS_FW + 4096
WS_F3 = WS_F2 + 4096
WS_ST = (4 << 20) + (640 << 10)
WS_H = 17 << 20
WS_H1 = 20 << 20
H1_BYTES = 64 * 86 * 1024
WS_STAMP = 16 << 20
WS_SIZE = 32 << 20
LOG2E = 1.4426950408889634
def fbits(x): return "0x%08x" % struct.unpack("<I", struct.pack("<f", x))[0]

class Cfg:
    stamp = 0
    rot = 2
    fast = 1
    pd = 3
    p4D = 12
    p4x = 0
    ost = 32768
    hst = 32768
    h1st = 88064
    diag = 0
    pa_sc1 = 0
    pc_sc1 = 0
    o_sc1 = 1
    h_sc1 = 1
    h1_sc1 = 1
    prepoll1 = 1
    w1late = 1
    hprio = 0
    regat = 3
    w2t = 1
    ddw = 0
    p3m = 1
    p3a = 8
    p3g = 20
    hw2 = 1
    p3r = 1
    p3bk = 22
    spread = 1
    ddn = 6
    p3o = 1
    gpk = 0
    arot = 0
    ctouch = 1
    m42 = 0
    kvm = 1
    fdst = 1
    dwait = 0
    hw2t = 0
    spin_us = 0
    amp = ''
    f1sleep = 2
    srvt = 0
    s1sleep = 1
    pa_fast = 0
    w1in = 0
    w1c = 0
    wqlate = 1
    p3D = 26
    out_sc1 = 0
    prepoll2 = 1
    prepoll3 = 0
    tl = "fl,pa1,pbx,wq,wo,w1"
    pace = "0,0,0,0,99,0,0,0,0"
    tthr = 2
    t2 = ""
    pa_full = 0
    psleep = 2
    wrot = 1
    dthr = 8
    w2thr = 9
    p3s = 1
CFG = Cfg()

SX_, SW_, SWS, SDBG, ST0, ST1 = 8, 12, 16, 20, 24, 28
PTR = lambda i: 36 + 2*i
sXCD, sJ, sRB, sC8, sRBK, sC16, sW, sRH, sHH, sNONCE = 60, 61, 62, 63, 64, 65, 66, 67, 68, 69
sFAST, sSPIN, sROT = 4, 5, 6
sRB1, sHQ, sRL1, sPX = 20, 21, 22, 23
sGB = 44
T0, T1, T2, T3, T4, T5, T6, T7 = 70, 71, 72, 73, 74, 75, 76, 77
sMASK = 78
sK1, sK2, sK3 = 32, 33, 34

nstamp = [0]
SREG = lambda i: 82 + 2*i if i < 10 else 56
STAMPSETS = {
 1: ["start","B0","loop","atom","arrv","syncA","hop1","P2end","hop2","P3lp","hop3"],
 2: ["start","B0","B2","B4","loop","E1","smdone","E2","atom","qgemm","arrv"],
 3: ["start","syncA","kvld","ostore","hop1","P2lp","P2red","P2st","P2fl","P2end","hop2"],
 5: ["start","hop2","p3i","p3k0","p3k1","p3k5","p3k8","p3k16","p3k24","P3lp","hop3"],
 6: ["start","hop3","p4i","p4k0","p4k4","p4k8","p4k12","p4k16","p4k20","P4lp","P4red"],
 7: ["start","loop","E1","sm0","sm1","smdone","kvw","kvadd","E2","pag","atom"],
 4: ["start","hop2","P3lp","gelu0","gelu1","gelu2","P3fl","hop3","P4lp","P4red","qgemm"],
}
def stamp(A, name):
    if CFG.amp == name:
        A("s_memrealtime s[82:83]")
    if CFG.stamp and name in STAMPSETS[CFG.stamp]:
        i = STAMPSETS[CFG.stamp].index(name); nstamp[0] = 11
        assert i < 11
        b = SREG(i)
        A(f"s_memtime s[{b}:{b+1}]")

def mfma(A, d, x, y, c=None):
    cc = "0" if c is None else v(c, 16)
    A(f"v_mfma_f32_32x32x16_bf16 {v(d,16)}, {v(x,4)}, {v(y,4)}, {cc}")
def m16(A, d, x, y, c=None):
    cc = "0" if c is None else v(c, 4)
    A(f"v_mfma_f32_16x16x32_bf16 {v(d,4)}, {v(x,4)}, {v(y,4)}, {cc}")

def swap_reduce(A, x, y, op):
    A(f"v_permlane32_swap_b32 v{x}, v{y}")
    A(f"{op} v{x}, v{x}, v{y}")
    A(f"v_mov_b32 v{y}, v{x}")
    A(f"v_permlane32_swap_b32 v{x}, v{y}")

def softmax_tile(A, P, out, tm):
    M = tm
    A(f"v_max3_f32 v{M}, v{P}, v{P+1}, v{P+2}")
    A(f"v_max3_f32 v{M+1}, v{P+8}, v{P+9}, v{P+10}")
    A(f"v_max3_f32 v{M}, v{M}, v{P+3}, v{P+4}")
    A(f"v_max3_f32 v{M+1}, v{M+1}, v{P+11}, v{P+12}")
    A(f"v_max3_f32 v{M}, v{M}, v{P+5}, v{P+6}")
    A(f"v_max3_f32 v{M+1}, v{M+1}, v{P+13}, v{P+14}")
    A(f"v_max_f32 v{M}, v{M}, v{P+7}")
    A(f"v_max_f32 v{M+1}, v{M+1}, v{P+15}")
    swap_reduce(A, M, M+1, "v_max_f32")
    for i in range(0, 8, 2):
        A(f"v_pk_add_f32 {v(P+i,2)}, {v(P+i,2)}, {v(M,2)} op_sel_hi:[1,0] neg_lo:[0,1] neg_hi:[0,1]")
    for i in range(8, 16, 2):
        A(f"v_pk_add_f32 {v(P+i,2)}, {v(P+i,2)}, {v(M,2)} op_sel:[0,1] op_sel_hi:[1,1] neg_lo:[0,1] neg_hi:[0,1]")
    for i in range(16):
        A(f"v_exp_f32 v{P+i}, v{P+i}")
    T = tm + 2
    for g in range(2):
        b = P + 8*g
        A(f"v_pk_add_f32 {v(T,2)}, {v(b,2)}, {v(b+2,2)}")
        A(f"v_pk_add_f32 {v(T+2,2)}, {v(b+4,2)}, {v(b+6,2)}")
        A(f"v_pk_add_f32 {v(T,2)}, {v(T,2)}, {v(T+2,2)}")
        A(f"v_add_f32 v{M+g}, v{T}, v{T+1}")
    swap_reduce(A, M, M+1, "v_add_f32")
    A(f"v_rcp_f32 v{M}, v{M}")
    A(f"v_rcp_f32 v{M+1}, v{M+1}")
    for i in range(0, 8, 2):
        A(f"v_pk_mul_f32 {v(P+i,2)}, {v(P+i,2)}, {v(M,2)} op_sel_hi:[1,0]")
    for i in range(8, 16, 2):
        A(f"v_pk_mul_f32 {v(P+i,2)}, {v(P+i,2)}, {v(M,2)} op_sel:[0,1] op_sel_hi:[1,1]")
    for i in range(8):
        A(f"v_cvt_pk_bf16_f32 v{out+i}, v{P+2*i}, v{P+2*i+1}")

_uid = [0]
def uid(p):
    _uid[0] += 1
    return f"{p}{_uid[0]}"

def hstore(A, ins, force=0):
    if not CFG.fast or force:
        for s_ in ins: A(s_ + " sc1")
        return
    l1, l2 = uid("HS"), uid("HE")
    A(f"s_cmp_eq_u32 s{sFAST}, 1\ns_cbranch_scc1 {l1}")
    for s_ in ins: A(s_ + " sc1")
    A(f"s_branch {l2}")
    A.label(l1)
    for s_ in ins: A(s_)
    A.label(l2)

def flag_store(A, vtmp, soff, force=0):
    A(f"v_mov_b32 v{vtmp}, s{sNONCE}\nv_mov_b32 v{vtmp+1}, 0\ns_mov_b64 exec, 1")
    hstore(A, [f"buffer_store_dword v{vtmp}, v{vtmp+1}, {s(SWS,4)}, s{soff} offen"], force)
    A("s_mov_b64 exec, -1")

def poll(A, vdst, vaddr, soff, want, mask, sleep=0):
    l, le = uid("PL"), uid("PE")
    A.label(l)
    A(f"buffer_load_dword v{vdst}, v{vaddr}, {s(SWS,4)}, {soff} offen sc1")
    A(f"s_sub_u32 s{sSPIN}, s{sSPIN}, 1\ns_cmp_lt_i32 s{sSPIN}, 0\ns_cbranch_scc1 {le}")
    A("s_waitcnt vmcnt(0)")
    A(f"v_cmp_ne_u32 vcc, {want}, v{vdst}")
    A(f"s_and_b64 vcc, vcc, {mask}")
    if sleep:
        A(f"s_cbranch_scc0 {le}\ns_sleep {sleep}\ns_branch {l}")
    else:
        A(f"s_cbranch_scc1 {l}")
    A.label(le)

XL, RING, RL = 0, 65536, 131072

def stamp_out(A, wadd):
    if not CFG.stamp: return
    A("s_mov_b64 exec, -1\ns_waitcnt vmcnt(0)")
    A(f"s_memtime s[{T0}:{T1}]\ns_memrealtime s[{T2}:{T3}]\ns_waitcnt lgkmcnt(0)")
    A(f"v_mov_b32 v0, s80\nv_mov_b32 v1, s{T2}\nv_mov_b32 v2, s{sFAST}\ns_sub_u32 s{T0}, s{T0}, s82\nv_mov_b32 v3, s{T0}")
    for i in range(1, 11):
        A(f"s_sub_u32 s{T0}, s{SREG(i)}, s82\nv_mov_b32 v{3+i}, s{T0}")
    A(f"s_getreg_b32 s{T0}, hwreg(HW_REG_XCC_ID)\nv_mov_b32 v14, s{T0}\nv_mov_b32 v15, s{sSPIN}")
    A(f"s_lshl_b32 s{T0}, s2, 3\ns_add_u32 s{T0}, s{T0}, s{sW}\ns_add_u32 s{T0}, s{T0}, {wadd}\ns_lshl_b32 s{T0}, s{T0}, 6\ns_add_u32 s{T0}, s{T0}, {WS_STAMP}")
    A("v_mov_b32 v16, 0\ns_mov_b64 exec, 1")
    for i in range(4):
        A(f"buffer_store_dwordx4 {v(4*i,4)}, v16, {s(SWS,4)}, s{T0} offen offset:{16*i}")

HSET = ["start", "h1", "h2", "h3", "h4", "h5", "h6", "h7", "h8", "h9", "h10"]
def hstamp(A, i):
    if CFG.stamp:
        b = SREG(i)
        A(f"s_memtime s[{b}:{b+1}]")

def gen(A):
    kernel_head(A, KN)
    A("s_cmp_ge_u32 s2, 256\ns_cbranch_scc1 L_END")
    if CFG.stamp or CFG.spin_us or CFG.amp:
        A("s_memrealtime s[80:81]")
    stamp(A, "start")
    A("s_load_dwordx16 s[36:51], s[0:1], 0")
    A("s_load_dwordx8 s[52:59], s[0:1], 64")
    A(f"s_and_b32 s{sXCD}, s2, 7\ns_lshr_b32 s{sJ}, s2, 3")
    A(f"s_lshl_b32 s{sRB}, s{sXCD}, 2\ns_lshr_b32 s{T0}, s{sJ}, 3\ns_add_u32 s{sRB}, s{sRB}, s{T0}\ns_and_b32 s{sC8}, s{sJ}, 7")
    A(f"s_lshr_b32 s{sRBK}, s{sRB}, 1\ns_and_b32 s{sC16}, s{sJ}, 15")
    if CFG.m42:
        A(f"s_lshr_b32 s{sPX}, s{sXCD}, 1\ns_lshr_b32 s{sRL1}, s{sJ}, 2\ns_lshl_b32 s{sRB1}, s{sPX}, 3\ns_add_u32 s{sRB1}, s{sRB1}, s{sRL1}")
        A(f"s_and_b32 s{T1}, s{sJ}, 3\ns_and_b32 s{sHQ}, s{sXCD}, 1\ns_lshl_b32 s{sHQ}, s{sHQ}, 2\ns_add_u32 s{sHQ}, s{sHQ}, s{T1}")
        A(f"s_lshl_b32 s{sROT}, s{T1}, 1\ns_add_u32 s{sROT}, s{sROT}, s{sRL1}\ns_add_u32 s{sROT}, s{sROT}, s{sPX}\ns_lshl_b32 s{T1}, s{T1}, 3")
    else:
        A(f"s_mov_b32 s{sPX}, s{sXCD}\ns_mov_b32 s{sRL1}, s{T0}\ns_mov_b32 s{sRB1}, s{sRB}\ns_mov_b32 s{sHQ}, s{sC8}")
        A(f"s_lshl_b32 s{sROT}, s{T0}, 1\ns_add_u32 s{sROT}, s{sROT}, s{sC8}\ns_add_u32 s{sROT}, s{sROT}, s{sXCD}\ns_lshl_b32 s{T1}, s{sC8}, 2")
    A(f"s_and_b32 s{sROT}, s{sROT}, {7 if CFG.rot == 1 else (6 if CFG.rot == 2 else 0)}\ns_lshl_b32 s3, s{sXCD}, 5\ns_add_u32 s3, s3, s{T1}")
    A(f"v_lshrrev_b32 v1, 6, v0\nv_and_b32 v0, 63, v0\nv_readfirstlane_b32 s{sW}, v1")
    A(f"s_mov_b32 s{sSPIN}, 0x80000")
    A(f"v_lshlrev_b32 v4, 4, v0")
    A(f"s_cmp_lt_u32 s{sW}, 4\ns_cbranch_scc1 L_COMPUTE")
    helper(A)
    A.label("L_COMPUTE")
    compute(A)
    A.label("L_END")
    A("s_endpgm")

VL16 = 4

def load_nonce(A):
    A(f"s_mov_b32 s{sGB}, s3")
    A(f"s_add_u32 s{T0}, s{PTR(11)}, {WS_EPOCH}\ns_addc_u32 s{T1}, s{PTR(11)+1}, 0\ns_load_dword s{sNONCE}, s[{T0}:{T1}], 0")
def fin_nonce(A):
    A(f"s_waitcnt lgkmcnt(0)\ns_add_u32 s{sNONCE}, s{sNONCE}, 16\ns_and_b32 s{sNONCE}, s{sNONCE}, -16\ns_or_b32 s{sNONCE}, s{sNONCE}, 8")

def common_srds(A):
    A("s_waitcnt lgkmcnt(0)")
    load_nonce(A)
    srd(A, SX_, PTR(0), 2097152)
    srd(A, SWS, PTR(11), WS_SIZE)
    fin_nonce(A)

def wide_pattern(A, dst, stride, t1=1, t2=2, t3=3):
    A(f"v_lshrrev_b32 v{t1}, 3, v0\nv_and_b32 v{t2}, 7, v0\nv_bfe_u32 v{t3}, v0, 4, 1\nv_lshlrev_b32 v{t3}, 2, v{t3}\nv_xor_b32 v{t2}, v{t2}, v{t3}\nv_lshlrev_b32 v{t2}, 4, v{t2}")
    A(f"v_mul_u32_u24 v{t1}, {stride}, v{t1}\nv_add_u32 v{dst}, v{t1}, v{t2}")


GMASK = "0x1ffff"
QW = [156672 + 320, 162816 + 64]
VERD = 3072

C_QW, C_E1, C_QT, C_E2, C_NON, C_WQ, C_SV = 0, 4, 8, 12, 16, 24, 28
C_FULL, C_KV, C_FREE = 32, 40, 48
def ctl_setup(A, vadr, vone, t):
    A(f"v_mov_b32 v{vone}, 1\nv_mov_b32 v{vadr}, {QW[0]}\nv_mov_b32 v{t}, {QW[1]}\nv_cmp_eq_u32 vcc, 0, v0\nv_cndmask_b32 v{vadr}, v{t}, v{vadr}, vcc")
def ctl_add(A, vadr, vone, off, restore="-1"):
    A(f"s_mov_b64 exec, 3\nds_add_u32 v{vadr}, v{vone} offset:{off}\ns_mov_b64 exec, {restore}")
def ctl_wait(A, vadr, vt, off, thr, sleep=0):
    l, le = uid("CW"), uid("CE")
    A.label(l)
    A(f"ds_read_b32 v{vt}, v{vadr} offset:{off}\ns_sub_u32 s{sSPIN}, s{sSPIN}, 1\ns_cmp_lt_i32 s{sSPIN}, 0\ns_cbranch_scc1 {le}")
    A(f"s_waitcnt lgkmcnt(0)\nv_readfirstlane_b32 s3, v{vt}\ns_cmp_lt_u32 s3, {thr}")
    if sleep:
        A(f"s_cbranch_scc0 {le}\ns_sleep {sleep}\ns_branch {l}")
    else:
        A(f"s_cbranch_scc1 {l}")
    A.label(le)

def free_wait(A, vadr, vt, thr, sleep=1):
    l, le = uid("FW"), uid("FE")
    A.label(l)
    A(f"ds_read_b128 {v(vt,4)}, v{vadr} offset:{C_FREE}\ns_sub_u32 s{sSPIN}, s{sSPIN}, 1\ns_cmp_lt_i32 s{sSPIN}, 0\ns_cbranch_scc1 {le}")
    A(f"s_waitcnt lgkmcnt(0)\nv_min3_u32 v{vt}, v{vt}, v{vt+1}, v{vt+2}\nv_min_u32 v{vt}, v{vt}, v{vt+3}\nv_readfirstlane_b32 s3, v{vt}\ns_cmp_lt_u32 s3, {thr}")
    A(f"s_cbranch_scc0 {le}\ns_sleep {sleep}\ns_branch {l}")
    A.label(le)

def set_gexec(A):
    A(f"s_mov_b32 exec_lo, {GMASK}\ns_mov_b32 exec_hi, {GMASK}")

def slot_addr(A, dst, t):
    A(f"v_and_b32 v{t}, 31, v0\nv_min_u32 v{t}, 16, v{t}\nv_lshrrev_b32 v{dst}, 5, v0\nv_mul_u32_u24 v{dst}, 17, v{dst}\nv_add_lshl_u32 v{dst}, v{dst}, v{t}, 4")

def gval(G, r):
    return G + 4*(r // 3) + (r % 3)

def pair_gather(A, va, vz, shl):
    A(f"s_lshr_b32 s{T0}, s{shl}, 1\ns_lshl_b32 s{T0}, s{T0}, 14\ns_and_b32 s{T1}, s{shl}, 1\ns_mul_i32 s{T2}, s{T1}, {4096+256}\ns_add_u32 s{T2}, s{T2}, s{T0}\ns_add_u32 s{T2}, s{T2}, {RL}")
    A(f"v_lshl_add_u32 v{va}, v0, 2, s{T2}")
    A(f"s_mul_i32 s{T2}, s{T1}, {4096-256}\ns_add_u32 s{T2}, s{T2}, s{T0}\ns_add_u32 s{T2}, s{T2}, {RL+256}")
    A(f"v_bfe_u32 v{vz}, v0, 2, 3\nv_lshlrev_b32 v{vz}, 9, v{vz}\nv_and_b32 v3, 3, v0\nv_lshl_add_u32 v{vz}, v3, 2, v{vz}\nv_add_u32 v{vz}, s{T2}, v{vz}")

def pair_gather2(A, G, tmp, va, vz):
    for i in range(8):
        A(f"ds_read2st64_b32 {v(tmp+2*i,2)}, v{va} offset0:{2*i} offset1:{2*i+32}")
    A(f"ds_read2st64_b32 {v(tmp+16,2)}, v{vz} offset0:0 offset1:32")
    for i in range(9):
        A(f"s_waitcnt lgkmcnt({8-i})\nv_add_f32 v{gval(G,i)}, v{tmp+2*i}, v{tmp+2*i+1}")

def set_tags(A, G, n):
    for g in range(n):
        A(f"v_mov_b32 v{G+4*g+3}, s{sNONCE}")

def tagged_poll(A, loads, regs, sleep=0):
    l, le = uid("TP"), uid("TE")
    A.label(l)
    for o in loads: A(o)
    A(f"s_sub_u32 s{sSPIN}, s{sSPIN}, 1\ns_cmp_lt_i32 s{sSPIN}, 0\ns_cbranch_scc1 {le}")
    n = len(regs)
    acc = regs[0]
    A(f"s_waitcnt vmcnt(0)")
    t = TPT
    A(f"v_xor_b32 v{t}, s{sNONCE}, v{regs[0]}")
    for i in range(1, n):
        A(f"v_xor_b32 v{t+1}, s{sNONCE}, v{regs[i]}\nv_or_b32 v{t}, v{t}, v{t+1}")
    A(f"v_cmp_ne_u32 vcc, 0, v{t}")
    if sleep:
        A(f"s_cbranch_vccz {le}\ns_sleep {sleep}\ns_branch {l}")
    else:
        A(f"s_cbranch_vccnz {l}")
    A.label(le)
    A("s_waitcnt vmcnt(0)")
TPT = 62

def w1pat(A, VB):
    for i in range(3):
        A(f"v_add_u32 v1, {64*i}, v0\nv_mul_u32_u24 v2, 43691, v1\nv_lshrrev_b32 v2, 19, v2\nv_mul_u32_u24 v3, 12, v2\nv_sub_u32 v1, v1, v3")
        A(f"v_mul_u32_u24 v2, 2752, v2\nv_lshl_add_u32 v{VB+i}, v1, 4, v2")
def w1base(A, quarter):
    A(f"s_and_b32 s{T4}, s{sC16}, {3 if CFG.arot else 0}\ns_add_u32 s{T4}, s{T4}, {quarter}\ns_and_b32 s{T4}, s{T4}, 3\ns_mul_i32 s{T4}, s{T4}, {128*2752}\ns_mul_i32 s{T0}, s{sC16}, 192\ns_add_u32 s{T4}, s{T4}, s{T0}")
def w1regs(A, base, ngroups, VB):
    for g in range(ngroups):
        A(f"s_add_u32 s{T0}, s{T4}, {g*16*2752}")
        for i in range(3):
            A(f"buffer_load_dwordx4 {v(base+12*g+4*i,4)}, v{VB+i}, {s(ST1,4)}, s{T0} offen")

def helper(A):
    sI = sW
    A(f"s_sub_u32 s{sI}, s{sW}, 4")
    A(f"s_cmp_eq_u32 s{sI}, 2\ns_cbranch_scc1 L_TOUCH\ns_cmp_eq_u32 s{sI}, 3\ns_cbranch_scc1 L_REG")
    if CFG.hprio: A(f"s_setprio {CFG.hprio}")
    VX0, VX1, VW, VW1, VW2 = 5, 6, 7, 8, 9
    A(f"v_lshrrev_b32 v1, 3, v0\nv_and_b32 v2, 7, v0\nv_lshrrev_b32 v3, 4, v0")
    A(f"v_xor_b32 v{VX0}, v2, v3\nv_lshlrev_b32 v{VX0}, 4, v{VX0}\nv_lshl_add_u32 v{VX0}, v1, 10, v{VX0}")
    A(f"v_xor_b32 v{VX1}, 64, v{VX0}\nv_add_u32 v{VX1}, {8192-1024}, v{VX1}")
    wide_pattern(A, VW, 3072)
    A(f"v_add_u32 v{VW1}, {24576-2048}, v{VW}\nv_add_u32 v{VW2}, {24576-1024}, v{VW}")
    sXO, sWO, sXL, sRL = T4, T5, T6, T7
    A(f"s_lshl_b32 s{sXO}, s{sRB1}, 16\ns_lshl_b32 s{T0}, s{sI}, 15\ns_add_u32 s{sXO}, s{sXO}, s{T0}")
    A(f"s_lshl_b32 s{sWO}, s{sHQ}, 7\ns_mul_i32 s{T0}, s{sI}, {32*3072}\ns_add_u32 s{sWO}, s{sWO}, s{T0}")
    A(f"s_lshl_b32 s{sXL}, s{sI}, 12\ns_lshl_b32 s{sRL}, s{sI}, 13\ns_add_u32 s{sRL}, s{sRL}, {RING}")
    A("s_waitcnt lgkmcnt(0)")
    hstamp(A, 1)
    srd(A, SX_, PTR(0), 2097152)
    srd(A, SW_, PTR(1), 1572864)
    def issue(sq):
        if sq < 8:
            A(f"s_add_u32 s{T0}, s{sROT}, {sq}\ns_and_b32 s{T0}, s{T0}, 7")
            A(f"s_lshl_b32 s{T1}, s{T0}, 7\ns_add_u32 s{T1}, s{T1}, s{sXO}")
            A(f"s_mul_i32 s{T2}, s{T0}, {64*3072}\ns_add_u32 s{T2}, s{T2}, s{sWO}\ns_add_u32 s{T2}, s{T2}, 1024")
            for g in range(2):
                A(f"s_add_u32 m0, s{sXL}, {XL + sq*8192 + g*2048}")
                if g: A(f"s_add_u32 s{T1}, s{T1}, 16384")
                A(f"buffer_load_dwordx4 v{VX0}, {s(SX_,4)}, s{T1} offen lds")
                A(f"buffer_load_dwordx4 v{VX1}, {s(SX_,4)}, s{T1} offen offset:1024 lds")
                A(f"s_add_u32 m0, s{sRL}, {(sq & 3)*16384 + g*4096}")
                if g: A(f"s_add_u32 s{T2}, s{T2}, {16*3072}")
                A(f"buffer_load_dwordx4 v{VW}, {s(SW_,4)}, s{T2} offen lds")
                A(f"buffer_load_dwordx4 v{VW}, {s(SW_,4)}, s{T2} offen offset:1024 lds")
                A(f"buffer_load_dwordx4 v{VW1}, {s(SW_,4)}, s{T2} offen offset:2048 lds")
                A(f"buffer_load_dwordx4 v{VW1}, {s(SW_,4)}, s{T2} offen offset:3072 lds")
        else:
            p = sq - 8
            for sh in range(2):
                A(f"s_add_u32 s{T0}, s{sROT}, {2*p+sh}\ns_and_b32 s{T0}, s{T0}, 7")
                A(f"s_mul_i32 s{T2}, s{T0}, {64*3072}\ns_add_u32 s{T2}, s{T2}, s{sWO}")
                for g in range(2):
                    A(f"s_add_u32 m0, s{sXL}, {RING + p*16384 + sh*8192 + g*2048}")
                    if g: A(f"s_add_u32 s{T2}, s{T2}, {16*3072}")
                    A(f"buffer_load_dwordx4 v{VW}, {s(SW_,4)}, s{T2} offen lds")
                    A(f"buffer_load_dwordx4 v{VW2}, {s(SW_,4)}, s{T2} offen offset:1024 lds")
    issue(0)
    hstamp(A, 2)
    srd(A, ST0, PTR(2), 16384)
    A(f"s_lshl_b32 s{T0}, s{sHQ}, 11\ns_lshl_b32 s{T1}, s{sI}, 10\ns_add_u32 s{T0}, s{T0}, s{T1}")
    A(f"s_lshl_b32 s{T1}, s{sI}, 14\ns_add_u32 m0, s{T1}, {RL}")
    A(f"buffer_load_dwordx4 v{VL16}, {s(ST0,4)}, s{T0} offen lds")
    A(f"s_add_u32 m0, s{T1}, {RL+8192}")
    A(f"buffer_load_dwordx4 v{VL16}, {s(ST0,4)}, s{T0} offen lds")
    issue(1)
    hstamp(A, 3)
    load_nonce(A)
    A(f"v_mov_b32 v25, {QW[0]}\ns_cmp_eq_u32 s{sI}, 1\ns_cselect_b32 s{T0}, {QW[1]-QW[0]}, 0\nv_add_u32 v25, s{T0}, v25\nv_mov_b32 v21, 0")
    ctl_setup(A, 11, 10, 12)
    PF = 128
    A(f"v_add_u32 v13, s{sRL}, v{VL16}\nv_add_u32 v14, 24576, v{VW}")
    def issue_reg(sq):
        A(f"s_add_u32 s{T0}, s{sROT}, {sq}\ns_and_b32 s{T0}, s{T0}, 7")
        A(f"s_lshl_b32 s{T1}, s{T0}, 7\ns_add_u32 s{T1}, s{T1}, s{sXO}")
        A(f"s_mul_i32 s{T2}, s{T0}, {64*3072}\ns_add_u32 s{T2}, s{T2}, s{sWO}\ns_add_u32 s{T2}, s{T2}, 1024")
        for g in range(2):
            A(f"s_add_u32 m0, s{sXL}, {XL + sq*8192 + g*2048}")
            if g: A(f"s_add_u32 s{T1}, s{T1}, 16384\ns_add_u32 s{T2}, s{T2}, {16*3072}")
            A(f"buffer_load_dwordx4 v{VX0}, {s(SX_,4)}, s{T1} offen lds")
            A(f"buffer_load_dwordx4 v{VX1}, {s(SX_,4)}, s{T1} offen offset:1024 lds")
            for e in range(2):
                for sg in range(2):
                    r = PF + 32*(sq-4) + 16*g + 8*e + 4*sg
                    A(f"buffer_load_dwordx4 {v(r,4)}, v{14 if e else VW}, {s(SW_,4)}, s{T2} offen offset:{sg*1024}")
    def dump(sq):
        for b_ in range(8):
            A(f"ds_write_b128 v13, {v(PF + 32*(sq-4) + 4*b_,4)} offset:{(sq & 3)*16384 + b_*1024}")
    fin_nonce(A)
    A("s_waitcnt vmcnt(12)")
    hstamp(A, 4)
    A("s_barrier")
    issue(2); issue(3)
    A("s_waitcnt vmcnt(24)\ns_barrier")
    issue_reg(4); issue_reg(5)
    A("s_waitcnt vmcnt(36)\ns_barrier")
    issue_reg(6); issue_reg(7)
    A("s_waitcnt vmcnt(36)")
    dump(4)
    A("s_barrier")
    nq = 0
    for c in range(4, 8):
        if c + 1 < 8:
            A(f"s_waitcnt vmcnt({12*(6-c) + 8*nq})")
            if c == 5: hstamp(A, 2)
            dump(c + 1)
        if c == 5: hstamp(A, 6)
        A("s_waitcnt lgkmcnt(0)")
        if c == 5: hstamp(A, 7)
        A("s_barrier")
        if c == 5: hstamp(A, 8)
        if c >= 5 and not CFG.wqlate:
            issue(8 + c - 5); nq += 1
    if CFG.wqlate:
        issue(8); issue(9); issue(10)
    ctl_wait(A, 25, 26, C_E1, 4, 1)
    issue(11)
    srd(A, SWS, PTR(11), WS_SIZE)
    srd(A, ST0, PTR(3), 524288)
    VO0, VO1 = 16, 17
    wide_pattern(A, VO0, 1024)
    A(f"v_add_u32 v{VO1}, {8192-1024}, v{VO0}")
    srd(A, ST1, PTR(5), 512*2752)
    w1pat(A, 18)
    A("v_subrev_u32 v19, 1024, v19\nv_subrev_u32 v20, 2048, v20")
    A(f"s_lshl_b32 s{T4}, s{sI}, 18\ns_lshl_b32 s{T0}, s{sC8}, 7\ns_add_u32 s{T4}, s{T4}, s{T0}\ns_lshl_b32 s{T6}, s{sI}, 15")
    A(f"s_and_b32 s{T0}, s{sC8}, {1 if CFG.arot else 0}\ns_lshl_b32 s{T0}, s{T0}, 16\ns_sub_u32 s{T5}, s{T4}, s{T0}\ns_add_u32 s{T4}, s{T4}, s{T0}")
    A("s_waitcnt vmcnt(0)")
    ctl_add(A, 11, 10, C_WQ)
    hstamp(A, 5)
    ctl_wait(A, 25, 26, C_QW, 5, 2)
    if CFG.dwait == 1: ctl_wait(A, 25, 26, C_QT, 1, 2)
    hstamp(A, 9)
    for k in range(16):
        A(f"s_add_u32 m0, s{T6}, {k*2048}\ns_add_u32 s{T0}, s{T5 if k & 4 else T4}, {k*16384}")
        A(f"buffer_load_dwordx4 v{VO0}, {s(ST0,4)}, s{T0} offen lds")
        A(f"buffer_load_dwordx4 v{VO1}, {s(ST0,4)}, s{T0} offen offset:1024 lds")
        if CFG.dthr: A(f"s_waitcnt vmcnt({CFG.dthr - 1})")
    A(f"s_lshl_b32 s{T1}, s2, 4\ns_lshl_b32 s{T2}, s{sI}, 3\ns_add_u32 s{T1}, s{T1}, s{T2}\ns_add_u32 s{T1}, s{T1}, {WS_FW}")
    def hw1(c):
        A(f"s_add_u32 s{T0}, s{T6}, {c}\ns_and_b32 s{T0}, s{T0}, 7\ns_mul_i32 s{T0}, s{T0}, {64*2752}\ns_add_u32 s{T0}, s{T0}, s{T4}")
        for g in range(2):
            A(f"s_add_u32 m0, s{T5}, {c*12288 + g*3072}")
            if g: A(f"s_add_u32 s{T0}, s{T0}, {16*2752}")
            for i in range(3):
                off = f" offset:{i*1024}" if i else ""
                A(f"buffer_load_dwordx4 v{18+i}, {s(ST1,4)}, s{T0} offen{off} lds")
            if CFG.dthr: A(f"s_waitcnt vmcnt({CFG.dthr - 1})")
    if not CFG.w1c:
        A(f"s_mul_i32 s{T4}, s{sI}, {32*2752}\ns_mul_i32 s{T0}, s{sC16}, 192\ns_add_u32 s{T4}, s{T4}, s{T0}\ns_mul_i32 s{T5}, s{sI}, 6144\ns_add_u32 s{T5}, s{T5}, 65536")
        A(f"s_and_b32 s{T6}, s{sC16}, {3 if CFG.arot else 0}\ns_lshl_b32 s{T6}, s{T6}, 1")
        if CFG.dwait != 2:
            hw1(0); hw1(1)
    A(f"v_mov_b32 v22, s{sNONCE}\nv_mov_b32 v23, s{sNONCE}\ns_waitcnt vmcnt({0 if (CFG.w1c or CFG.dwait == 2) else 12})\ns_mov_b64 exec, 1")
    A(f"buffer_store_dwordx2 v[22:23], v21, {s(SWS,4)}, s{T1} offen")
    A("s_mov_b64 exec, -1")
    hstamp(A, 10)
    if not CFG.w1c:
        if CFG.dwait in (0, 2, 3): ctl_wait(A, 25, 26, C_QT, 1 if CFG.dwait else 0, 2)
        for c in range(0 if CFG.dwait == 2 else 2, 7): hw1(c)
        A(f"s_waitcnt vmcnt({CFG.ddn})")
        ctl_add(A, 11, 10, C_FULL)
        ctl_wait(A, 25, 26, C_SV, 4, 2)
        hw1(7)
        if CFG.hw2:
            srd(A, ST1, PTR(7), 1376*1024)
            A(f"s_mul_i32 s{T4}, s{sI}, {2*22*16*1024}\ns_lshl_b32 s{T0}, s{sC8}, 7\ns_add_u32 s{T4}, s{T4}, s{T0}")
            A(f"s_mul_i32 s{sROT}, s{sC8}, {3 if CFG.arot else 0}")
        A("s_waitcnt vmcnt(0)")
        if CFG.hw2:
            def hw2batch(lo, n):
                if lo == 0: A(f"s_lshl_b32 s{T5}, s{sI}, 15")
                else: A(f"s_mul_i32 s{T5}, s{sI}, {2*24576}\ns_add_u32 s{T5}, s{T5}, {65536 - 8*2048}")
                A(f"s_and_b32 s{T6}, s{sRB}, 3\ns_mul_i32 s{T6}, s{T6}, {n//4}\ns_add_u32 s{T6}, s{T6}, {lo}")
                for k in range(n):
                    A(f"s_add_u32 s{T2}, s{T6}, s{sROT}\ns_cmp_ge_u32 s{T2}, 22\ns_cselect_b32 s3, 22, 0\ns_sub_u32 s{T2}, s{T2}, s3\ns_lshl_b32 s{T2}, s{T2}, 14\ns_add_u32 s{T2}, s{T2}, s{T4}")
                    A(f"s_lshl_b32 s{T1}, s{T6}, 11\ns_add_u32 s{T1}, s{T1}, s{T5}")
                    for u in range(2):
                        A(f"s_add_u32 m0, s{T1}, {u*(16384 if lo == 0 else 24576)}")
                        if u: A(f"s_add_u32 s{T2}, s{T2}, {22*16*1024}")
                        A(f"buffer_load_dwordx4 v{VO0}, {s(ST1,4)}, s{T2} offen lds")
                        A(f"buffer_load_dwordx4 v{VO1}, {s(ST1,4)}, s{T2} offen offset:1024 lds")
                        if CFG.w2thr and lo: A(f"s_waitcnt vmcnt({CFG.w2thr - 1})")
                    A(f"s_add_u32 s{T6}, s{T6}, 1\ns_cmp_eq_u32 s{T6}, {lo+n}\ns_cselect_b32 s{T6}, {lo}, s{T6}")
            if CFG.hw2t == 2: A("s_barrier")
            if CFG.hw2t == 1: A("s_barrier")
            if CFG.hw2t:
                A(f"s_mul_i32 s{T0}, s{sJ}, 44032\ns_mul_i32 s{T1}, s{sI}, 22016\ns_add_u32 s{T0}, s{T0}, s{T1}\nv_lshlrev_b32 v24, 7, v0")
                for k in range(3):
                    if k == 2: A("s_mov_b32 exec_hi, 0xfff")
                    A(f"buffer_load_dword v250, v24, {s(ST1,4)}, s{T0} offen\ns_add_u32 s{T0}, s{T0}, 8192")
                A("s_mov_b64 exec, -1")
            A("s_barrier\ns_barrier" + ("" if CFG.hw2t == 1 else "\ns_barrier"))
            A("s_barrier")
            hw2batch(0, 8)
            A("s_barrier")
            hw2batch(8, 12)
            A("s_waitcnt vmcnt(0)\ns_barrier")
    A("s_branch L_HEND")

    A.label("L_TOUCH")
    if CFG.ctouch:
        A(f"s_getpc_b64 s[{T4}:{T5}]")
        A.label("L_PC")
        A(f"s_sub_u32 s{T4}, s{T4}, L_PC-{KN}\ns_subb_u32 s{T5}, s{T5}, 0")
        A(f"v_lshlrev_b32 v1, 5, v0\nv_add_u32 v1, s{sJ}, v1\nv_lshlrev_b32 v1, 7, v1\ns_mov_b32 s{T0}, L_END-{KN}\nv_cmp_gt_u32 vcc, s{T0}, v1\ns_and_saveexec_b64 s[{T2}:{T3}], vcc")
        A(f"global_load_dword v251, v1, s[{T4}:{T5}]\ns_mov_b64 exec, -1")
    VT, VA = 5, 6
    A(f"v_lshlrev_b32 v{VT}, 7, v0")
    A("s_waitcnt lgkmcnt(0)")
    srd(A, SWS, PTR(11), WS_SIZE)
    class Rec:
        def __init__(s_): s_.groups = [[]]
        def __call__(s_, t): s_.groups[-1].append(t)
    Aout = A
    A = Rec()
    def touch(sr, soff, nlines, va=VT, step=8192):
        k = 0
        while nlines > 0:
            n = min(64, nlines)
            if n < 64: A(f"s_mov_b64 exec, {hex((1 << n) - 1) if n <= 32 else -1}")
            if 32 < n < 64: A(f"s_mov_b32 exec_hi, {hex((1 << (n-32)) - 1)}")
            A(f"s_add_u32 s{T3}, s{soff}, {k*step}")
            A(f"buffer_load_dword v250, v{va}, {s(sr,4)}, s{T3} offen")
            if n < 64: A("s_mov_b64 exec, -1")
            if n > 16: A.groups.append([])
            nlines -= n; k += 1
    def do(what):
        if what == "p1":
            srd(A, ST0, PTR(0), 2097152); srd(A, ST1, PTR(1), 1572864)
            A(f"v_lshrrev_b32 v1, 5, v0\nv_mul_u32_u24 v1, {64*3072}, v1\nv_bfe_u32 v2, v0, 4, 1\nv_mul_u32_u24 v2, 3072, v2\nv_and_b32 v3, 15, v0\nv_lshlrev_b32 v3, 7, v3\nv_add3_u32 v{VA}, v1, v2, v3")
            A(f"s_mul_i32 s{T0}, s{sJ}, 6144\ns_add_u32 s{T0}, s{T0}, {128*3072 + 1024}")
            touch(ST1, T0, 64, VA)
            A(f"v_mul_u32_u24 v1, 43, v0\nv_lshrrev_b32 v1, 8, v1\nv_mul_u32_u24 v2, 6, v1\nv_sub_u32 v2, v0, v2\nv_lshlrev_b32 v2, 7, v2\nv_lshl_add_u32 v7, v1, 10, v2")
            A(f"s_lshl_b32 s{T1}, s{sXCD}, 18\ns_lshl_b32 s{T2}, s{sJ}, 13\ns_add_u32 s{T1}, s{T1}, s{T2}\ns_add_u32 s{T1}, s{T1}, 256")
            touch(ST0, T1, 48, 7)
            A(f"s_add_u32 s{T0}, s{T0}, {128*3072}")
            touch(ST1, T0, 128, VA, 128*3072)
        elif what == "wq":
            srd(A, ST1, PTR(1), 1572864)
            if CFG.m42:
                A(f"v_lshrrev_b32 v1, 2, v0\nv_mul_u32_u24 v1, 3072, v1\nv_and_b32 v2, 3, v0\nv_lshl_add_u32 v{VA}, v2, 7, v1")
                A(f"s_mul_i32 s{T0}, s{sJ}, {16*3072}\ns_and_b32 s{T1}, s{sXCD}, 1\ns_lshl_b32 s{T1}, s{T1}, 9\ns_add_u32 s{T0}, s{T0}, s{T1}")
                touch(ST1, T0, 64, VA)
            else:
                A(f"v_lshrrev_b32 v1, 3, v0\nv_mul_u32_u24 v1, 3072, v1\nv_and_b32 v2, 7, v0\nv_lshl_add_u32 v{VA}, v2, 7, v1")
                A(f"s_mul_i32 s{T0}, s{sJ}, {16*3072}")
                touch(ST1, T0, 128, VA, 8*3072)
        elif what == "wo":
            srd(A, ST0, PTR(3), 524288)
            A(f"s_lshl_b32 s{T0}, s{sJ}, 14"); touch(ST0, T0, 128)
        elif what in ("w1", "w1a", "w1b"):
            srd(A, ST1, PTR(5), 512*2752)
            A(f"s_mul_i32 s{T0}, s{sJ}, 44032")
            if what == "w1b": A(f"s_add_u32 s{T0}, s{T0}, {192*128}")
            touch(ST1, T0, {"w1": 344, "w1a": 192, "w1b": 152}[what])
        elif what == "w2":
            srd(A, ST1, PTR(7), 1376*1024)
            A(f"s_mul_i32 s{T0}, s{sJ}, 44032"); touch(ST1, T0, 344)
        elif what == "fl":
            A(f"s_lshl_b32 s{T0}, s{sRBK}, 8\ns_add_u32 s{T0}, s{T0}, {WS_F1}\nv_and_b32 v1, 1, v0\nv_lshlrev_b32 v1, 7, v1\nv_lshrrev_b32 v2, 1, v0\nv_lshl_add_u32 v{VA}, v2, 12, v1")
            touch(SWS, T0, 8, VA)
            A(f"s_lshl_b32 s{T0}, s2, 4\ns_add_u32 s{T0}, s{T0}, {WS_FW}"); touch(SWS, T0, 1)
            if CFG.m42:
                A(f"s_lshl_b32 s{T0}, s{sRB}, 12\ns_lshl_b32 s{T1}, s{sC8}, 9\ns_add_u32 s{T0}, s{T0}, s{T1}\ns_add_u32 s{T0}, s{T0}, {WS_F1X}"); touch(SWS, T0, 4)
        elif what in ("pa", "pal", "pa1", "pa24"):
            A(f"s_add_u32 s{T0}, s3, s{sRL1}\ns_mul_i32 s{T0}, s{T0}, {4*PSTR}\ns_add_u32 s{T0}, s{T0}, {WS_PA}")
            if what == "pa":
                A(f"v_lshrrev_b32 v1, 5, v0\nv_mul_u32_u24 v1, {PSTR}, v1\nv_and_b32 v2, 31, v0\nv_min_u32 v2, 29, v2\nv_lshl_add_u32 v{VA}, v2, 7, v1")
                touch(SWS, T0, 128, VA, 2*PSTR)
            elif what == "pa24":
                touch(SWS, T0, 96)
            elif what == "pa1":
                A(f"v_mul_u32_u24 v{VA}, {PSTR}, v0\ns_add_u32 s{T0}, s{T0}, {2*1024}")
                touch(SWS, T0, 4, VA)
            else:
                A(f"v_lshrrev_b32 v1, 3, v0\nv_mul_u32_u24 v1, {PSTR}, v1\nv_and_b32 v2, 7, v0\nv_min_u32 v2, 4, v2\nv_lshl_add_u32 v{VA}, v2, 7, v1\ns_add_u32 s{T0}, s{T0}, {5*GST}")
                touch(SWS, T0, 32, VA)
        elif what == "pc":
            A(f"s_lshl_b32 s{T0}, s{sXCD}, 5\ns_lshl_b32 s{T1}, s{sC8}, 2\ns_add_u32 s{T0}, s{T0}, s{T1}\ns_and_b32 s{T2}, s{sRB}, 3\ns_add_u32 s{T0}, s{T0}, s{T2}\ns_lshl_b32 s{T0}, s{T0}, 11\ns_add_u32 s{T0}, s{T0}, {WS_PC}")
            touch(SWS, T0, 15)
        elif what == "pbx":
            A(f"s_lshl_b32 s{T0}, s{sHQ}, 2\ns_and_b32 s{T2}, s{sRL1}, 3\ns_add_u32 s{T0}, s{T0}, s{T2}\ns_mul_i32 s{T0}, s{T0}, {8*PSTR}\ns_lshl_b32 s{T2}, s{sPX}, 7\ns_add_u32 s{T0}, s{T0}, s{T2}\ns_add_u32 s{T0}, s{T0}, {WS_PB + 2*1024}\nv_mul_u32_u24 v{VA}, {PSTR}, v0")
            touch(SWS, T0, 8, VA)
        elif what == "pb1":
            A(f"s_lshl_b32 s{T0}, s{sHQ}, 2\ns_and_b32 s{T2}, s{sRL1}, 3\ns_add_u32 s{T0}, s{T0}, s{T2}\ns_lshl_b32 s{T0}, s{T0}, 3\ns_add_u32 s{T0}, s{T0}, s{sPX}\ns_mul_i32 s{T0}, s{T0}, {PSTR}\ns_add_u32 s{T0}, s{T0}, {WS_PB + 2*1024}")
            touch(SWS, T0, 1)
        elif what in ("o", "h", "h1"):
            st = {"o": CFG.ost, "h": CFG.hst, "h1": CFG.h1st}[what]
            base = {"o": WS_O, "h": WS_H, "h1": WS_H1}[what]
            A(f"s_mul_i32 s{T0}, s{sXCD}, {8*st}\ns_mul_i32 s{T1}, s{sJ}, {st//4}\ns_add_u32 s{T0}, s{T0}, s{T1}\ns_add_u32 s{T0}, s{T0}, {base}")
            touch(SWS, T0, st // 512)
        elif what == "st":
            A(f"s_lshl_b32 s{T0}, s{sXCD}, 15\ns_lshl_b32 s{T1}, s{sJ}, 10\ns_add_u32 s{T0}, s{T0}, s{T1}\ns_add_u32 s{T0}, s{T0}, {WS_ST}")
            touch(SWS, T0, 8)
        elif what == "wait":
            A("s_waitcnt vmcnt(0)")
        elif what.startswith("nop"):
            for _ in range(int(what[3:])): A("s_nop 15")
        else:
            raise ValueError(what)
    for w_ in CFG.tl.split(","):
        if w_: do(w_)
    g1 = [g for g in A.groups if g]
    A.groups = [[]]
    for w_ in CFG.t2.split(","):
        if w_: do(w_)
    g2 = [g for g in A.groups if g]
    A = Aout
    pace = [int(x) for x in CFG.pace.split(",")]
    def emit(n):
        for _ in range(n):
            if g1:
                for t in g1.pop(0): A(t)
    emit(pace[0])
    for c in range(8):
        A("s_barrier")
        emit(pace[c+1])
    emit(99)
    hstamp(A, 5)
    A("s_branch L_HEND")

    A.label("L_REG")
    ctl_setup(A, 11, 10, 12)
    A("v_mov_b32 v12, 0\nv_mov_b32 v13, 0\nv_mov_b32 v14, 0\nv_mov_b32 v15, 0\ns_mov_b64 exec, 3")
    for i in range(4):
        A(f"ds_write_b128 v11, v[12:15] offset:{16*i}")
    A(f"s_mov_b64 exec, -1\nv_mov_b32 v6, {QW[0]}")
    A("s_waitcnt lgkmcnt(0)")
    load_nonce(A)
    srd(A, SWS, PTR(11), WS_SIZE)
    A("v_mov_b32 v21, 0")
    sXCC, sRBL = T6, T7
    A(f"s_getreg_b32 s{sXCC}, hwreg(HW_REG_XCC_ID)\ns_and_b32 s{sXCC}, s{sXCC}, 7\ns_mov_b32 s{sRBL}, s{sRL1}")
    fin_nonce(A)
    A(f"s_or_b32 s{T5}, s{sNONCE}, s{sXCC}\nv_mov_b32 v22, s{T5}\ns_lshl_b32 s{T4}, s{sXCD}, 7\ns_add_u32 s{T4}, s{T4}, {WS_REG}\ns_lshl_b32 s{T0}, s{sJ}, 2\ns_add_u32 s{T0}, s{T0}, s{T4}\ns_mov_b64 exec, 1")
    A(f"buffer_store_dword v22, v21, {s(SWS,4)}, s{T0} offen sc1\ns_mov_b64 exec, -1")
    if CFG.kvm:
        A(f"s_lshl_b32 s7, s{sHQ}, 2\ns_and_b32 s{T0}, s{sRBL}, 3\ns_add_u32 s7, s7, s{T0}\ns_mul_i32 s7, s7, {KVSTR}\ns_add_u32 s7, s7, {WS_KVS}")
        A(f"s_cmp_lg_u32 s{sPX}, 0\ns_cbranch_scc1 S_NOZ\ns_cmp_ge_u32 s{sRBL}, 4\ns_cbranch_scc1 S_NOZ")
        A(f"buffer_store_dwordx4 v[12:15], v{VL16}, {s(SWS,4)}, s7 offen sc1\nbuffer_store_dwordx4 v[12:15], v{VL16}, {s(SWS,4)}, s7 offen offset:1024 sc1\ns_mov_b64 exec, 0xff")
        A(f"buffer_store_dwordx4 v[12:15], v{VL16}, {s(SWS,4)}, s7 offen offset:2048 sc1\nv_mov_b32 v12, s{sNONCE}\ns_waitcnt vmcnt(0)")
        A(f"buffer_store_dwordx4 v[12:15], v{VL16}, {s(SWS,4)}, s7 offen offset:2176 sc1\ns_mov_b64 exec, -1")
        A.label("S_NOZ")
    A("v_lshlrev_b32 v20, 2, v0\nv_and_b32 v20, 127, v20")
    n1 = CFG.regat
    A("\n".join(["s_barrier"] * n1))
    A(f"buffer_load_dword v24, v20, {s(SWS,4)}, s{T4} offen sc1")
    A("\n".join(["s_barrier"] * (8 - n1)))
    A.label("S_RP")
    A(f"s_waitcnt vmcnt(0)\nv_and_b32 v25, -8, v24\nv_cmp_ne_u32 vcc, s{sNONCE}, v25\ns_cbranch_vccz S_ROK")
    A(f"buffer_load_dword v24, v20, {s(SWS,4)}, s{T4} offen sc1\ns_sub_u32 s{sSPIN}, s{sSPIN}, 1\ns_cmp_lt_i32 s{sSPIN}, 0\ns_cbranch_scc0 S_RP")
    A.label("S_ROK")
    A(f"s_waitcnt vmcnt(0)\nv_cmp_ne_u32 vcc, s{T5}, v24\ns_cmp_eq_u64 vcc, 0\ns_cselect_b32 s{sFAST}, {1 if CFG.fast else 0}, 0")
    A(f"v_mov_b32 v23, s{sFAST}\ns_mov_b64 exec, 3\nds_write_b32 v11, v23 offset:{C_NON+4}\ns_mov_b64 exec, -1")
    G, TMP, L = 32, 64, 64
    NSRC = 8 if CFG.m42 else 4
    A(f"s_cmp_lt_u32 s{sRBL}, 4\ns_cbranch_scc1 S_SERVE")
    ctl_add(A, 11, 10, C_QW)
    ctl_add(A, 11, 10, C_QT)
    A("s_branch L_HEND")
    A.label("S_SERVE")
    pair_gather(A, 9, 7, sRBL)
    A(f"s_lshl_b32 s{T4}, s{sGB}, 2\ns_add_u32 s{T4}, s{T4}, s{sRBL}\ns_mul_i32 s{T4}, s{T4}, {PSTR}\ns_add_u32 s{T4}, s{T4}, {WS_PA}")
    for k in range(1, NSRC):
        A(f"s_xor_b32 s{T0}, s{sRBL}, {k}\ns_mul_i32 s{T0}, s{T0}, {4*PSTR}\ns_add_u32 s{8+k}, s{T4}, s{T0}")
    A(f"s_lshl_b32 s{T0}, s{sHQ}, 2\ns_add_u32 s{T0}, s{T0}, s{sRBL}\ns_lshl_b32 s{T0}, s{T0}, 3\ns_add_u32 s{T0}, s{T0}, s{sPX}\ns_mul_i32 s{T0}, s{T0}, {PSTR}\ns_add_u32 s8, s{T0}, {WS_PB}")
    if CFG.kvm:
        A.label("S_ZP")
        A(f"buffer_load_dword v24, v21, {s(SWS,4)}, s7 offen offset:2176 sc1\ns_sub_u32 s{sSPIN}, s{sSPIN}, 1\ns_cmp_lt_i32 s{sSPIN}, 0\ns_cbranch_scc1 S_ZOK")
        A(f"s_waitcnt vmcnt(0)\nv_readfirstlane_b32 s{T0}, v24\ns_sub_u32 s{T0}, s{T0}, s{sNONCE}\ns_cmp_ge_u32 s{T0}, 8\ns_cbranch_scc1 S_ZP")
        A.label("S_ZOK")
        A("v_lshlrev_b32 v6, 2, v0")
    A("s_setprio 3")
    ctl_wait(A, 11, 26, C_E2, 4, 1)
    pair_gather2(A, G, TMP, 9, 7)
    ctl_add(A, 11, 10, C_QW)
    def level(srcs, pre):
        loads = []; tags = []
        for k, sr in enumerate(srcs):
            for g in range(3):
                loads.append(f"buffer_load_dwordx4 {v(L+12*k+4*g,4)}, v{VL16}, {s(SWS,4)}, s{sr} offen offset:{g*1024} sc1")
                tags.append(L+12*k+4*g+3)
        if pre:
            A("s_mov_b64 exec, 1")
            tagged_poll(A, loads[2::3], tags[2::3], CFG.s1sleep)
            A("s_mov_b64 exec, -1")
            hstamp(A, pre)
        tagged_poll(A, loads, tags)
        for k in range(len(srcs)):
            for r in range(0, 12, 2):
                A(f"v_pk_add_f32 {v(G+r,2)}, {v(G+r,2)}, {v(L+12*k+r,2)}")
    level(list(range(9, 8 + NSRC)), 1 if (CFG.prepoll1 and not CFG.pa_fast) else 0)
    hstamp(A, 6)
    if CFG.kvm:
        for i in range(9):
            if i == 8: A("s_mov_b64 exec, 0xffffffff")
            A(f"buffer_atomic_add_f32 v{gval(G,i)}, v6, {s(SWS,4)}, s7 offen offset:{i*256}")
        A(f"s_mov_b64 exec, {-1 if CFG.fdst else 0xff}\nv_mov_b32 v15, s{sNONCE}\ns_waitcnt vmcnt(0)")
        hstamp(A, 7)
        A(f"buffer_store_dwordx4 v[12:15], v{VL16}, {s(SWS,4)}, s8 offen offset:2048 sc1\ns_mov_b64 exec, -1")
    else:
        set_tags(A, G, 3)
        for g in range(3):
            A(f"buffer_store_dwordx4 {v(G+4*g,4)}, v{VL16}, {s(SWS,4)}, s8 offen offset:{g*1024} sc1")
    if CFG.srvt:
        A("v_lshlrev_b32 v6, 7, v0")
        for bit, st, base in ((1, CFG.ost, WS_O), (2, CFG.hst, WS_H)):
            if CFG.srvt & bit:
                A(f"s_mul_i32 s{T0}, s{sXCD}, {8*st}\ns_mul_i32 s{T1}, s{sJ}, {st//4}\ns_add_u32 s{T0}, s{T0}, s{T1}\ns_add_u32 s{T0}, s{T0}, {base}")
                A(f"buffer_load_dword v250, v6, {s(SWS,4)}, s{T0} offen")
        if CFG.srvt & 2:
            A(f"s_lshl_b32 s{T0}, s{sXCD}, 15\ns_lshl_b32 s{T1}, s{sJ}, 10\ns_add_u32 s{T0}, s{T0}, s{T1}\ns_add_u32 s{T0}, s{T0}, {WS_ST}\ns_mov_b64 exec, 0xff")
            A(f"buffer_load_dword v250, v6, {s(SWS,4)}, s{T0} offen\ns_mov_b64 exec, -1")
    if CFG.w2t == 2:
        srd(A, ST1, PTR(7), 1376*1024)
        A(f"s_mul_i32 s{T0}, s{sJ}, 44032\nv_lshlrev_b32 v6, 7, v0\ns_mov_b64 exec, 1")
        for k in range(7):
            A(f"buffer_load_dwordx4 {v(L+4*k,4)}, v{VL16}, {s(SWS,4)}, s{9+k} offen offset:2048 sc1")
        A(f"s_waitcnt vmcnt(0)\nv_xor_b32 v62, s{sNONCE}, v{L+3}")
        for k in range(1, 7):
            A(f"v_xor_b32 v63, s{sNONCE}, v{L+4*k+3}\nv_or_b32 v62, v62, v63")
        A("v_cmp_ne_u32 vcc, 0, v62\ns_mov_b64 exec, -1\ns_cbranch_vccz S_NOW2")
        for k in range(6):
            if k == 5: A("s_mov_b64 exec, 0xffffff")
            A(f"buffer_load_dword v250, v6, {s(ST1,4)}, s{T0} offen\ns_add_u32 s{T0}, s{T0}, 8192")
        A("s_mov_b64 exec, -1")
        A.label("S_NOW2")
    hstamp(A, 8)
    if CFG.dwait:
        A("s_waitcnt vmcnt(0)")
        ctl_add(A, 11, 10, C_QT)
    A.label("L_HEND")
    stamp_out(A, 4)
    A("s_endpgm")

def reduce4(A, pfx, ACCB, tmp, pre=(), post=()):
    aw = tmp + 64
    A(f"s_lshl_b32 s{T0}, s{sW}, 14\nv_add_u32 v{aw}, s{T0}, v{VL16}")
    for k in range(1, 4):
        A(f"s_xor_b32 s{T0}, s{sW}, {k}\ns_lshl_b32 s{T0}, s{T0}, 14\nv_add_u32 v{aw+k}, s{T0}, v{VL16}")
    for j in (1, 2, 3):
        for q in range(4):
            A(f"ds_write_b128 v{aw}, {v(ACCB+16*j+4*q,4)} offset:{j*4096+q*1024}")
            if pre: A(pre[0]); pre = pre[1:]
    A("s_waitcnt lgkmcnt(0)\ns_barrier")
    for k in range(1, 4):
        for q in range(4):
            A(f"ds_read_b128 {v(tmp+16*k+4*q,4)}, v{aw+k} offset:{k*4096+q*1024}")
    late = list(pre) + list(post)
    for k in range(1, 4):
        for q in range(4):
            if late: A(late.pop(0))
            A(f"s_waitcnt lgkmcnt({11 - 4*(k-1) - q})")
            for r in range(4*q, 4*q+4, 2):
                A(f"v_pk_add_f32 {v(ACCB+r,2)}, {v(ACCB+r,2)}, {v(tmp+16*k+r,2)}")
    for o in late: A(o)
    return ACCB

def finish_stats(A, sx, sxx, nm, rstd, t):
    A(f"v_mul_f32 v{nm}, s{sK1}, v{sx}")
    A(f"v_mul_f32 v{t}, v{nm}, v{nm}")
    A(f"v_fma_f32 v{t}, v{sxx}, s{sK1}, -v{t}")
    A(f"v_max_f32 v{t}, 0, v{t}")
    A(f"v_add_f32 v{t}, s{sK2}, v{t}")
    A(f"v_rsq_f32 v{rstd}, v{t}")
    A(f"v_sub_f32 v{nm}, 0, v{nm}")

def compute(A):
    A(f"s_and_b32 s{sRH}, s{sW}, 1\ns_lshr_b32 s{sHH}, s{sW}, 1")
    ROW, HALF = 1, 2
    XA, WA, QA = 8, 12, 16
    SEL = 20
    ONES, SXX = 5, 6
    RSA, CSK, CSV = 24, 28, 32
    FX = [36, 40]; FW = [44, 52]
    AK, AV = 64, 80
    ID, PW = 112, 120
    A(f"v_and_b32 v{ROW}, 31, v0\nv_lshrrev_b32 v{HALF}, 5, v0")
    A(f"v_lshrrev_b32 v3, 1, v{ROW}\nv_and_b32 v3, 7, v3\nv_xor_b32 v3, v3, v{HALF}\nv_lshlrev_b32 v3, 4, v3")
    A(f"v_lshl_add_u32 v3, v{ROW}, 7, v3\ns_lshl_b32 s{T0}, s{sRH}, 12\nv_add_u32 v3, s{T0}, v3")
    for k in range(4):
        A(f"s_xor_b32 s{T0}, s{sW}, {k}\ns_lshl_b32 s{T0}, s{T0}, 5\nv_xor_b32 v{XA+k}, s{T0}, v3")
    A(f"v_bfe_u32 v3, v0, 2, 2\nv_lshlrev_b32 v7, 7, v3\nv_lshrrev_b32 v3, 1, v3\nv_xor_b32 v3, s{sHH}, v3\nv_lshl_add_u32 v7, v3, 6, v7")
    A(f"v_bfe_u32 v3, v0, 4, 1\nv_lshl_add_u32 v7, v3, 5, v7\nv_and_b32 v3, 3, v0\nv_lshl_add_u32 v7, v3, 3, v7\nv_add_u32 v7, {RING}, v7")
    A(f"v_lshl_add_u32 v60, v{HALF}, 11, v7\nv_lshl_add_u32 v61, v{HALF}, 10, v7")
    for k in range(4):
        A(f"s_xor_b32 s{T0}, s{sW}, {k}\ns_lshl_b32 s{T1}, s{T0}, 12\nv_add_u32 v{WA+k}, s{T1}, v60\ns_lshl_b32 s{T1}, s{T0}, 11\nv_add_u32 v{QA+k}, s{T1}, v61")
    A(f"v_mov_b32 v{ONES}, 0x3f803f80\nv_mov_b32 v{SXX}, 0")
    A(f"v_lshrrev_b32 v3, 2, v0\nv_xor_b32 v3, v3, v0\nv_and_b32 v3, 4, v3\nv_and_b32 v7, 3, v0\nv_or_b32 v3, v3, v7\nv_cmp_eq_u32 vcc, 0, v3")
    for i in range(4):
        A(f"v_cndmask_b32 v{SEL+i}, 0, v{ONES}, vcc")
    A(f"s_mov_b32 s{sK1}, {fbits(1/512)}\ns_mov_b32 s{sK2}, {fbits(1e-5)}\ns_mov_b32 s{sK3}, {fbits(LOG2E)}")
    A(f"v_and_b32 v60, 1, v0\nv_cmp_eq_u32 vcc, 1, v60\nv_mov_b32 v61, 0x3f80\nv_mov_b32 v62, 0x3f800000\nv_cndmask_b32 v61, v61, v62, vcc")
    A(f"v_bfe_u32 v60, v0, 2, 1\nv_cmp_eq_u32 vcc, v60, v{HALF}\nv_cndmask_b32 v61, 0, v61, vcc")
    A("v_bfe_u32 v60, v0, 3, 2\nv_lshlrev_b32 v60, 1, v60\nv_bfe_u32 v62, v0, 1, 1\nv_or_b32 v60, v60, v62")
    for r in range(8):
        A(f"v_cmp_eq_u32 vcc, {r}, v60\nv_cndmask_b32 v{ID+r}, 0, v61, vcc")
    A(f"v_bfe_u32 v60, v0, 2, 2\nv_lshl_add_u32 v60, v{HALF}, 2, v60\nv_lshlrev_b32 v60, 5, v60\nv_and_b32 v61, 3, v0\nv_lshl_add_u32 v60, v61, 3, v60")
    A(f"s_lshl_b32 s{T0}, s{sW}, 13\ns_add_u32 s{T0}, s{T0}, {RL}\nv_add_u32 v60, s{T0}, v60")
    A("v_bfe_u32 v61, v0, 4, 1\nv_mul_u32_u24 v61, 0x8000, v61\nv_lshl_or_b32 v61, v61, 16, v61")
    ctl_setup(A, 110, 111, 62)
    common_srds(A)

    def reads(sq, sg_, b):
        A(f"ds_read_b128 {v(FX[b],4)}, v{XA+sg_} offset:{XL + sq*8192}")
        for sg in range(2):
            for t in range(2):
                A(f"ds_read_b64_tr_b16 {v(FW[b]+4*sg+2*t,2)}, v{WA+sg_} offset:{(sq&3)*16384 + sg*1024 + t*512}")
    for c in range(8):
        A("s_barrier")
        if c in (2, 4): stamp(A, f"B{c}")
        if c == 0:
            stamp(A, "B0")
            for e in range(2):
                for t in range(2):
                    A(f"ds_read_b64_tr_b16 {v(PW+4*e+2*t,2)}, v60 offset:{e*512+t*256}")
        reads(c, 0, 0)
        for k in range(4):
            b = k & 1
            if k < 3: reads(c, k + 1, b ^ 1)
            A(f"s_waitcnt lgkmcnt({5 if k < 3 else 0})")
            if c == 0 and k == 0:
                for i in range(8):
                    A(f"v_xor_b32 v{PW+i}, v{PW+i}, v61")
            first = (c == 0 and k == 0)
            X = FX[b]; W = FW[b]
            mfma(A, AK, W, X, None if first else AK)
            if k in (0, 3):
                m16(A, CSK, SEL, W, None if first else CSK)
            else:
                m16(A, RSA, SEL, X, None if (c == 0 and k == 1) else RSA)
            mfma(A, AV, X, W+4, None if first else AV)
            if k in (0, 3):
                m16(A, CSV, SEL, W+4, None if first else CSV)
            else:
                for i in range(4):
                    A(f"v_dot2c_f32_bf16 v{SXX}, v{X+i}, v{X+i}")
    stamp(A, "loop")
    A(f"s_xor_b32 s{T0}, s{sW}, 1\ns_lshl_b32 s{T0}, s{T0}, 13\ns_add_u32 s{T0}, s{T0}, {RL+4096}\nv_lshl_add_u32 v36, v0, 2, s{T0}")
    A(f"s_xor_b32 s{T0}, s{sW}, 2\ns_lshl_b32 s{T0}, s{T0}, 13\ns_add_u32 s{T0}, s{T0}, {RL+4096}\nv_lshl_add_u32 v37, v0, 2, s{T0}")
    A(f"s_lshl_b32 s{T0}, s{sW}, 13\ns_add_u32 s{T0}, s{T0}, {RL+4096}\nv_lshl_add_u32 v38, v0, 2, s{T0}")
    A(f"ds_write_b32 v37, v{SXX} offset:768")
    A(f"ds_write_b32 v37, v{RSA} offset:512")
    A(f"ds_write_b32 v36, v{CSK}")
    A(f"ds_write_b32 v36, v{CSV} offset:256")
    A(f"s_add_u32 s{T0}, s{T0}, 1024\nv_lshl_add_u32 v39, v{ROW}, 2, s{T0}\nv_lshl_add_u32 v40, v{HALF}, 4, s{T0}")
    ctl_add(A, 110, 111, C_E1)
    ctl_wait(A, 110, 62, C_E1, 4)
    stamp(A, "E1")
    A(f"ds_read2st64_b32 v[44:45], v38 offset0:2 offset1:3")
    A(f"ds_read2st64_b32 v[46:47], v38 offset0:0 offset1:1")
    A("v_cmp_gt_u32 vcc, 32, v0")
    A("s_waitcnt lgkmcnt(1)")
    NM, RSTD = 48, 49
    A(f"v_add_f32 v{RSA}, v{RSA}, v44\nv_add_f32 v{SXX}, v{SXX}, v45\nv_mov_b32 v50, v{SXX}")
    A(f"v_permlane32_swap_b32 v{SXX}, v50\nv_add_f32 v{SXX}, v{SXX}, v50")
    finish_stats(A, RSA, SXX, NM, RSTD, 50)
    A(f"ds_write_b32 v39, v{RSTD}")
    NF = 104
    A(f"v_cvt_pk_bf16_f32 v{NF+1}, v{NM}, 0\nv_lshlrev_b32 v50, 16, v{NF+1}\nv_sub_f32 v50, v{NM}, v50\nv_cvt_pk_bf16_f32 v{NF}, v{NM}, v50")
    A(f"v_mov_b32 v{NF+2}, 0\nv_mov_b32 v{NF+3}, 0")
    RS = 128
    A("s_waitcnt lgkmcnt(0)")
    for q in range(4):
        A(f"ds_read_b128 {v(RS+4*q,4)}, v40 offset:{q*32}")
    def cs_frag(cs, F):
        A(f"v_cndmask_b32 v{cs}, 0, v{cs}, vcc")
        A(f"v_cvt_pk_bf16_f32 v{F}, v{cs}, v{cs}\nv_lshlrev_b32 v50, 16, v{F}\nv_sub_f32 v50, v{cs}, v50")
        A(f"v_cvt_pk_bf16_f32 v{F+1}, v50, 0\nv_mov_b32 v{F+2}, 0\nv_mov_b32 v{F+3}, 0")
    A(f"v_add_f32 v{CSK}, v{CSK}, v46")
    cs_frag(CSK, 52)
    mfma(A, AK, 52, NF, AK)
    A(f"v_add_f32 v{CSV}, v{CSV}, v47")
    cs_frag(CSV, 56)
    mfma(A, AV, NF, 56, AV)
    CK = 108
    A(f"v_mul_f32 v{CK}, s{sK3}, v{RSTD}")
    def scale_pack(acc, outb):
        for i in range(0, 16, 2):
            A(f"v_pk_mul_f32 {v(acc+i,2)}, {v(acc+i,2)}, {v(CK,2)} op_sel_hi:[1,0]")
        for i in range(8):
            A(f"v_cvt_pk_bf16_f32 v{outb+i}, v{acc+2*i}, v{acc+2*i+1}")
    KB = 36
    P = [144, 160]
    scale_pack(AK, KB)
    mfma(A, P[0], PW, KB)
    mfma(A, P[1], PW+4, KB+4)
    A("s_waitcnt lgkmcnt(0)")
    VB, V0, V1 = 44, 52, 176
    for i in range(0, 16, 2):
        A(f"v_pk_mul_f32 {v(AV+i,2)}, {v(AV+i,2)}, {v(RS+i,2)}")
    for i in range(8):
        A(f"v_cvt_pk_bf16_f32 v{VB+i}, v{AV+2*i}, v{AV+2*i+1}")
    A("v_and_b32 v60, 16, v0\nv_cmp_eq_u32 vcc, 0, v60")
    for i in range(8):
        A(f"v_cndmask_b32 v{V0+i}, v{ONES}, v{VB+i}, vcc")
    for i in range(8):
        A(f"v_cndmask_b32 v{V1+i}, v{VB+i}, v{ONES}, vcc")
    TM = 184; PK = [192, 200]; T = [64, 80]; TB = [36, 44]; KV = [208, 224]
    softmax_tile(A, P[0], PK[0], TM)
    stamp(A, "sm0")
    mfma(A, T[0], PK[0], ID); mfma(A, T[0], PK[0]+4, ID+4, T[0])
    softmax_tile(A, P[1], PK[1], TM)
    stamp(A, "sm1")
    mfma(A, T[1], PK[1], ID); mfma(A, T[1], PK[1]+4, ID+4, T[1])
    A(f"s_lshl_b32 s{T0}, s{sW}, 13\ns_add_u32 s{T0}, s{T0}, {RL}\nv_add_u32 v60, s{T0}, v{VL16}")
    if CFG.pa_fast:
        A(f"ds_read_b32 v62, v110 offset:{C_NON+4}\ns_waitcnt lgkmcnt(0)\nv_readfirstlane_b32 s{sFAST}, v62")
    else:
        A(f"s_mov_b32 s{sFAST}, 0")
    pair_gather(A, 61, 101, sW)
    for e in range(2):
        for i in range(8):
            A(f"v_cvt_pk_bf16_f32 v{TB[e]+i}, v{T[e]+2*i}, v{T[e]+2*i+1}")
        Ve = V0 if e == 0 else V1
        mfma(A, KV[e], TB[e], Ve); mfma(A, KV[e], TB[e]+4, Ve+4, KV[e])
    stamp(A, "smdone")
    A(f"s_mov_b32 s{T6}, s{sRL1}\ns_add_u32 s{T0}, s{sGB}, s{T6}\ns_lshl_b32 s{T0}, s{T0}, 2\ns_add_u32 s{T0}, s{T0}, s{sW}\ns_mul_i32 s{T7}, s{T0}, {PSTR}\ns_add_u32 s{T7}, s{T7}, {WS_PA}")
    G = 64
    set_tags(A, G, 3)
    for e in range(2):
        m_ = GMASK if e == 0 else "0xffff0001"
        A(f"s_mov_b32 exec_lo, {m_}\ns_mov_b32 exec_hi, {m_}")
        for q in range(4):
            A(f"ds_write_b128 v60, {v(KV[e]+4*q,4)} offset:{e*4096+q*1024}")
    stamp(A, "kvw")
    ctl_add(A, 110, 111, C_E2)
    if CFG.stamp == 7:
        A("s_waitcnt lgkmcnt(0)")
        stamp(A, "kvadd")
    ctl_wait(A, 110, 62, C_E2, 4)
    stamp(A, "E2")
    A(f"s_cmp_eq_u32 s{T6}, s{sW}\ns_cbranch_scc1 C_NOPA")
    pair_gather2(A, G, 144, 61, 101)
    stamp(A, "pag")
    hstore(A, [f"buffer_store_dwordx4 {v(G+4*g,4)}, v{VL16}, {s(SWS,4)}, s{T7} offen offset:{g*1024}" for g in range(3)], not CFG.pa_fast)
    A.label("C_NOPA")
    stamp(A, "atom")
    ctl_wait(A, 110, 62, C_WQ, 2)
    AQ = 128; CSQ = 28
    def qreads(n, b):
        sq, k = n >> 2, n & 3
        A(f"ds_read_b128 {v(FX[b],4)}, v{XA+k} offset:{XL + sq*8192}")
        for t in range(2):
            A(f"ds_read_b64_tr_b16 {v(FW[b]+2*t,2)}, v{QA+k} offset:{sq*8192 + t*512}")
    FW[0], FW[1] = 44, 48
    FX3 = [36, 40, 52]; FW3 = [44, 48, 56]
    def qreads3(n):
        sq, k = n >> 2, n & 3
        b = n % 3
        A(f"ds_read_b128 {v(FX3[b],4)}, v{XA+k} offset:{XL + sq*8192}")
        for t in range(2):
            A(f"ds_read_b64_tr_b16 {v(FW3[b]+2*t,2)}, v{QA+k} offset:{sq*8192 + t*512}")
    qreads3(0); qreads3(1)
    for n in range(32):
        if n + 2 < 32: qreads3(n + 2)
        A(f"s_waitcnt lgkmcnt({3*min(2, 31-n)})")
        mfma(A, AQ, FW3[n % 3], FX3[n % 3], None if n == 0 else AQ)
        m16(A, CSQ, SEL, FW3[n % 3], None if n == 0 else CSQ)
    stamp(A, "qgemm")
    ctl_add(A, 110, 111, C_QW)
    A("v_cmp_gt_u32 vcc, 32, v0")
    cs_frag(CSQ, 52)
    mfma(A, AQ, 52, NF, AQ)
    QB = 36
    scale_pack(AQ, QB)
    mfma(A, P[0], PW, QB)
    mfma(A, P[1], PW+4, QB+4)
    PHQ = 192
    TA0, TA1, VXR = 12, 13, 14
    A(f"v_bfe_u32 v3, v0, 2, 2\nv_lshl_add_u32 v60, v{HALF}, 2, v3\nv_lshlrev_b32 v{TA0}, 7, v60\nv_lshrrev_b32 v3, 1, v3\nv_lshl_add_u32 v{TA0}, v3, 6, v{TA0}")
    A(f"v_bfe_u32 v3, v0, 4, 1\nv_lshl_add_u32 v{TA0}, v3, 5, v{TA0}\nv_and_b32 v3, 3, v0\nv_lshl_add_u32 v{TA0}, v3, 3, v{TA0}")
    A(f"s_lshl_b32 s{T0}, s{sW}, 14\nv_add_u32 v{TA0}, s{T0}, v{TA0}\ns_lshl_b32 s{T0}, s{sHH}, 6\nv_xor_b32 v{TA0}, s{T0}, v{TA0}\nv_xor_b32 v{TA1}, 64, v{TA0}")
    A(f"v_lshlrev_b32 v{VXR}, 10, v{ROW}\nv_lshl_add_u32 v{VXR}, v{HALF}, 3, v{VXR}")
    softmax_tile(A, P[0], PHQ, TM)
    XR = 16
    A(f"s_lshl_b32 s{T0}, s{sRB}, 16\ns_lshl_b32 s{T1}, s{sRH}, 15\ns_add_u32 s{T0}, s{T0}, s{T1}\ns_lshl_b32 s{T1}, s{sC8}, 7\ns_add_u32 s{T0}, s{T0}, s{T1}\ns_lshl_b32 s{T1}, s{sHH}, 6\ns_add_u32 s{T0}, s{T0}, s{T1}")
    for q in range(4):
        A(f"buffer_load_dwordx2 {v(XR+2*q,2)}, v{VXR}, {s(SX_,4)}, s{T0} offen offset:{q*16}")
    softmax_tile(A, P[1], PHQ+8, TM)
    stamp(A, "arrv")
    if CFG.kvm:
        NX = 4 if CFG.m42 else 8
        A(f"s_lshl_b32 s{T6}, s{sHQ}, 2\ns_lshl_b32 s{T0}, s{sHH}, 1\ns_add_u32 s{T6}, s{T6}, s{T0}\ns_mul_i32 s{T5}, s{T6}, {KVSTR}\ns_add_u32 s{T5}, s{T5}, {WS_KVS}")
        A(f"v_lshlrev_b32 v3, 4, v{ROW}\nv_lshl_add_u32 v3, v{HALF}, 8, v3\nv_lshlrev_b32 v60, 4, v{HALF}\nv_add_u32 v60, 2048, v60\nv_cmp_gt_u32 vcc, 16, v{ROW}")
        for q in range(4):
            A(f"v_add_u32 v61, {q*512}, v3\nv_add_u32 v62, {q*32}, v60\nv_cndmask_b32 v{8+q}, v62, v61, vcc")
        A(f"ds_read_b32 v62, v110 offset:{C_NON+4}\ns_waitcnt lgkmcnt(0)\nv_readfirstlane_b32 s{sFAST}, v62")
        ctl_add(A, 110, 111, C_SV)
        msk_ = "0xffff" if NX == 8 else "0xf0f"
        A(f"v_and_b32 v60, 15, v0\nv_mul_u32_u24 v60, {PSTR}, v60\nv_add_u32 v60, 2060, v60\ns_mul_i32 s{T1}, s{T6}, {8*PSTR}\ns_add_u32 s{T1}, s{T1}, {WS_PB}\ns_lshl_b32 s{T0}, s{sPX}, {7 if CFG.fdst else 0}\ns_and_b32 s{T0}, s{T0}, {0x380 if CFG.fdst else 0}\ns_add_u32 s{T1}, s{T1}, s{T0}\ns_mov_b64 exec, {msk_}\ns_mov_b64 s[{sMASK}:{sMASK+1}], {msk_}")
        poll(A, 61, 60, f"s{T1}", f"s{sNONCE}", s(sMASK, 2), CFG.psleep)
        A("s_mov_b64 exec, -1")
        stamp(A, "kvld")
        KVR = 160
        for e in range(2):
            if e: A(f"s_add_u32 s{T5}, s{T5}, {KVSTR}")
            for q in range(4):
                A(f"buffer_load_dwordx4 {v(KVR+16*e+4*q,4)}, v{8+q}, {s(SWS,4)}, s{T5} offen sc1")
    else:
        NX = 4 if CFG.m42 else 8
        A(f"s_lshl_b32 s{T6}, s{sHQ}, 2\ns_add_u32 s{T5}, s{T6}, s{sW}\ns_mul_i32 s{T5}, s{T5}, {8*PSTR}\ns_add_u32 s{T5}, s{T5}, {WS_PB}")
        A(f"s_lshl_b32 s{T0}, s{sHH}, 1\ns_add_u32 s{T6}, s{T6}, s{T0}\ns_lshl_b32 s{T1}, s{sRL1}, {0 if CFG.m42 else 1}")
        for k in range(NX):
            A(f"s_add_u32 s{T0}, s{T1}, {k}\ns_and_b32 s{T0}, s{T0}, {NX-1}\ns_mul_i32 s{T0}, s{T0}, {PSTR}\ns_add_u32 s{8+k}, s{T0}, s{T5}")
        L = 64
        SCR = 65536 + 7*12288
        A(f"s_mul_i32 s{T0}, s{sHH}, 5504\ns_add_u32 s{T0}, s{T0}, {SCR}\ns_mul_i32 s{T1}, s{sRH}, 2304\ns_add_u32 s{T1}, s{T1}, s{T0}\nv_lshl_add_u32 v59, v0, 2, s{T1}")
        A(f"v_lshlrev_b32 v3, 4, v{ROW}\nv_lshl_add_u32 v3, v{HALF}, 8, v3\nv_lshlrev_b32 v60, 4, v{HALF}\nv_add_u32 v60, 2048, v60\nv_cmp_gt_u32 vcc, 16, v{ROW}")
        for q in range(4):
            A(f"v_add_u32 v61, {q*512}, v3\nv_add_u32 v62, {q*32}, v60\nv_cndmask_b32 v{8+q}, v62, v61, vcc\nv_add_u32 v{8+q}, s{T0}, v{8+q}")
        A(f"s_lshl_b32 s{T0}, s{sHH}, 2\nv_add_u32 v58, s{T0}, v110\nv_mov_b32 v56, v110\nv_mov_b32 v57, 1")
        ctl_wait(A, 110, 62, C_QW, 5)
        if CFG.ddw and not CFG.w1c: ctl_wait(A, 110, 62, C_FULL, 2, 2)
        A(f"ds_read_b32 v62, v110 offset:{C_NON+4}\ns_waitcnt lgkmcnt(0)\nv_readfirstlane_b32 s{sFAST}, v62")
        loads = []; tags = []
        for k in range(NX):
            for g in range(3):
                loads.append(f"buffer_load_dwordx4 {v(L+12*k+4*g,4)}, v{VL16}, {s(SWS,4)}, s{8+k} offen offset:{g*1024} sc1")
                tags.append(L+12*k+4*g+3)
        A("s_mov_b64 exec, 1")
        tagged_poll(A, loads[2::3], tags[2::3], CFG.psleep)
        A("s_mov_b64 exec, -1")
        stamp(A, "kvld")
        tagged_poll(A, loads, tags)
        for k in range(1, NX):
            for r in range(0, 12, 2):
                A(f"v_pk_add_f32 {v(L+r,2)}, {v(L+r,2)}, {v(L+12*k+r,2)}")
        for i in range(9):
            A(f"ds_write_b32 v59, v{gval(L,i)} offset:{i*256}")
        ctl_add(A, 58, 57, C_KV)
        ctl_wait(A, 58, 62, C_KV, 2)
        KVR = 160
        for e in range(2):
            for q in range(4):
                A(f"ds_read_b128 {v(KVR+16*e+4*q,4)}, v{8+q} offset:{e*2304}")
        stamp(A, "syncA")
    A(f"s_mov_b32 s{sK3}, {fbits(1e-6)}")
    A(f"s_lshl_b32 s{T0}, s{sRB1}, 1\ns_add_u32 s{T0}, s{T0}, s{sRH}\ns_mul_i32 s{T0}, s{T0}, {CFG.ost}\ns_lshl_b32 s{T4}, s{T6}, 10\ns_add_u32 s{T4}, s{T4}, s{T0}")
    KA = 88; O = [128, 144]; OB = 104; RC = 112
    for e in range(2):
        A(f"s_waitcnt {'vm' if CFG.kvm else 'lgkm'}cnt({4*(1-e)})")
        if e == 0 and CFG.kvm: stamp(A, "syncA")
        if e == 1 and not CFG.kvm: ctl_add(A, 56, 57, C_SV)
        for r in range(8):
            A(f"v_cvt_pk_bf16_f32 v{KA+8*e+r}, v{KVR+16*e+2*r}, v{KVR+16*e+2*r+1}")
        mfma(A, O[e], KA+8*e, PHQ+8*e); mfma(A, O[e], KA+8*e+4, PHQ+8*e+4, O[e])
    for e in range(2):
        A(f"v_add_f32 v{RC}, s{sK3}, v{O[e]+8}\nv_rcp_f32 v{RC}, v{RC}")
        for r in range(0, 8, 2):
            A(f"v_pk_mul_f32 {v(O[e]+r,2)}, {v(O[e]+r,2)}, {v(RC,2)} op_sel_hi:[1,0]")
        for r in range(4):
            A(f"v_cvt_pk_bf16_f32 v{OB+4*e+r}, v{O[e]+2*r}, v{O[e]+2*r+1}")
    hstore(A, [f"buffer_store_dwordx4 {v(OB+4*e,4)}, v{VL16}, {s(SWS,4)}, s{T4} offen offset:{e*1024}" for e in range(2)], CFG.o_sc1)
    A(f"s_lshl_b32 s{T3}, s{sRB}, 7\ns_add_u32 s{T3}, s{T3}, {WS_F1}")
    stamp(A, "ostore")
    A(f"s_lshl_b32 s{T0}, s{sHQ}, 4\ns_lshl_b32 s{T1}, s{sW}, 2\ns_add_u32 s{T0}, s{T0}, s{T1}\ns_lshl_b32 s{T2}, s{sRB1}, 7\ns_add_u32 s{T2}, s{T2}, s{T0}")
    A(f"s_lshl_b32 s{T2}, s{T2}, 5\ns_add_u32 s{T2}, s{T2}, {WS_F1X}" if CFG.m42 else f"s_add_u32 s{T2}, s{T2}, {WS_F1}")
    if CFG.m42:
        A(f"s_lshl_b32 s{T0}, s{sRB}, 12\ns_lshl_b32 s{T3}, s{sW}, 10\ns_add_u32 s{T0}, s{T0}, s{T3}\ns_add_u32 s{T0}, s{T0}, {WS_F1X}\nv_lshl_add_u32 v60, v0, 7, s{T0}")
    else:
        A(f"s_lshl_b32 s{T0}, s{sW}, 5\ns_add_u32 s{T0}, s{T0}, s{T3}\nv_lshl_add_u32 v60, v0, 2, s{T0}")
    A(f"s_lshl_b32 s{T0}, s2, 4\ns_add_u32 s{T0}, s{T0}, s{T1}\ns_add_u32 s{T0}, s{T0}, {WS_FW}\nv_mov_b32 v61, s{T0}\nv_cmp_gt_u32 vcc, 8, v0\nv_cndmask_b32 v60, v61, v60, vcc")
    A(f"s_mul_i32 s{T4}, s{sRB}, {2*CFG.ost}\ns_lshl_b32 s{T0}, s{sW}, 13\ns_add_u32 s{T4}, s{T4}, s{T0}")
    A(f"s_mul_i32 s{T0}, s{sRH}, {CFG.ost}\ns_add_u32 s{T5}, s{T4}, {CFG.ost}\ns_sub_u32 s{T5}, s{T5}, s{T0}\ns_add_u32 s{T4}, s{T4}, s{T0}")
    A("s_waitcnt vmcnt(0)")
    flag_store(A, 62, T2, CFG.m42)
    VB = 52
    for i in range(3):
        A(f"v_add_u32 v56, {64*i}, v0\nv_mul_u32_u24 v57, 43691, v56\nv_lshrrev_b32 v57, 19, v57\nv_mul_u32_u24 v3, 12, v57\nv_sub_u32 v56, v56, v3")
        A(f"v_mul_u32_u24 v57, 2752, v57\nv_lshl_add_u32 v{VB+i}, v56, 4, v57")
        if i: A(f"v_subrev_u32 v{VB+i}, {1024*i}, v{VB+i}")
    srd(A, ST1, PTR(5), 512*2752)
    sB1, sB2, sB3 = 8, 9, 10
    A(f"s_mul_i32 s{sB1}, s{sW}, {16*2752}\ns_mul_i32 s{T0}, s{sC16}, 192\ns_add_u32 s{sB1}, s{sB1}, s{T0}\ns_mul_i32 s{sB2}, s{sW}, 3072\ns_add_u32 s{sB2}, s{sB2}, 65536")
    A(f"s_and_b32 s{sB3}, s{sC16}, {3 if CFG.arot else 0}\ns_lshl_b32 s{sB3}, s{sB3}, 1")
    def w1dma(c):
        o_ = []
        for i in range(3):
            pre = f"s_add_u32 s11, s{sB3}, {c}\ns_and_b32 s11, s11, 7\ns_mul_i32 s11, s11, {64*2752}\ns_add_u32 s11, s11, s{sB1}\ns_add_u32 m0, s{sB2}, {c*12288}\n" if i == 0 else ""
            off = f" offset:{i*1024}" if i else ""
            o_.append(pre + f"buffer_load_dwordx4 v{VB+i}, {s(ST1,4)}, s11 offen{off} lds")
        return o_
    w1l = sum([w1dma(c) for c in range(7)], []) if CFG.w1c else []
    A(f"s_mov_b64 s[{sMASK}:{sMASK+1}], 0x1ff")
    poll(A, 61, 60, "0", f"s{sNONCE}", s(sMASK, 2), CFG.f1sleep if CFG.m42 else 0)
    stamp(A, "hop1")
    AF = 64
    for k in range(8):
        for rt in range(2):
            if k % 4 == 0:
                if rt == 0: A(f"s_and_b32 s{T2}, s{sC8}, {1 if CFG.arot else 0}\ns_xor_b32 s{T2}, s{T2}, {k//4}\ns_lshl_b32 s{T2}, s{T2}, 12")
                A(f"s_add_u32 s{T0+rt}, s{T4+rt}, s{T2}")
            A(f"buffer_load_dwordx4 {v(AF+8*k+4*rt,4)}, v{VL16}, {s(SWS,4)}, s{T0+rt} offen offset:{(k%4)*1024} sc1")
    WF = [36, 44]
    ACC = lambda nt, rt: 192 + (2*nt + rt) * 16
    def woreads(k):
        for nt in range(2):
            for t in range(2):
                A(f"ds_read_b64_tr_b16 {v(WF[k&1]+4*nt+2*t,2)}, v{TA0+nt} offset:{k*2048+t*1024}")
    woreads(0)
    nw1 = 0
    for k in range(8):
        if k < 7: woreads(k + 1)
        A(f"s_waitcnt vmcnt({2*(7-k) + nw1}) lgkmcnt({4 if k < 7 else 0})")
        for rt, nt in ((1, 0), (0, 1), (1, 1), (0, 0)):
            mfma(A, ACC(nt, rt), WF[k&1]+4*nt, AF+8*k+4*rt, None if k == 0 else ACC(nt, rt))
            if 4*k + 4 > 32 - CFG.w1in*2 and (rt, nt) in ((1, 0), (1, 1)) and nw1 < CFG.w1in:
                A(w1l[nw1]); nw1 += 1
    stamp(A, "P2lp")
    if CFG.w2t == 1 and not CFG.hw2t:
        srd(A, SW_, PTR(7), 1376*1024)
        A(f"s_mul_i32 s{T0}, s{sJ}, 44032\ns_mul_i32 s{T1}, s{sW}, 11008\ns_add_u32 s{T0}, s{T0}, s{T1}\nv_lshlrev_b32 v60, 7, v0")
        A(f"buffer_load_dword v61, v60, {s(SW_,4)}, s{T0} offen\ns_add_u32 s{T0}, s{T0}, 8192\ns_mov_b64 exec, 0x3fffff")
        A(f"buffer_load_dword v62, v60, {s(SW_,4)}, s{T0} offen\ns_mov_b64 exec, -1")
    R = reduce4(A, "P2", 192, 96, w1l[nw1:], w1dma(7) if CFG.w1c else [])
    stamp(A, "P2red")
    for r in range(8):
        A(f"v_lshlrev_b32 v36, 16, v{XR+r}\nv_and_b32 v37, 0xffff0000, v{XR+r}")
        A(f"v_pk_add_f32 {v(R+2*r,2)}, {v(R+2*r,2)}, v[36:37]")
        A(f"v_cvt_pk_bf16_f32 v{40+r}, v{R+2*r}, v{R+2*r+1}")
    sHO = 7
    A(f"s_lshl_b32 s{T0}, s{sRB}, 1\ns_add_u32 s{T0}, s{T0}, s{sRH}\ns_lshl_b32 s{T1}, s{sC8}, 1\ns_add_u32 s{T1}, s{T1}, s{sHH}")
    A(f"s_mul_i32 s{sHO}, s{T0}, {CFG.hst}\ns_lshl_b32 s{T2}, s{T1}, 11\ns_add_u32 s{sHO}, s{sHO}, s{T2}\ns_add_u32 s{sHO}, s{sHO}, {WS_H}")
    A(f"v_pk_mul_f32 v[38:39], {v(R,2)}, {v(R,2)}\nv_pk_add_f32 v[36:37], {v(R,2)}, {v(R+2,2)}")
    for r in range(2, 16, 2):
        A(f"v_pk_fma_f32 v[38:39], {v(R+r,2)}, {v(R+r,2)}, v[38:39]")
        if r >= 4: A(f"v_pk_add_f32 v[36:37], v[36:37], {v(R+r,2)}")
    A("v_add_f32 v36, v36, v37\nv_add_f32 v38, v38, v39\nv_permlane32_swap_b32 v36, v38\nv_add_f32 v36, v36, v38")
    A(f"s_lshl_b32 s{T2}, s{T0}, 12\ns_lshl_b32 s{T3}, s{T1}, 8\ns_add_u32 s{T2}, s{T2}, s{T3}\ns_add_u32 s{T2}, s{T2}, {WS_ST}\nv_lshlrev_b32 v37, 2, v0")
    hstore(A, [f"buffer_store_dwordx4 v[40:43], v{VL16}, {s(SWS,4)}, s{sHO} offen",
               f"buffer_store_dwordx4 v[44:47], v{VL16}, {s(SWS,4)}, s{sHO} offen offset:1024",
               f"buffer_store_dword v36, v37, {s(SWS,4)}, s{T2} offen"], CFG.h_sc1)
    A(f"s_lshl_b32 s{T6}, s{T0}, 6\ns_lshl_b32 s{T3}, s{T1}, 2\ns_add_u32 s{T6}, s{T6}, s{T3}\ns_add_u32 s{T6}, s{T6}, {WS_F2}")
    W1L = 65536
    stamp(A, "P2st")
    TB0, TB1 = 8, 9
    A(f"v_bfe_u32 v3, v0, 2, 2\nv_lshl_add_u32 v3, v{HALF}, 2, v3\nv_mul_u32_u24 v{TB0}, 192, v3")
    A(f"v_bfe_u32 v3, v0, 4, 1\nv_lshl_add_u32 v{TB0}, v3, 5, v{TB0}\nv_and_b32 v3, 3, v0\nv_lshl_add_u32 v{TB0}, v3, 3, v{TB0}\nv_add_u32 v{TB0}, {W1L}, v{TB0}\nv_add_u32 v{TB1}, {16*3072}, v{TB0}")
    A(f"s_mul_i32 s{T3}, s{sW}, {8*3072}\nv_add_u32 v10, s{T3}, v{TB0}")
    A(f"v_lshrrev_b32 v3, 2, v0\nv_xor_b32 v3, v3, v0\nv_and_b32 v3, 4, v3\nv_and_b32 v7, 3, v0\nv_or_b32 v3, v3, v7\nv_cmp_eq_u32 vcc, 0, v3")
    for i in range(4):
        A(f"v_cndmask_b32 v{SEL+i}, 0, v{ONES}, vcc")
    if CFG.w1c:
        A("s_waitcnt vmcnt(0)")
        flag_store(A, 62, T6)
        stamp(A, "P2fl")
        A("s_barrier")
    CW = 64
    CS1 = 24
    for k in range(8):
        for nt in range(3):
            for t in range(2):
                A(f"ds_read_b64_tr_b16 {v(CW+12*k+4*nt+2*t,2)}, v10 offset:{k*3072 + t*1536 + nt*64}")
        if k == 1 or k == 3 or k == 5 or k == 7:
            A("s_waitcnt lgkmcnt(0)")
            for kk in (k-1, k):
                for nt in range(3):
                    m16(A, CS1+4*nt, SEL, CW+12*kk+4*nt, None if kk == 0 else CS1+4*nt)
        if k == 5 and not CFG.w1c:
            A("s_waitcnt vmcnt(0)")
            flag_store(A, 62, T6)
            stamp(A, "P2fl")
    stamp(A, "P2end")
    srd(A, ST0, PTR(6), 2752)
    srd(A, SW_, PTR(7), 1376*1024)
    B1 = 36
    A(f"v_lshlrev_b32 v3, 1, v{ROW}\ns_mul_i32 s{T0}, s{sC16}, 192")
    for nt in range(3):
        A(f"buffer_load_ushort v{B1+nt}, v3, {s(ST0,4)}, s{T0} offen offset:{nt*64}")
    A(f"s_lshl_b32 s{T0}, s{sW}, 14\nv_lshl_add_u32 v3, v0, 2, s{T0}")
    for nt in range(3):
        A(f"ds_write_b32 v3, v{CS1+4*nt} offset:{nt*256}")
    sRT = 35
    A(f"s_lshl_b32 s{sRT}, s{sRBK}, 2\ns_add_u32 s{sRT}, s{sRT}, s{sW}")
    A(f"s_lshl_b32 s{T5}, s{sRT}, 6\ns_add_u32 s{T5}, s{T5}, {WS_F2}\nv_lshlrev_b32 v60, 2, v0\nv_and_b32 v60, 63, v60")
    A("s_waitcnt lgkmcnt(0)\ns_barrier")
    A("v_lshlrev_b32 v3, 2, v0")
    for w in range(4):
        for nt in range(3):
            A(f"ds_read_b32 v{40+3*w+nt}, v3 offset:{w*16384+nt*256}")
    VO0, VO1 = 10, 11
    wide_pattern(A, VO0, 1024, 60+1, 62, 63)
    A(f"v_add_u32 v{VO1}, {8192-1024}, v{VO0}")
    A("v_cmp_gt_u32 vcc, 32, v0")
    A("s_waitcnt vmcnt(0) lgkmcnt(0)")
    CF = 24
    for nt in range(3):
        A(f"v_add_f32 v52, v{40+nt}, v{43+nt}\nv_add_f32 v53, v{46+nt}, v{49+nt}\nv_add_f32 v52, v52, v53")
        A(f"v_cndmask_b32 v52, 0, v52, vcc\nv_cndmask_b32 v{B1+nt}, 0, v{B1+nt}, vcc")
        A(f"v_cvt_pk_bf16_f32 v{CF+4*nt}, v52, v52\nv_lshlrev_b32 v53, 16, v{CF+4*nt}\nv_sub_f32 v53, v52, v53")
        A(f"v_cvt_pk_bf16_f32 v53, v53, 0\nv_lshl_or_b32 v{CF+4*nt+1}, v{B1+nt}, 16, v53\nv_mov_b32 v{CF+4*nt+2}, v{B1+nt}\nv_mov_b32 v{CF+4*nt+3}, 0")
    A("s_barrier")
    A(f"s_mov_b64 s[{sMASK}:{sMASK+1}], 0xffff")
    poll(A, 61, 60, f"s{T5}", f"s{sNONCE}", s(sMASK, 2))
    stamp(A, "hop2")
    AF = 128; STR = 112
    A(f"s_mul_i32 s{T4}, s{sRT}, {CFG.hst}\ns_add_u32 s{T4}, s{T4}, {WS_H}\ns_lshl_b32 s{T5}, s{sRT}, 12\ns_add_u32 s{T5}, s{T5}, {WS_ST}")
    sW2, sL2 = T6, T7
    A(f"s_mul_i32 s{sW2}, s{sW}, {22*16*1024}\ns_lshl_b32 s{T0}, s{sC8}, 7\ns_add_u32 s{sW2}, s{sW2}, s{T0}")
    def hload(k):
        pre = f"s_lshl_b32 s{T0}, s{sC16}, {13 if CFG.arot else 15}\ns_add_u32 s{T0}, s{T0}, {k*1024}\ns_and_b32 s{T0}, s{T0}, 0x7fff\ns_add_u32 s{T0}, s{T0}, s{T4}\n" if k % 4 == 0 else ""
        return pre + f"buffer_load_dwordx4 {v(AF+4*k,4)}, v{VL16}, {s(SWS,4)}, s{T0} offen offset:{(k%4)*1024} sc1"
    def w2slot(k):
        sl = k % 20
        return (f"s_lshl_b32 s{T1}, s{sW}, 14\ns_add_u32 m0, s{T1}, {sl*2048}" if sl < 8 else
                f"s_mul_i32 s{T1}, s{sW}, 24576\ns_add_u32 m0, s{T1}, {65536 + (sl-8)*2048}")
    sRS = sK3
    A(f"s_mul_i32 s{sROT}, s{sC8}, {3 if CFG.arot else 0}")
    act = lambda src: f"s_add_u32 s{T2}, {src}, s{sROT}\ns_cmp_ge_u32 s{T2}, 22\ns_cselect_b32 s3, 22, 0\ns_sub_u32 s{T2}, s{T2}, s3\ns_lshl_b32 s{T2}, s{T2}, 14\ns_add_u32 s{T2}, s{T2}, s{sW2}\n"
    def w2dyn(lo, n, first):
        pre = ""
        if first:
            pre = (f"s_and_b32 s{sRS}, s{sRB}, 3\ns_mul_i32 s{sRS}, s{sRS}, {n//4}\ns_add_u32 s{sRS}, s{sRS}, {lo}\n" if CFG.wrot else f"s_mov_b32 s{sRS}, {lo}\n")
            pre += (f"s_lshl_b32 s{sL2}, s{sW}, 14\n" if lo == 0 else f"s_mul_i32 s{sL2}, s{sW}, 24576\ns_add_u32 s{sL2}, s{sL2}, {65536 - 8*2048}\n")
        return [pre + f"s_lshl_b32 s{T1}, s{sRS}, 11\ns_add_u32 m0, s{T1}, s{sL2}\n" + act(f"s{sRS}") + f"buffer_load_dwordx4 v{VO0}, {s(SW_,4)}, s{T2} offen lds",
                f"buffer_load_dwordx4 v{VO1}, {s(SW_,4)}, s{T2} offen offset:1024 lds\ns_add_u32 s{sRS}, s{sRS}, 1\ns_cmp_eq_u32 s{sRS}, {lo+n}\ns_cselect_b32 s{sRS}, {lo}, s{sRS}"]
    def w2load(k):
        return [w2slot(k) + "\n" + act(str(k)) + f"buffer_load_dwordx4 v{VO0}, {s(SW_,4)}, s{T2} offen lds",
                f"buffer_load_dwordx4 v{VO1}, {s(SW_,4)}, s{T2} offen offset:1024 lds"]
    seq = [hload(k) for k in range(32)]
    A("v_lshlrev_b32 v7, 2, v0")
    stl = [f"buffer_load_dword v{STR+g}, v7, {s(SWS,4)}, s{T5} offen offset:{g*256} sc1" for g in range(16)]
    w2a = sum([w2dyn(0, 8, k == 0) for k in range(8)], [])
    n0 = 10 if CFG.p3s else 2
    order = seq[:n0] + stl + seq[n0:]
    idx = lambda k: k if k < n0 else k + 16
    D = 8 if CFG.p3s else CFG.p3D
    kst = 10 if CFG.p3s else 3
    for o in order[:D]: A(o)
    issued = D
    FW = [40, 48]
    ACC3 = [64, 80, 96]
    def w1reads(kg, nts, F):
        base = TB0 if kg < 16 else TB1
        for i_, nt in enumerate(nts):
            for t in range(2):
                A(f"ds_read_b64_tr_b16 {v(F+4*i_+2*t,2)}, v{base} offset:{(kg&15)*3072 + t*1536 + nt*64}")
    c0 = -2 * 0.7978845608028654 * LOG2E
    c1 = c0 * 0.044715
    NM, RSTD, SD, NF, KK = 18, 19, 16, (20 if CFG.p3m else 56), 14
    def stats():
        for g in range(3):
            A(f"v_pk_add_f32 {v(STR,2)}, {v(STR,2)}, {v(STR+4*g+4,2)}\nv_pk_add_f32 {v(STR+2,2)}, {v(STR+2,2)}, {v(STR+4*g+6,2)}")
        A(f"v_pk_add_f32 {v(STR,2)}, {v(STR,2)}, {v(STR+2,2)}\nv_add_f32 v{STR}, v{STR}, v{STR+1}\nv_mov_b32 v{STR+1}, v{STR}")
        A(f"v_permlane32_swap_b32 v{STR}, v{STR+1}")
        finish_stats(A, STR, STR+1, NM, RSTD, SD)
        A(f"v_mul_f32 v{SD}, v{SD}, v{RSTD}")
        A(f"v_cvt_pk_bf16_f32 v{NF+1}, v{NM}, v{SD}")
        A(f"v_lshlrev_b32 v60, 16, v{NF+1}\nv_sub_f32 v60, v{NM}, v60\nv_cvt_pk_bf16_f32 v{NF}, v{NM}, v60")
        A(f"v_and_b32 v60, 0xffff0000, v{NF+1}\nv_sub_f32 v60, v{SD}, v60\nv_cvt_pk_bf16_f32 v{NF+2}, v60, 0\nv_mov_b32 v{NF+3}, 0")
        A(f"v_mul_f32 v{KK+1}, {fbits(c0)}, v{RSTD}\nv_mul_f32 v60, v{RSTD}, v{RSTD}\nv_mul_f32 v60, v60, v{RSTD}\nv_mul_f32 v{KK}, {fbits(c1)}, v60")
    if CFG.p3m:
        FW3_ = [36, 48]
        p3a = 0 if CFG.hw2 else CFG.p3a
        order = order + w2a[:p3a]
        nh = len(order) - p3a
        w1reads(0, (0, 1, 2), FW3_[0])
        stamp(A, "p3i")
        for k in range(32):
            if k < 31 and not CFG.spread: w1reads(k + 1, (0, 1, 2), FW3_[(k+1)&1])
            if issued < nh: new = order[issued:min(issued + (3 if (CFG.p3s and k < 9) else CFG.p3r), nh)]
            elif k >= 32 - p3a: new = order[issued:issued + 1]
            else: new = []
            if CFG.hw2 and k == CFG.p3bk: A("s_barrier")
            for nt in range(3):
                if nt == 0:
                    A(f"s_waitcnt vmcnt({issued - 1 - idx(k)}) lgkmcnt({(4 if CFG.spread else 6) if (k < 31 or CFG.spread) else 0})")
                    stamp(A, f"p3k{k}")
                elif CFG.spread:
                    A(f"s_waitcnt lgkmcnt({4 if k < 31 else 4 - 2*nt})")
                mfma(A, ACC3[nt], FW3_[k&1]+4*nt, AF+4*k, None if k == 0 else ACC3[nt])
                if CFG.spread and k < 31: w1reads(k + 1, (nt,), FW3_[(k+1)&1] + 4*nt)
                if nt < len(new): A(new[nt])
            issued += len(new)
            if k == kst: stats()
            if k == kst + 1:
                for nt in range(3): mfma(A, ACC3[nt], CF+4*nt, NF, ACC3[nt])
        assert issued == len(order)
    else:
        w1reads(0, (0, 1), FW[0])
        for k in range(32):
            if k < 31: w1reads(k + 1, (0, 1), FW[(k+1)&1])
            else: w1reads(0, (2,), 60)
            A(f"s_waitcnt vmcnt({issued - 1 - idx(k)}) lgkmcnt({4 if k < 31 else 2})")
            new = order[issued:issued + 2]; issued += len(new)
            for nt in range(2):
                mfma(A, ACC3[nt], FW[k&1]+4*nt, AF+4*k, None if k == 0 else ACC3[nt])
                if nt < len(new): A(new[nt])
            if k == 3: stats()
            if k == 4:
                mfma(A, ACC3[2], CF+8, NF)
                mfma(A, ACC3[0], CF, NF, ACC3[0])
                mfma(A, ACC3[1], CF+4, NF, ACC3[1])
        for o in order[issued:]: A(o)
    stamp(A, "P3lp")
    A(f"s_mul_i32 s{T4}, s{sRT}, {CFG.h1st}\ns_mul_i32 s{T0}, s{sC16}, 6144\ns_add_u32 s{T4}, s{T4}, s{T0}\ns_add_u32 s{T4}, s{T4}, {WS_H1}")
    w2b = sum([w2dyn(8, 12, k == 8) for k in range(8, 20)], [])
    T = 112
    def gelu(X, OUT, pk):
        b = []
        if pk:
            for r in range(0, 16, 2): b.append(f"v_pk_mul_f32 {v(T+r,2)}, {v(X+r,2)}, {v(X+r,2)}")
            for r in range(0, 16, 2): b.append(f"v_pk_fma_f32 {v(T+r,2)}, {v(T+r,2)}, {v(KK,2)}, {v(KK,2)} op_sel:[0,0,1] op_sel_hi:[1,0,1]")
            for r in range(0, 16, 2): b.append(f"v_pk_mul_f32 {v(T+r,2)}, {v(T+r,2)}, {v(X+r,2)}")
            for r in range(16): b.append(f"v_exp_f32 v{T+r}, v{T+r}")
            for r in range(0, 16, 2): b.append(f"v_pk_fma_f32 {v(T+r,2)}, {v(T+r,2)}, {v(SD,2)}, {v(SD,2)} op_sel_hi:[1,0,0]")
            for r in range(16): b.append(f"v_rcp_f32 v{T+r}, v{T+r}")
            for r in range(0, 16, 2): b.append(f"v_pk_mul_f32 {v(X+r,2)}, {v(X+r,2)}, {v(T+r,2)}")
            for r in range(8): b.append(f"v_cvt_pk_bf16_f32 v{OUT+r}, v{X+2*r}, v{X+2*r+1}")
        else:
            st = [lambda r: f"v_mul_f32 v{T+r}, v{X+r}, v{X+r}",
                  lambda r: f"v_fma_f32 v{T+r}, v{T+r}, v{KK}, v{KK+1}",
                  lambda r: f"v_mul_f32 v{T+r}, v{T+r}, v{X+r}",
                  lambda r: f"v_exp_f32 v{T+r}, v{T+r}",
                  lambda r: f"v_fma_f32 v{T+r}, v{T+r}, v{SD}, v{SD}",
                  lambda r: f"v_rcp_f32 v{T+r}, v{T+r}",
                  lambda r: f"v_mul_f32 v{X+r}, v{X+r}, v{T+r}"]
            for step in range(8 + 7):
                for sidx in range(7, -1, -1):
                    g = step - sidx
                    if 0 <= g < 8:
                        if sidx == 7: b.append(f"v_cvt_pk_bf16_f32 v{OUT+g}, v{X+2*g}, v{X+2*g+1}")
                        else:
                            b.append(st[sidx](2*g)); b.append(st[sidx](2*g+1))
        return b
    def h1store(nt, OUT):
        lab = f"P3_NOST{nt}"
        A(f"s_cmp_ge_u32 s{sC16}, {15 if nt == 0 else 14}\ns_cbranch_scc1 {lab}")
        if nt == 2: A(f"s_add_u32 s{T4}, s{T4}, 4096")
        o = (nt & 1) * 2048
        hstore(A, [f"buffer_store_dwordx4 {v(OUT,4)}, v{VL16}, {s(SWS,4)}, s{T4} offen offset:{o}",
                   f"buffer_store_dwordx4 {v(OUT+4,4)}, v{VL16}, {s(SWS,4)}, s{T4} offen offset:{o+1024}"], CFG.h1_sc1)
        A.label(lab)
        stamp(A, f"gelu{nt}")
    if CFG.p3m:
        A("s_barrier")
        rest = [] if CFG.hw2 else w2a[CFG.p3a:] + w2b
        body = gelu(ACC3[0], 24, 1) + ["ST0"] + gelu(ACC3[1], 32, 1) + ["ST1"] + gelu(ACC3[2], 44, 1) + ["ST2"]
        span = (len(body) * 5) // 6
        nd = 0
        for i, b_ in enumerate(body):
            if b_.startswith("ST"): h1store(int(b_[2]), (24, 32, 44)[int(b_[2])])
            else: A(b_)
            if rest and nd < CFG.p3g and i >= nd * span // CFG.p3g:
                A(rest[nd]); nd += 1
        w2b = [None]*8 + rest[nd:]
    else:
        body = gelu(ACC3[0], 24, CFG.gpk) + ["ST0"] + gelu(ACC3[1], 32, CFG.gpk) + ["ST1"]
        F2 = [60, 40]
        pos = 0
        for k in range(32):
            if k < 31: w1reads(k + 1, (2,), F2[(k+1)&1])
            A(f"s_waitcnt lgkmcnt({2 if k < 31 else 0})")
            mfma(A, ACC3[2], F2[k&1], AF+4*k, ACC3[2])
            if k % 2 == 0: A(w2a[k // 2])
            end = len(body) if k == 31 else (len(body) * (k + 1)) // 33
            for b_ in body[pos:end]:
                if b_ == "ST0": h1store(0, 24)
                elif b_ == "ST1": h1store(1, 32)
                else: A(b_)
            pos = end
        A("s_barrier")
        body = gelu(ACC3[2], 44, 1)
        for i, b_ in enumerate(body):
            A(b_)
            if i % 10 == 0 and i // 10 < 8: A(w2b[i // 10])
        h1store(2, 44)
    for o in (w2b[8:16] if not CFG.p3o else []): A(o)
    srd(A, SX_, PTR(11), 64*CFG.h1st, add=WS_H1)
    srd(A, ST0, PTR(8), 1024)
    srd(A, ST1, PTR(9), 2097152)
    A(f"s_lshl_b32 s{T3}, s{sRT}, 6\ns_lshl_b32 s{T0}, s{sC16}, 2\ns_add_u32 s{T3}, s{T3}, s{T0}\ns_add_u32 s{T3}, s{T3}, {WS_F3}")
    TA2, TA3, VO, VB2 = 14, 15, 16, 17
    A(f"s_lshl_b32 s{T0}, s{sW}, 13\ns_add_u32 s{T0}, s{T0}, 65536\nv_add_u32 v{TA2}, s{T0}, v{TA0}\nv_add_u32 v{TA3}, s{T0}, v{TA1}")
    A(f"v_lshlrev_b32 v{VO}, 10, v{ROW}\nv_lshl_add_u32 v{VO}, v{HALF}, 4, v{VO}\nv_lshlrev_b32 v{VB2}, 3, v{HALF}")
    lo = [0, 3, 7, 11]; hi = [3, 7, 10, 14]
    msk = [(((1 << (hi[w]+1)) - (1 << lo[w])) * 0x10001) for w in range(4)]
    A(f"s_mov_b32 s{sMASK}, {msk[0]}\ns_cmp_eq_u32 s{sW}, 1\ns_cselect_b32 s{sMASK}, {msk[1]}, s{sMASK}\ns_cmp_eq_u32 s{sW}, 2\ns_cselect_b32 s{sMASK}, {msk[2]}, s{sMASK}")
    A(f"s_cmp_eq_u32 s{sW}, 3\ns_cselect_b32 s{sMASK}, {msk[3]}, s{sMASK}\ns_mov_b32 s{sMASK+1}, 0")
    A(f"s_lshl_b32 s{T5}, s{sRB}, 7\ns_add_u32 s{T5}, s{T5}, {WS_F3}\nv_lshlrev_b32 v60, 2, v0\nv_and_b32 v60, 127, v60")
    A("s_waitcnt vmcnt(0)")
    A(f"s_cmp_eq_u32 s{sC16}, 15\ns_cbranch_scc1 P3_NOFL")
    flag_store(A, 62, T3)
    A.label("P3_NOFL")
    for o in (w2b[16:] if not CFG.p3o else w2b[8:]): A(o)
    stamp(A, "P3fl")
    HR, B2R = 20, 28
    A(f"s_lshl_b32 s{T3}, s{sC8}, 7\ns_lshl_b32 s{T0}, s{sHH}, 6\ns_add_u32 s{T3}, s{T3}, s{T0}")
    for t in range(2):
        A(f"buffer_load_dwordx4 {v(HR+4*t,4)}, v{VL16}, {s(SWS,4)}, s{sHO} offen offset:{t*1024} sc1")
    for q in range(4):
        A(f"buffer_load_dwordx2 {v(B2R+2*q,2)}, v{VB2}, {s(ST0,4)}, s{T3} offen offset:{q*16}")
    sOUT = sHO
    poll(A, 61, 60, f"s{T5}", f"s{sNONCE}", s(sMASK, 2))
    stamp(A, "hop3")
    A(f"s_lshl_b32 s{sOUT}, s{sRB}, 16\ns_lshl_b32 s{T0}, s{sRH}, 15\ns_add_u32 s{sOUT}, s{sOUT}, s{T0}\ns_add_u32 s{sOUT}, s{sOUT}, s{T3}")
    A(f"s_mul_i32 s{T4}, s{sRB}, {2*CFG.h1st}\ns_mul_i32 s{T0}, s{sW}, {22*1024}\ns_add_u32 s{T4}, s{T4}, s{T0}\ns_mul_i32 s{T0}, s{sRH}, {CFG.h1st}\ns_add_u32 s{T5}, s{T4}, {CFG.h1st}\ns_sub_u32 s{T5}, s{T5}, s{T0}\ns_add_u32 s{T4}, s{T4}, s{T0}")
    NR = 16
    assert CFG.p4D <= 30
    AFR = lambda k: 64 + (k % NR) * 8
    A(f"s_cmp_eq_u32 s{sW}, 3\ns_cselect_b32 s{sK1}, 20, 99\ns_mov_b32 s{sK2}, s{sROT}")
    def h1load(k):
        return [f"s_lshl_b32 s{T3}, s{sK2}, 10\ns_cmp_ge_u32 s{sK2}, s{sK1}\ns_cselect_b32 s{T3}, 0x40000000, s{T3}\ns_add_u32 s{T0}, s{T4}, s{T3}\nbuffer_load_dwordx4 {v(AFR(k),4)}, v{VL16}, {s(SX_,4)}, s{T0} offen sc1",
                f"s_add_u32 s{T0}, s{T5}, s{T3}\nbuffer_load_dwordx4 {v(AFR(k)+4,4)}, v{VL16}, {s(SX_,4)}, s{T0} offen sc1\ns_add_u32 s{sK2}, s{sK2}, 1\ns_cmp_eq_u32 s{sK2}, 22\ns_cselect_b32 s{sK2}, 0, s{sK2}"]
    order = []
    for k in range(22):
        for o in h1load(k): order.append((("h", k), o))
        if k == 9:
            for kk in (20, 21):
                for o in w2load(kk): order.append((("w", kk), o))
    D = CFG.p4D
    if CFG.p4x & 1: order = [(t, o.replace(' sc1', '')) for t, o in order]
    for _, o in order[:D]: A(o)
    issued = D
    WF = [36, 44]
    def w2reads(k):
        sl = k % 20
        if CFG.p4x & 2: return
        for nt in range(2):
            for t in range(2):
                if sl < 8:
                    A(f"ds_read_b64_tr_b16 {v(WF[k&1]+4*nt+2*t,2)}, v{TA0+nt} offset:{sl*2048+t*1024}")
                else:
                    A(f"ds_read_b64_tr_b16 {v(WF[k&1]+4*nt+2*t,2)}, v{TA2+nt} offset:{(sl-8)*2048+t*1024}")
    def last_idx(tag):
        return max(i for i, (t, _) in enumerate(order) if t == tag)
    stamp(A, "p4i")
    if CFG.hw2: A("s_barrier")
    w2reads(0)
    for k in range(22):
        if k < 21:
            if k + 1 >= 20:
                A(f"s_waitcnt vmcnt({issued - 1 - last_idx(('w', k+1))})")
            w2reads(k + 1)
        A(f"s_waitcnt vmcnt({issued - 1 - last_idx(('h', k))}) lgkmcnt({4 if k < 21 else 0})")
        stamp(A, f"p4k{k}")
        new = order[issued:issued + 2]
        issued += len(new)
        j = 0
        for rt, nt in ((1, 0), (0, 1), (1, 1), (0, 0)):
            if True:
                if not (CFG.p4x & 4) or k == 0: mfma(A, ACC(nt, rt), WF[k&1]+4*nt, AFR(k)+4*rt, None if k == 0 else ACC(nt, rt))
                if j < len(new): A(new[j][1])
                j += 1
    assert issued >= len(order)
    stamp(A, "P4lp")
    R = reduce4(A, "P4", 192, 96)
    stamp(A, "P4red")
    for r in range(8):
        A(f"v_lshlrev_b32 v36, 16, v{HR+r}\nv_and_b32 v37, 0xffff0000, v{HR+r}\nv_lshlrev_b32 v38, 16, v{B2R+r}\nv_and_b32 v39, 0xffff0000, v{B2R+r}")
        A(f"v_pk_add_f32 {v(R+2*r,2)}, {v(R+2*r,2)}, v[38:39]")
        A(f"v_pk_add_f32 {v(R+2*r,2)}, {v(R+2*r,2)}, v[36:37]")
        A(f"v_cvt_pk_bf16_f32 v{48+r}, v{R+2*r}, v{R+2*r+1}")
    for p in range(2):
        A(f"v_permlane32_swap_b32 v{48+4*p}, v{50+4*p}\nv_permlane32_swap_b32 v{49+4*p}, v{51+4*p}")
        A(f"buffer_store_dwordx4 {v(48+4*p,4)}, v{VO}, {s(ST1,4)}, s{sOUT} offen offset:{p*32}" + (" sc1" if CFG.out_sc1 else ""))
    A(f"s_or_b32 s{T0}, s2, s{sW}\ns_cmp_lg_u32 s{T0}, 0\ns_cbranch_scc1 C_NOEP")
    A(f"v_mov_b32 v60, s{sNONCE}\nv_mov_b32 v61, 0\ns_mov_b32 s{T0}, {WS_EPOCH}\ns_mov_b64 exec, 1")
    A(f"buffer_store_dword v60, v61, {s(SWS,4)}, s{T0} offen sc1\ns_mov_b64 exec, -1")
    if CFG.spin_us or CFG.amp:
        if CFG.amp:
            A(f"s_waitcnt vmcnt(0)\ns_memrealtime s[{T0}:{T1}]\ns_waitcnt lgkmcnt(0)\ns_sub_u32 s82, s82, s80\ns_add_u32 s80, s{T0}, s82\ns_add_u32 s80, s80, 300")
        else:
            A(f"s_add_u32 s80, s80, {CFG.spin_us*100}")
        A.label("C_SPIN")
        A(f"s_memrealtime s[{T0}:{T1}]\ns_waitcnt lgkmcnt(0)\ns_sub_u32 s{T2}, s80, s{T0}\ns_cmp_gt_i32 s{T2}, 0\ns_cbranch_scc0 C_NOEP\ns_cmp_lt_i32 s{T2}, 20000\ns_cbranch_scc1 C_SPIN")
    A.label("C_NOEP")
    stamp_out(A, 0)
    A("s_endpgm")

def main(out, **kw):
    for k_, v_ in kw.items(): setattr(CFG, k_, v_)
    nstamp[0] = 0
    A = Asm()
    gen(A)
    A.pad()
    kernel_desc(A, KN, 256, sgpr=102)
    head = open("cdna_kernels/" + NAME + ".s.ref").read().split("; Override")[0]
    if CFG.stamp: head += "; stamps: " + " ".join(STAMPSETS[CFG.stamp][1:]) + "\n"
    head += f"; @launch grid=(256,1,1) block=(512,1,1) lds=163840\n"
    head += '.amdgcn_target "amdgcn-amd-amdhsa--gfx950"\n'
    open(out, "w").write(head + A.text())

if __name__ == "__main__":
    kw = {}
    for a_ in sys.argv[2:]:
        k_, v_ = a_.split("=", 1)
        kw[k_] = v_ if k_ in ('tl', 'pace', 't2', 'amp') else int(v_)
    main(sys.argv[1], **kw)
```
